```python
import torch

def _softmax(x, axis=-1):
    return torch.softmax(x, dim=axis)

def _gelu(x):
    return torch.nn.functional.gelu(x, approximate='tanh')

def _silu(x):
    return torch.nn.functional.silu(x)

def _sigmoid(x):
    return torch.sigmoid(x)

def _layernorm(x, axis=-1, eps=1e-05):
    m = x.mean(dim=axis, keepdim=True)
    v = x.var(dim=axis, keepdim=True, unbiased=False)
    return (x - m) / torch.sqrt(v + eps)

def _scatter_add(tgt, idx, src, axis=0):
    return tgt.clone().index_add_(axis, idx, src)

def _segment_sum(src, seg, n):
    out = torch.zeros((n,) + src.shape[1:], dtype=src.dtype)
    return out.index_add_(0, seg, src)

def _pad(x, pw):
    flat = tuple((v for pair in reversed(pw) for v in pair))
    return torch.nn.functional.pad(x, flat)
kernel_name = 'adaLN_cond__memory_aug_recurrent_mem_tr__glu_gated_reglu__prompt'

def setup_inputs():

    _w = lambda a: (lambda t: t.to(torch.bfloat16) if t.is_floating_point() else t)(torch.as_tensor(a))

    def _A_setup():
        B, S, Dm = (1, 2048, 640)
        H, Dh = (32, 128)
        M, seg = (8, 32)
        seg = min(seg, S)
        S = S // seg * seg
        return {'x': _w((lambda *s: torch.randn(*s, dtype=torch.bfloat16) * 0.05)(B, S, Dm)), 'mem0': _w((lambda *s: torch.randn(*s, dtype=torch.bfloat16) * 0.8)(B, M, Dm)), 'Wq': _w((lambda *s: torch.randn(*s, dtype=torch.bfloat16) * 0.8)(Dm, H, Dh) * Dm ** (-0.5)), 'Wk': _w((lambda *s: torch.randn(*s, dtype=torch.bfloat16) * 0.8)(Dm, H, Dh) * Dm ** (-0.5)), 'Wv': _w((lambda *s: torch.randn(*s, dtype=torch.bfloat16) * 0.8)(Dm, H, Dh) * Dm ** (-0.5)), 'Wo': _w((lambda *s: torch.randn(*s, dtype=torch.bfloat16) * 0.8)(H, Dh, Dm) * (H * Dh) ** (-0.5)), 'seg_len': seg}
    _A_in = _A_setup()

    def _B_setup():
        B, S, D, F = (1, 2048, 640, 1728)
        return {'x': _w((lambda *s: torch.randn(*s, dtype=torch.bfloat16) * 0.05)(B, S, D)), 'W_gate': _w((lambda *s: torch.randn(*s, dtype=torch.bfloat16) * 0.4)(D, F) * (2.0 / D) ** 0.5), 'W_up': _w((lambda *s: torch.randn(*s, dtype=torch.bfloat16) * 0.4)(D, F) * (2.0 / D) ** 0.5), 'W_down': _w((lambda *s: torch.randn(*s, dtype=torch.bfloat16) * 0.4)(F, D) * (1.0 / F) ** 0.5)}
    _B_in = _B_setup()
    return {'A_x': _A_in['x'], 'A_mem0': _A_in['mem0'], 'A_Wq': _A_in['Wq'], 'A_Wk': _A_in['Wk'], 'A_Wv': _A_in['Wv'], 'A_Wo': _A_in['Wo'], 'A_seg_len': _A_in['seg_len'], 'B_x': _B_in['x'], 'B_W_gate': _B_in['W_gate'], 'B_W_up': _B_in['W_up'], 'B_W_down': _B_in['W_down'], 'c': _w((lambda *s: torch.randn(*s, dtype=torch.bfloat16) * 0.1)(1, 640) * 8.0), 'w_mod': _w((lambda *s: torch.randn(*s, dtype=torch.bfloat16) * 0.1)(640, 6 * 640) * 640 ** (-0.5) * 8.0)}

def reference(A_x, A_mem0, A_Wq, A_Wk, A_Wv, A_Wo, A_seg_len, B_x, B_W_gate, B_W_up, B_W_down, c, w_mod):

    def _A_ref(x, mem0, Wq, Wk, Wv, Wo, seg_len):
        B, S, Dm = x.shape
        H, Dh = (Wq.shape[1], Wq.shape[2])
        M = mem0.shape[1]
        scale = Dh ** (-0.5)
        n_seg = S // seg_len
        L = M + seg_len
        idx = torch.arange(L)
        mask = (idx[:, None] < M) | (idx[:, None] >= idx[None, :])
        mem = mem0
        outs = []
        for s in range(n_seg):
            xs = x[:, s * seg_len:(s + 1) * seg_len, :].clone()
            h = torch.concatenate([mem, xs], axis=1)
            q = torch.einsum('btd,dhe->bhte', h, Wq)
            k = torch.einsum('btd,dhe->bhte', h, Wk)
            v = torch.einsum('btd,dhe->bhte', h, Wv)
            scores = torch.einsum('bhqe,bhke->bhqk', q, k) * scale
            scores = torch.where(mask[None, None], scores, -1000000000.0)
            p = _softmax(scores, axis=-1)
            o = torch.einsum('bhqk,bhke->bhqe', p, v)
            o = torch.einsum('bhte,hed->btd', o, Wo)
            mem = o[:, :M, :].clone()
            outs.append(o[:, M:, :])
        return torch.concatenate(outs, axis=1)

    def _B_ref(x, W_gate, W_up, W_down):
        gate = torch.einsum('bsd,df->bsf', x, W_gate)
        up = torch.einsum('bsd,df->bsf', x, W_up)
        gate = gate * (lambda x, dt: x.to(dt))(gate > 0, gate.dtype)
        h = gate * up
        return torch.einsum('bsf,fd->bsd', h, W_down)
    x = A_x
    mod = (_silu(c) @ w_mod).reshape(c.shape[0], 6, 1, -1)
    sa, ca, ga, sb, cb, gb = (mod[:, 0].clone(), mod[:, 1].clone(), mod[:, 2].clone(), mod[:, 3].clone(), mod[:, 4].clone(), mod[:, 5].clone())
    h = _layernorm(x, axis=-1) * (1 + ca) + sa
    x = x + ga * _A_ref(h, A_mem0, A_Wq, A_Wk, A_Wv, A_Wo, A_seg_len)
    h = _layernorm(x, axis=-1) * (1 + cb) + sb
    x = x + gb * _B_ref(h, B_W_gate, B_W_up, B_W_down)
    return x
```

```python
import re, copy

def v(i, n=1): return f"v{i}" if n == 1 else f"v[{i}:{i+n-1}]"
def a(i, n=1): return f"a{i}" if n == 1 else f"a[{i}:{i+n-1}]"
def s(i, n=1): return f"s{i}" if n == 1 else f"s[{i}:{i+n-1}]"
def ur(i, n=1):
    return v(i, n) if i < 256 else a(i - 256, n)

_REG = re.compile(r"^(-|abs\(|\|)?([vas])(?:(\d+)|\[(\d+):(\d+)\])\)?\|?$")
def regs_of(tok):
    tok = tok.strip()
    m = _REG.match(tok)
    if m:
        k = m.group(2)
        if m.group(3) is not None: lo = hi = int(m.group(3))
        else: lo, hi = int(m.group(4)), int(m.group(5))
        return {(k, i) for i in range(lo, hi + 1)}
    if tok in ("vcc", "vcc_lo", "vcc_hi"): return {("s", "vcc")}
    if tok in ("exec", "exec_lo", "exec_hi"): return {("s", "exec")}
    if tok == "m0": return {("s", "m0")}
    return set()

TRANS = ("v_exp_f32", "v_log_f32", "v_rcp_f32", "v_rsq_f32", "v_sqrt_f32", "v_sin_f32", "v_cos_f32", "v_rcp_iflag_f32")
NODEF_S = ("s_cmp", "s_cbranch", "s_waitcnt", "s_barrier", "s_nop", "s_branch", "s_setprio", "s_sleep", "s_endpgm", "s_bitcmp", "s_setpc")

class I:
    __slots__ = ("text", "op", "defs", "uses", "kind", "states", "A", "B", "C", "passes", "dpp", "wide", "data")
    def __init__(self, text):
        self.text = text
        t = text.split(";")[0].strip()
        parts = t.split(None, 1)
        op = self.op = parts[0]
        rest = parts[1] if len(parts) > 1 else ""
        ops = [x.strip() for x in rest.split(",")] if rest else []
        mods = ""
        if ops:
            l = ops[-1].split(None, 1)
            ops[-1] = l[0]
            mods = l[1] if len(l) > 1 else ""
        R = [regs_of(x) for x in ops]
        self.defs, self.uses = set(), set()
        self.A = self.B = self.C = set(); self.passes = 0; self.dpp = False; self.wide = False
        self.states = 1; self.data = set()
        U = lambda l: set().union(*l) if l else set()
        if op.startswith("v_mfma"):
            self.kind = "mfma"; self.defs = R[0]; self.A, self.B, self.C = R[1], R[2], R[3]
            self.uses = U(R[1:]); self.passes = 8 if "32x32" in op else 4
        elif op.startswith("v_smfmac"):
            self.kind = "mfma"; self.defs = R[0]; self.A, self.B, self.C = R[1], R[2] | R[3], R[0]
            self.uses = U(R); self.passes = 8 if "32x32" in op else 4
        elif op.startswith("v_"):
            self.kind = "valu"
            self.dpp = "_dpp" in op or "row_" in mods or "quad_perm" in mods
            if op.startswith("v_nop"): pass
            elif "permlane" in op and "swap" in op or op.startswith("v_swap"):
                self.defs = U(R); self.uses = U(R)
            elif re.match(r"v_(add|sub|subrev|addc|subb)_co", op) or op.startswith("v_div_scale") or op.startswith("v_mad_u64"):
                self.defs = R[0] | R[1]; self.uses = U(R[2:])
            else:
                self.defs = R[0]; self.uses = U(R[1:])
                if op.startswith(("v_fmac", "v_dot2c", "v_writelane", "v_pk_fmac")) or self.dpp: self.uses |= R[0]
                if op.startswith("v_cmpx"): self.defs |= {("s", "exec")}
        elif op.startswith("ds_"):
            self.kind = "ds"
            if op.startswith(("ds_read", "ds_bpermute", "ds_permute", "ds_swizzle")) or "_rtn" in op:
                self.defs = R[0]; self.uses = U(R[1:])
            else: self.uses = U(R)
        elif op.startswith(("buffer_", "global_")):
            self.kind = "vm"
            allmods = mods.split()
            if op.startswith(("buffer_wbl2", "buffer_inv")): pass
            elif "lds" in allmods or "_lds_" in op:
                self.uses = U(R) | {("s", "m0")}; self.kind = "vm"; self.data = {"dma"}
            elif "_load" in op:
                self.defs = R[0]; self.uses = U(R[1:])
            elif "_atomic" in op:
                self.uses = U(R)
                if "sc0" in allmods: self.defs = R[0]
                if op.startswith("global_") and "sc0" in allmods: self.uses = U(R[1:])
            else:
                self.uses = U(R)
                d = R[0] if op.startswith("buffer_") else R[1]
                if "x3" in op or "x4" in op: self.wide = True; self.data = d
        elif op.startswith(("s_load", "s_buffer_load", "s_memtime", "s_memrealtime")):
            self.kind = "smem"; self.defs = R[0]; self.uses = U(R[1:])
        elif op.startswith("s_"):
            self.kind = "salu"
            if op.startswith(NODEF_S):
                self.uses = U(R)
                if op == "s_nop": self.states = int(ops[0], 0) + 1
                if "vcc" in op: self.uses |= {("s", "vcc")}
            else:
                self.defs = R[0]; self.uses = U(R[1:])
                if "saveexec" in op: self.defs |= {("s", "exec")}
                if op.startswith(("s_addk", "s_mulk", "s_cmov", "s_bitset")): self.uses |= R[0]
        else:
            raise ValueError("unknown instruction: " + text)

def isv(rs): return {r for r in rs if r[0] in "va"}
def iss(rs): return {r for r in rs if r[0] == "s"}

def need(p, c):
    n = 0
    if p.kind == "valu":
        pv, ps = isv(p.defs), iss(p.defs)
        if c.kind == "mfma" and pv & c.uses: n = max(n, 2)
        if c.kind == "valu":
            if p.op.startswith(TRANS) and pv & c.uses and not c.op.startswith(TRANS): n = max(n, 1)
            if p.op.startswith(TRANS) and pv & c.uses: n = max(n, 1)
            if (c.dpp or "permlane" in c.op) and pv & c.uses: n = max(n, 2)
            if c.op.startswith(("v_readlane", "v_readfirstlane")) and pv & c.uses: n = max(n, 1)
            if ps & c.uses: n = max(n, 4 if c.op.startswith(("v_readlane", "v_writelane", "v_div_fmas")) else 2)
            if ("s", "exec") in ps: n = max(n, 5)
        if p.op.startswith(TRANS) and c.kind in ("vm", "ds") and pv & c.uses: n = max(n, 1)
        if c.kind == "vm" and ps & c.uses: n = max(n, 5)
        if c.kind == "mfma" and ("s", "exec") in ps: n = max(n, 4)
    elif p.kind == "mfma":
        big = p.passes == 8
        if c.kind == "mfma":
            if p.defs & (c.A | c.B): n = max(n, 12 if big else 8)
            if p.defs & c.C and not (p.defs == c.C and p.passes == c.passes): n = max(n, 10 if big else 6)
            if p.defs & c.defs and not (p.defs == c.defs and p.passes == c.passes): n = max(n, 10 if big else 6)
        elif c.kind in ("valu", "vm", "ds"):
            if p.defs & (c.uses | c.defs): n = max(n, 12 if big else 8)
            if c.kind == "valu" and p.C & c.defs: n = max(n, 7 if big else 3)
    elif p.kind == "vm":
        if p.wide and p.data & c.defs: n = max(n, 2 if c.kind == "valu" else 1)
    elif p.kind == "salu":
        if ("s", "m0") in p.defs and (c.kind == "vm" and "dma" in c.data or c.op.startswith(("v_writelane", "v_readlane")) and ("s", "m0") in c.uses): n = max(n, 1)
    return n

class Pend:
    __slots__ = ("defs", "tags", "smem")
    def __init__(self, defs, tags, smem=False):
        self.defs, self.tags, self.smem = set(defs), set(tags), smem
    def key(self): return (frozenset(self.defs), frozenset(self.tags), self.smem)

class State:
    def __init__(self):
        self.vm = []; self.lg = []; self.hist = [[]]
    def copy(self):
        t = State()
        t.vm = [Pend(p.defs, p.tags, p.smem) for p in self.vm]
        t.lg = [Pend(p.defs, p.tags, p.smem) for p in self.lg]
        t.hist = [list(h) for h in self.hist]
        return t
    def key(self): return (tuple(p.key() for p in self.vm), tuple(p.key() for p in self.lg), tuple(sorted(tuple(i.text for i in h) for h in self.hist)))

def _mergeq(x, y):
    n = max(len(x), len(y)); out = []
    for i in range(n, 0, -1):
        d, t, sm = set(), set(), False
        for q in (x, y):
            if len(q) >= i:
                p = q[len(q) - i]; d |= p.defs; t |= p.tags; sm |= p.smem
        out.append(Pend(d, t, sm))
    sd, stg = set(), set()
    for p in reversed(out):
        p.defs -= sd; p.tags -= stg; sd |= p.defs; stg |= p.tags
    while len(out) > 1 and not (out[0].defs or out[0].tags or out[1].defs or out[1].tags):
        out[1].smem |= out[0].smem; del out[0]
    return out
def merge(*sts):
    r = sts[0].copy()
    for o in sts[1:]:
        r.vm = _mergeq(r.vm, o.vm); r.lg = _mergeq(r.lg, o.lg)
        seen = {tuple(i.text for i in h) for h in r.hist}
        for h in o.hist:
            k = tuple(i.text for i in h)
            if k not in seen: r.hist.append(list(h)); seen.add(k)
    return r

class Asm:
    def __init__(self):
        self.out = []; self.st = State(); self.n_nop = 0; self.n_ins = 0
    def raw(self, text): self.out.append(text)
    def label(self, name): self.out.append(name + ":")
    def comment(self, t): self.out.append("; " + t)
    def _push(self, ins):
        self.out.append(ins.text); self.n_ins += 1
        for h in self.st.hist:
            h.append(ins)
            tot = 0
            for k in range(len(h) - 1, -1, -1):
                tot += h[k].states
                if tot > 14: del h[:k]; break
        if len(self.st.hist) > 1:
            seen = {}; [seen.setdefault(tuple(i.text for i in h), h) for h in self.st.hist]
            self.st.hist = list(seen.values())
    def _wait(self, vm=None, lg=None):
        t = []
        if vm is not None and vm < len(self.st.vm):
            vm = min(vm, 63); t.append(f"vmcnt({vm})"); self.st.vm = self.st.vm[len(self.st.vm) - vm:] if vm else []
        if lg is not None and lg < len(self.st.lg):
            if any(p.smem for p in self.st.lg): lg = 0
            lg = min(lg, 15); t.append(f"lgkmcnt({lg})"); self.st.lg = self.st.lg[len(self.st.lg) - lg:] if lg else []
        if t: self._push(I("s_waitcnt " + " ".join(t)))
    @staticmethod
    def _cnt(q, pred):
        for k in range(len(q) - 1, -1, -1):
            if pred(q[k]): return len(q) - 1 - k
        return None
    def wait_vm(self, tag=None):
        self._wait(vm=0 if tag is None else self._cnt(self.st.vm, lambda p: tag in p.tags))
    def wait_lg(self, tag=None):
        self._wait(lg=0 if tag is None else self._cnt(self.st.lg, lambda p: tag in p.tags))
    def wait_all(self): self._wait(0, 0)
    def force_wait(self, text="vmcnt(0) lgkmcnt(0)"):
        self._push(I("s_waitcnt " + text))
        m = re.search(r"vmcnt\((\d+)\)", text)
        if m: n = int(m.group(1)); self.st.vm = self.st.vm[len(self.st.vm) - n:] if 0 < n < len(self.st.vm) else ([] if n == 0 else self.st.vm)
        m = re.search(r"lgkmcnt\((\d+)\)", text)
        if m: n = int(m.group(1)); self.st.lg = self.st.lg[len(self.st.lg) - n:] if 0 < n < len(self.st.lg) else ([] if n == 0 else self.st.lg)
    def wait_regs(self, tok):
        rs = regs_of(tok)
        self._wait(self._cnt(self.st.vm, lambda p: p.defs & rs), self._cnt(self.st.lg, lambda p: p.defs & rs))
    def prewait(self, text):
        ins = I(text); rs = ins.uses | ins.defs
        self._wait(self._cnt(self.st.vm, lambda p: p.defs & rs), self._cnt(self.st.lg, lambda p: p.defs & rs))
    def __call__(self, text, tag=None):
        for line in text.strip().split("\n"):
            line = line.strip()
            if not line or line.startswith(";"): continue
            if line.endswith(":"): self.label(line[:-1]); continue
            if line.startswith("."): self.raw(line); continue
            self.emit(line, tag)
    def emit(self, text, tag=None):
        if getattr(self, "skip", None) and re.search(self.skip, text): return
        ins = I(text)
        if ins.op == "s_waitcnt": return self.force_wait(text.split(None, 1)[1])
        touched = ins.uses | ins.defs
        vmn = self._cnt(self.st.vm, lambda p: p.defs & touched)
        if ins.kind == "vm" and vmn is not None and not any(p.defs & ins.uses for p in self.st.vm): vmn = None
        lgn = self._cnt(self.st.lg, lambda p: p.defs & touched)
        if ins.kind == "ds" and lgn is not None and not any(p.defs & ins.uses or p.smem for p in self.st.lg): lgn = None
        self._wait(vmn, lgn)
        pad = 0
        for h in self.st.hist:
            d = 0
            for p in reversed(h):
                pad = max(pad, need(p, ins) - d); d += p.states
        while pad > 0:
            k = min(pad, 16); self._push(I(f"s_nop {k-1}")); self.n_nop += k; pad -= k
        self._push(ins)
        tags = [tag] if tag else []
        if ins.kind in ("vm", "ds", "smem"):
            q = self.st.vm if ins.kind == "vm" else self.st.lg
            for p in q:
                p.tags -= set(tags); p.defs -= ins.defs
            q.append(Pend(ins.defs, tags, ins.kind == "smem"))
            while len(q) > 1 and not (q[0].defs or q[0].tags or q[1].defs or q[1].tags):
                q[1].smem |= q[0].smem; del q[0]
    def snap(self): return self.st.copy()
    def restore(self, st): self.st = st.copy()
    def join(self, *sts): self.st = merge(self.st, *sts)
    def loop(self, body):
        entry = self.snap(); mark = len(self.out); cnt = (self.n_nop, self.n_ins)
        cur = entry
        for _ in range(6):
            del self.out[mark:]; self.n_nop, self.n_ins = cnt
            self.restore(cur)
            back = body(self)
            nxt = merge(cur, back)
            if nxt.key() == cur.key(): return
            cur = nxt
        raise RuntimeError("loop state did not converge")
    def text(self): return "\n".join(self.out) + "\n"
```

```python
from asmgen import *
import lay

WS = "s[4:7]"
SA, SB, SC, SD = "s[8:11]", "s[12:15]", "s[16:19]", "s[20:23]"
TEAM, IDX, WAVE, TMO = "s24", "s25", "s26", "s27"
DBG = "s[28:29]"
KA = 64
P_X, P_MEM0, P_WQ, P_WK, P_WV, P_WO, P_SEG, P_BX, P_WG, P_WU, P_WD, P_C, P_WM, P_OUT, P_DBG, P_WS = range(16)
SIZES = {P_X: 2621440, P_MEM0: 10240, P_WQ: 5242880, P_WK: 5242880, P_WV: 5242880, P_WO: 5242880,
         P_WG: 640 * 1728 * 2, P_WU: 640 * 1728 * 2, P_WD: 640 * 1728 * 2, P_C: 1280, P_WM: 640 * 3840 * 2, P_OUT: 2621440}
OOB = 0x7FFFFFF0
TMO_MAX = 0x400000

def srd(A, base, p):
    A(f"""s_mov_b32 s{base}, s{KA+2*p}
s_mov_b32 s{base+1}, s{KA+2*p+1}
s_mov_b32 s{base+2}, {SIZES[p]}
s_mov_b32 s{base+3}, 0x20000""")

def lane(A, r):
    A(f"v_mbcnt_lo_u32_b32 v{r}, -1, 0\nv_mbcnt_hi_u32_b32 v{r}, -1, v{r}")

class Mode:
    def __init__(self, safe):
        self.safe = safe
        self.st = " sc1" if safe else ""
        self.sfx = "_s" if safe else "_f"
        self.arr = 32 if safe else 16

def tmo(A, fail):
    A(f"s_add_u32 {TMO}, {TMO}, 1\ns_cmp_gt_u32 {TMO}, {TMO_MAX}\ns_cbranch_scc1 {fail}")

def arrive(A, M, uid, t0, tag=None):
    A.wait_vm(tag)
    A(f"""s_barrier
s_cmp_lg_u32 {WAVE}, 0
s_cbranch_scc1 L_arr{uid}""")
    st = A.snap()
    A(f"""s_lshl_b32 s3, {TEAM}, 2
s_add_u32 s3, s3, {4*M.arr}
v_mov_b32 v{t0}, s3
v_mov_b32 v{t0+1}, 1
s_mov_b64 exec, 1
global_atomic_add v{t0}, v{t0+1}, {DBG} sc1
s_mov_b64 exec, -1
L_arr{uid}:""")
    A.join(st)

def census(A, M, uid, t0):
    lane(A, t0)
    A(f"v_lshlrev_b32 v{t0}, 2, v{t0}")
    A.wait_all()
    A(f"""L_cen{uid}:
global_load_dword v{t0+1}, v{t0}, {DBG} sc1""")
    tmo(A, "L_fail")
    A(f"""v_cmp_eq_u32 vcc, 32, v{t0+1}
s_lshr_b64 s[30:31], vcc, {M.arr}
s_and_b32 s30, s30, 0xff
s_cmp_eq_u32 s30, 0xff
s_cbranch_scc1 L_cenok{uid}""")
    if not M.safe:
        A(f"""v_cmp_lt_u32 vcc, 32, v{t0+1}
s_and_b32 s30, vcc_lo, 0x1ff
s_cmp_lg_u32 s30, 0
s_cbranch_scc1 L_restart_safe""")
    A(f"""s_sleep 8
s_branch L_cen{uid}
L_cenok{uid}:""")
```

```python
MB = 1 << 20
WS_BYTES = 256 * MB
REGION = 128 * MB
FLG_KV   = 0x0000
FLG_R    = 0x1000
FLG_MOD  = 0x2000
FLG_H    = 0x2400
FLG_T    = 0x3000
MOD      = 0x8000
R_AG     = 0x10000
R_EX     = 0x20000
R_RS     = 0x100000
R_RSS    = 0x40000
H        = 0x400000
KM_H, KM_S = 66 * 6144, 6144
KMVM     = 0x800000 + 6144
T_BASE   = 0x1800000
T_STRIDE = 0x400000
T_RS1, T_AG, T_RS2 = 0, 0x150000, 0x180000
QKV_H, QKV_S = 64 * 24576 + 20480, 24576
QKV      = 0x3000000
C_SCALE = (128 ** -0.5) * 1.4426950408889634
DBGOUT   = 0x7000000
```

```python
from common import *
import struct

IDXR, L16, LB2, XW, XR, RSA, GA, SP = range(8)
B0, B1, B2, B3, B4, B5, B6, B7 = (8 + 8 * i for i in range(8))
a0, a1, b0, b1, c0, c1, d0, d1 = B3, B3 + 4, B4, B4 + 4, B5, B5 + 4, B7, B7 + 4
STATIC0 = 72
MEM, KB, VB, XB, VMS, TILES = 0, 8192, 24576, 32768, 36864, 40960
OB = MEM + 4096
S_STEP, S_PH, S_PHM = 32, 33, 34
S_AGA, S_AG4, S_RMB, S_RM9 = 35, 36, 37, 38
S_AGW, S_AGZ, S_EXW, S_EXZ = 39, 40, 41, 42
S_RS = 43
S_GAT, S_GAT2 = 46, 47
S_KV, S_V, S_PUB, S_PUB2 = 48, 49, 50, 51
S_SLOT, S_OUTO, S_FKV, S_FR = 52, 53, 54, 55
S_CS, S_ONE, S_NEED, S_KM0 = 56, 57, 58, 59
S_AGL, S_EXO, S_EXR, S_RNG = 60, 61, 62, 63
S_SEL = 64
S_T = 76
ACC = {"k": (B0, B0 + 4), "q": (B1, B1 + 4), "v": (B2, B2 + 4)}
AGS, EXS = 5120, 16384

def f32bits(x): return struct.unpack("<I", struct.pack("<f", x))[0]

def p1_order():
    o = []
    for ks in range(5): o += [("k",ks,0),("k",ks,1),("q",ks,0),("q",ks,1),("v",ks,0),("v",ks,1)]
    for ks in (9, 5, 6): o += [("k",ks,0),("k",ks,1),("q",ks,0),("q",ks,1)]
    o += [("k",7,0),("k",8,0),("k",7,1),("k",8,1),("q",7,0),("q",8,0),("q",7,1),("q",8,1)]
    for ks in range(5, 10): o += [("v",ks,0),("v",ks,1)]
    return o
P4 = [("o", x, t) for x in (4, 0, 1, 2, 3) for t in range(2)]
WL = [P4[i] for i in (0, 1, 2, 3, 6, 7, 8, 9)]
PL = [("k", ks, 0) for ks in (0, 1, 2, 3, 4, 9)] + [("q", 5, 0)]
LDS_PAIRS = [WL[2 * i][:2] for i in range(4)]
LAND = {t: B7 for t in PL}
LAND.update({WL[0]: B0, WL[1]: B1, WL[2]: B7, WL[3]: B6, WL[4]: B0, WL[5]: B1, WL[6]: B7, WL[7]: B6})
SRC = {}
for i, t in enumerate(WL + PL): SRC[t] = ("lds", i)
_n = 0
for m in "qkvo":
    for ks in range(5 if m == "o" else 10):
        for t in range(2):
            if (m, ks, t) not in SRC:
                SRC[(m, ks, t)] = ("reg", STATIC0 + 8 * _n); _n += 1
assert STATIC0 + 8 * _n == 512, _n
def breg(tile): return ur(SRC[tile][1] if SRC[tile][0] == "reg" else LAND[tile], 8)

def prologue(A, M, O):
    u = M.sfx
    GQ, GO, TQ, TO, TA, W16, LN, T = range(8)
    srd(A, 8, P_WQ); srd(A, 12, P_WK); srd(A, 16, P_WV); srd(A, 20, P_WO)
    lane(A, LN)
    A(f"""s_lshl_b32 s32, {WAVE}, 6
s_lshl_b32 s3, {IDX}, 8
s_add_u32 s3, s3, s32
s_mul_i32 s33, {TEAM}, {320 * 8192}
s_sub_u32 s34, {320 * 8192}, s33
s_lshl_b32 s35, {WAVE}, 10
v_lshrrev_b32 v{T}, 2, v{LN}
v_and_b32 v{TA}, 3, v{LN}
v_lshlrev_b32 v{GQ}, 13, v{T}
v_lshl_add_u32 v{GQ}, v{TA}, 4, v{GQ}
v_add_u32 v{GQ}, s3, v{GQ}
s_mul_i32 s3, {IDX}, 163840
s_mul_i32 s30, {TEAM}, 640
s_add_u32 s3, s3, s30
v_mul_u32_u24 v{GO}, 1280, v{T}
v_lshl_add_u32 v{GO}, v{TA}, 4, v{GO}
v_add_u32 v{GO}, s3, v{GO}
s_and_b32 s37, s32, 64
s_lshr_b32 s30, {WAVE}, 1
s_mul_i32 s30, s30, {64 * 1280}
s_add_u32 s37, s37, s30
s_add_u32 s37, s37, 512""")
    pairs = [(m, ks) for m in "kqvo" for ks in range(5 if m == "o" else 10) if (m, ks) not in LDS_PAIRS]
    pairs = pairs[:-3] + LDS_PAIRS + pairs[-3:]
    NA = 7
    assert len(pairs) % NA == 0
    def dma(n):
        m, ks = pairs[n]
        for i in range(4):
            if m != "o": so = f"s_add_u32 s36, s{33 if ks < 5 else 34}, {(64 * (ks % 5) + 16 * i) * 8192}"
            elif ks < 4: so = f"s_add_u32 s36, s32, {(64 * (ks & 1) + 16 * i) * 1280 + (ks >> 1) * 256}"
            else: so = f"s_add_u32 s36, s37, {16 * i * 1280}"
            A(f"s_add_u32 m0, s35, {TILES + (n % NA) * 16384 + i * 4096}\n{so}")
            A(f"buffer_load_dwordx4 v{GO if m == 'o' else GQ}, {dict(q=SA, k=SB, v=SC, o=SD)[m]}, s36 offen{O.get('wnt', '')} lds", tag=f"p{n}")
    A(f"""v_bfe_u32 v8, v{LN}, 5, 1
v_bfe_u32 v9, v{LN}, 4, 1
v_bfe_u32 v10, v{LN}, 3, 1
v_bfe_u32 v11, v{LN}, 2, 1
s_min_u32 s41, {WAVE}, 1
s_lshr_b32 s38, {IDX}, s41
s_lshl_b32 s3, {WAVE}, 5
s_add_u32 s38, s38, s3
s_and_b32 s42, {IDX}, s41
s_mul_i32 s30, {TEAM}, {lay.R_RSS}
s_add_u32 s30, s30, {lay.R_RS}
s_lshl_b32 s{S_GAT}, s38, 12
s_add_u32 s{S_GAT}, s{S_GAT}, s30
s_lshl_b32 s3, s42, 6
s_add_u32 s{S_GAT}, s{S_GAT}, s3
s_add_u32 s{S_GAT2}, s{S_GAT}, 32768
s_lshr_b32 s39, s38, 2
s_lshl_b32 s{S_OUTO}, s39, 9
s_and_b32 s40, s38, 3
s_lshl_b32 s3, s40, 6
s_add_u32 s{S_OUTO}, s{S_OUTO}, s3
s_lshl_b32 s3, {WAVE}, 14
s_lshl_b32 s{S_FR}, {IDX}, 7
s_add_u32 s{S_RS}, s3, s{S_FR}
s_add_u32 s{S_RS}, s{S_RS}, s30
s_add_u32 s{S_RS+1}, s{S_RS}, 65536
s_add_u32 s{S_RS+2}, s{S_RS}, 131072
s_add_u32 s{S_FKV}, s{S_FR}, {lay.FLG_KV}
s_lshl_b32 s3, {TEAM}, 2
s_add_u32 s{S_FR}, s{S_FR}, s3
s_add_u32 s{S_FR}, s{S_FR}, {lay.FLG_R}
s_lshl_b32 s{S_AGL}, {TEAM}, 14
s_add_u32 s{S_AGL}, s{S_AGL}, {lay.R_AG}
s_mul_i32 s{S_EXO}, {TEAM}, {3 * EXS}
s_sub_u32 s{S_EXR}, {lay.R_EX + 3 * EXS}, s{S_EXO}
s_add_u32 s{S_EXO}, s{S_EXO}, {lay.R_EX}
v_lshrrev_b32 v12, 4, v{LN}
v_and_b32 v13, 15, v{LN}
v_lshlrev_b32 v14, 12, v12
v_lshl_add_u32 v14, v13, 3, v14
v_mov_b32 v16, 1
v_mov_b32 v17, 1
v_mov_b32 v18, 0""")
    for j in range(3): A(f"buffer_store_dwordx2 v[16:17], v14, {WS}, s{S_RS+j} offen{M.st}")
    A(f"buffer_store_dword v18, off, {WS}, s{S_FR} sc1")
    A(f"""s_mov_b32 s96, s{KA+2*P_MEM0}
s_mov_b32 s97, s{KA+2*P_MEM0+1}
s_mov_b32 s98, 10240
s_mov_b32 s99, 0x20000
s_mul_i32 s40, s40, 2560
s_lshl_b32 s39, s39, 6
s_add_u32 s39, s39, s40
s_mul_i32 s3, {TEAM}, 640
s_add_u32 s101, s39, s3
v_and_b32 v15, 1, v{LN}
v_bfe_u32 v20, v{LN}, 1, 1
v_lshlrev_b32 v23, 8, v20
v_lshl_add_u32 v23, v11, 5, v23
v_lshl_add_u32 v23, v15, 4, v23
s_xor_b32 s3, s41, 1
v_and_b32 v25, s3, v12
v_add_u32 v25, s42, v25
v_lshl_add_u32 v25, v25, 1, v8
v_lshl_add_u32 v23, v25, 2, v23
v_add_u32 v23, s{S_OUTO}, v23
v_mov_b32 v24, -1
s_cmp_ge_u32 s38, 40
s_cbranch_scc1 L_rinit{u}""")
    st0 = A.snap()
    for sl in range(3):
        A(f"s_add_u32 s3, s{S_AGL}, {sl * AGS}\nbuffer_store_dword v24, v23, {WS}, s3 offen{M.st}")
        for cl in range(2): A(f"s_add_u32 s3, s{S_EXO}, {sl * EXS + cl * 8192}\nbuffer_store_dword v24, v23, {WS}, s3 offen sc1")
    A.label(f"L_rinit{u}"); A.join(st0)
    A(f"buffer_store_dword v18, off, {WS}, s{S_FR} sc1", tag="init")
    for n in range(NA): dma(n)
    arrive(A, M, "r" + u, 16, "init")
    A(f"""v_lshlrev_b32 v{W16}, 4, v{LN}
v_add_u32 v{W16}, s35, v{W16}
v_lshlrev_b32 v{TA}, 3, v{TA}
v_add_u32 v{TA}, s35, v{TA}
v_lshl_add_u32 v{TQ}, v8, 12, v{TA}
v_lshl_add_u32 v{TQ}, v9, 9, v{TQ}
v_lshl_add_u32 v{TQ}, v11, 7, v{TQ}
v_lshl_add_u32 v{TQ}, v10, 6, v{TQ}
v_lshl_add_u32 v{TO}, v9, 12, v{TA}
v_lshl_add_u32 v{TO}, v10, 5, v{TO}
v_lshl_add_u32 v{TO}, v8, 8, v{TO}
v_lshl_add_u32 v{TO}, v11, 6, v{TO}""")
    held = {}
    for n, (m, ks) in enumerate(pairs):
        A.wait_vm(f"p{n}")
        A(f"v_add_u32 v{TA}, {TILES + (n % NA) * 16384}, v{TO if m == 'o' else TQ}")
        dst = []
        for t in range(2):
            kind, w = SRC[(m, ks, t)]
            if kind == "reg": d = w
            elif 8 <= w < 14: d = B2 + 8 * (w - 8); held[w] = d
            else: d = B0 + 8 * t
            dst.append(d)
            for qd in range(4):
                off = (qd >> 1) * 512 + (qd & 1) * 128 + 8192 * t if m == "o" else (qd >> 1) * 8192 + (qd & 1) * 256 + 32 * t
                A(f"ds_read_b64_tr_b16 {ur(d + 2 * qd, 2)}, v{TA} offset:{off}")
        A.wait_lg()
        if n + NA < len(pairs): dma(n + NA)
        for t in range(2):
            kind, w = SRC[(m, ks, t)]
            if kind == "lds" and w not in held:
                A(f"v_add_u32 v{T}, {TILES + w * 8192}, v{W16}")
                for hf in range(2): A(f"ds_write_b128 v{T}, {v(dst[t] + 4 * hf, 4)} offset:{4096 * hf}")
    for w, d in held.items():
        A(f"v_add_u32 v{T}, {TILES + w * 8192}, v{W16}")
        for hf in range(2): A(f"ds_write_b128 v{T}, {v(d + 4 * hf, 4)} offset:{4096 * hf}")
    A.wait_all()
    A(f"""v_mov_b32 v8, v{LN}
v_lshrrev_b32 v9, 4, v8
v_and_b32 v10, 15, v8
v_lshlrev_b32 v{L16}, 4, v8
v_add_u32 v{LB2}, 0x10000, v{L16}
v_lshrrev_b32 v11, 5, v8
v_lshlrev_b32 v11, 6, v11
v_lshlrev_b32 v12, 3, v10
v_xor_b32 v11, v11, v12
v_lshl_add_u32 v{XW}, v9, 7, v11
v_lshrrev_b32 v11, 2, v8
v_lshlrev_b32 v11, 3, v11
v_bfe_u32 v13, v8, 1, 1
v_lshlrev_b32 v14, 6, v13
v_xor_b32 v11, v11, v14
v_and_b32 v14, 3, v8
v_lshl_add_u32 v{XR}, v14, 7, v11
v_lshl_add_u32 v{RSA}, v9, 12, v12
v_lshrrev_b32 v{GA}, 2, v8
v_lshlrev_b32 v{GA}, 7, v{GA}
v_lshl_add_u32 v{GA}, v14, 4, v{GA}
v_and_b32 v15, 1, v8
v_mul_u32_u24 v{IDXR}, 0xaaaa, v13
v_add_u32 v{IDXR}, 0x4444, v{IDXR}
v_bfe_u32 v11, v8, 2, 1
v_lshlrev_b32 v{SP}, 8, v13
v_lshl_add_u32 v{SP}, v11, 5, v{SP}
v_lshl_add_u32 v{SP}, v15, 4, v{SP}
s_xor_b32 s3, s41, 1
v_and_b32 v25, s3, v9
v_add_u32 v25, s42, v25
v_lshrrev_b32 v26, 5, v8
v_lshl_add_u32 v25, v25, 1, v26
v_lshl_add_u32 v{SP}, v25, 2, v{SP}
v_add_u32 v{SP}, s{S_OUTO}, v{SP}
v_mul_u32_u24 v19, 1280, v15
v_lshl_add_u32 v19, v13, 5, v19
v_lshl_add_u32 v19, v25, 3, v19
v_lshl_add_u32 v19, v11, 1, v19
s_mov_b32 s100, s38
buffer_load_ushort v21, v19, s[96:99], s101 offen
buffer_load_ushort v22, v19, s[96:99], s101 offen offset:4""")
    for j in range(4):
        mk = sum(3 << (8 * b + 2 * j) for b in range(4))
        A(f"s_mov_b32 s{S_SEL+2*j}, {mk}\ns_mov_b32 s{S_SEL+2*j+1}, {mk}")
    A(f"""s_mov_b32 s{S_CS}, {f32bits(lay.C_SCALE)}
s_mov_b32 s{S_ONE}, 0x3f80
s_mov_b32 s{S_RNG}, {120 << 23}
s_mov_b32 s{S_STEP}, 0
s_mov_b32 s{S_PH}, 0
s_mov_b32 s{S_PHM}, 0
s_mov_b32 s{S_SLOT}, 0
s_mul_i32 s{S_KV}, {IDX}, {lay.QKV_H}
s_lshl_b32 s3, {WAVE}, 11
s_add_u32 s{S_KV}, s{S_KV}, s3
s_add_u32 s{S_KV}, s{S_KV}, {lay.QKV}
s_add_u32 s{S_V}, s{S_KV}, 8192
s_add_u32 s{S_KM0}, s3, {KB}
s_mul_i32 s{S_PUB}, {IDX}, {lay.KM_H}
s_add_u32 s{S_PUB}, s{S_PUB}, {lay.KMVM - lay.KM_S}
s_add_u32 s{S_PUB2}, s{S_PUB}, 4096
s_cmp_eq_u32 {TEAM}, 0
s_cselect_b32 s30, 0, 0x40000000
s_cselect_b32 s31, 0x40000000, 0
s_add_u32 s{S_PUB}, s{S_PUB}, s30
s_add_u32 s{S_PUB2}, s{S_PUB2}, s31
v_lshl_or_b32 v21, v22, 16, v21
v_min_u32 v21, -2, v21""")
    census(A, M, "r" + u, 8)
    A(f"""v_bfe_u32 v8, v{L16}, 2, 5
L_rkv{u}:
buffer_load_dword v9, v8, {WS}, s{S_FKV} offen sc1""")
    tmo(A, "L_fail")
    A(f"""v_cmp_gt_u32 vcc, 2, v9
s_cbranch_vccz L_rkvok{u}
s_sleep 4
s_branch L_rkv{u}
L_rkvok{u}:""")
    if "cls" in O: A(f"s_mov_b32 s30, {O['cls'] * 8192}")
    else: read_class(A, M, "r" + u, 8)
    A(f"""s_add_u32 s{S_EXO}, s{S_EXO}, s30
s_add_u32 s{S_EXR}, s{S_EXR}, s30
s_lshl_b32 s3, {WAVE}, 10
s_add_u32 s{S_AGA}, s{S_AGL}, s3
s_add_u32 s{S_AG4}, s{S_AGL}, 4096
s_add_u32 s{S_RMB}, s{S_EXR}, s3
s_add_u32 s{S_RM9}, s{S_EXR}, 4096
s_add_u32 s{S_EXZ}, s{S_EXO}, {2 * EXS}
s_mov_b32 m0, s{S_KM0}
s_xor_b32 s{S_KM0}, s{S_KM0}, {KB ^ (KB + 8192)}
buffer_load_dwordx4 v{L16}, {WS}, s{S_KV} offen sc1 lds
buffer_load_dwordx4 v{L16}, {WS}, s{S_KV} offen offset:1024 sc1 lds
s_lshl_b32 s3, {WAVE}, 11
s_add_u32 m0, s3, {VB}
s_add_u32 s{S_KV}, s{S_KV}, {lay.QKV_S}
buffer_load_dwordx4 v{L16}, {WS}, s{S_V} offen sc1 lds
buffer_load_dwordx4 v{L16}, {WS}, s{S_V} offen offset:1024 sc1 lds
s_add_u32 s{S_V}, s{S_V}, {lay.QKV_S}
s_cmp_ge_u32 s100, 40
s_cbranch_scc1 L_rm0{u}
buffer_store_dword v21, v{SP}, {WS}, s{S_AGL} offen{M.st}
buffer_store_dword v21, v{SP}, {WS}, s{S_EXO} offen sc1
L_rm0{u}:""")
    A.force_wait()

def lds_tile(A, W, tile, hi=False):
    w = SRC[tile][1]; d = LAND[tile]
    for hf in range(2):
        o = TILES + w * 8192 + hf * 4096 + W * 1024
        base = L16 if o < 65536 else LB2
        assert o < 65536 or (o >> 16) == (2 if hi else 1), (tile, o, hi)
        A(f"ds_read_b128 {v(d + 4 * hf, 4)}, v{base} offset:{o & 0xffff}")
def zero(A, r, n):
    for i in range(0, n, 2): A(f"v_mov_b64 {v(r + i, 2)}, 0")
def delay(A, cyc):
    d = cyc // 4
    while d > 0: A(f"s_nop {min(d, 16) - 1}"); d -= 16

class Stamps:
    def __init__(self, names): self.names = names or []
    def __call__(self, A, name):
        if name in self.names:
            i = self.names.index(name); A.raw(f"s_memtime s[{S_T + 2 * i}:{S_T + 2 * i + 1}]")

def step(A, M, W, red, O):
    u = f"{W}{red}{M.sfx}"
    stamp = Stamps(O.get("stamp"))
    NST = 6
    side = []
    ld = lambda r, so: f"buffer_load_dwordx4 {v(r, 4)}, v{L16}, {WS}, s{so} offen sc1"
    chk = lambda r, t: [f"v_max3_u32 v{t}, v{r}, v{r+1}, v{r+2}", f"v_max_u32 v{t}, v{t}, v{r+3}", f"v_cmp_eq_u32 vcc, -1, v{t}"]
    chk2 = [f"v_max3_u32 v{c1}, v{b1}, v{b1+1}, v{b1+2}", f"v_max3_u32 v{c1}, v{c1}, v{b1+3}, v{c0}", f"v_max3_u32 v{c1}, v{c1}, v{c0+1}, v{c0+2}",
            f"v_max_u32 v{c1}, v{c1}, v{c0+3}", f"v_cmp_eq_u32 vcc, -1, v{c1}"]
    def gather(A, regs):
        for i in range(4):
            so, off = (S_GAT, 1024 * i) if red == 1 else (S_GAT2 if i >> 1 else S_GAT, 2048 * (i & 1))
            A(f"buffer_load_dwordx4 {v(regs[i], 4)}, v{L16 if red == 1 else GA}, {WS}, s{so} offen offset:{off} sc1")
    def frag(A, j, r): A(f"ds_read_b128 {v(r, 4)}, v{L16} offset:{MEM + j * 1024}")
    def xread(A, ks):
        for hf in range(2): A(f"ds_read_b64_tr_b16 {v(B0 + 4 * ks + 2 * hf, 2)}, v{XR} offset:{XB + (4 * hf + ks) * 512}")
    KR = LB2
    def kfrag(A, xt, ks, r): A(f"ds_read_b128 {v(r, 4)}, v{KR} offset:{(xt * 4 + ks) * 1024}")
    def prep(A):
        for hf in range(2): A(f"ds_read_b128 {v(B6 + 4 * hf, 4)}, v{L16} offset:{VB + (2 * W + hf) * 1024}")
        lds_tile(A, W, PL[0])
        zero(A, B0, 24)
    cv = lambda d, r: f"v_cvt_pk_bf16_f32 v{d}, v{r}, v{r + 1}"
    mf = lambda d, x, y, first: f"v_mfma_f32_16x16x32_bf16 {v(d, 4)}, {v(x, 4)}, {v(y, 4)}, {'0' if first else v(d, 4)}"
    m16 = lambda d, x, y, first: f"v_mfma_f32_16x16x16_bf16 {v(d, 4)}, {v(x, 2)}, {v(y, 2)}, {'0' if first else v(d, 4)}"
    ex = lambda r: f"v_exp_f32 v{r}, v{r}"
    Sm, S0, S1, PX, LL, O0, O1, OP = c1, c0, a0, a1, c1, b1, b0, c0
    def owrite(A, tag=None):
        A(f"""v_rcp_f32 v{LL}, v{LL}
v_rcp_f32 v{LL+1}, v{LL+1}
v_pk_mul_f32 {v(O0, 2)}, {v(O0, 2)}, {v(LL, 2)}
v_pk_mul_f32 {v(O1, 2)}, {v(O1, 2)}, {v(LL, 2)}""")
        A(cv(OP, O0)); A(cv(OP + 1, O0))
        A(f"ds_write_b64 v{XW}, {v(OP, 2)} offset:{OB + W * 512}")
        A(cv(OP + 2, O1)); A(cv(OP + 3, O1))
        A(f"ds_write_b64 v{XW}, {v(OP + 2, 2)} offset:{OB + (4 + W) * 512}", tag=tag)
    def truemax(A):
        t, t2 = Sm, Sm + 1
        A(f"""v_max3_f32 v{t}, v{Sm+2}, v{Sm+3}, v{S0}
v_max3_f32 v{t}, v{t}, v{S0+1}, v{S0+2}
v_max3_f32 v{t}, v{t}, v{S0+3}, v{S1}
v_max3_f32 v{t}, v{t}, v{S1+1}, v{S1+2}
v_max_f32 v{t}, v{t}, v{S1+3}
v_mov_b32 v{t2}, v{t}
v_permlane32_swap_b32 v{t}, v{t2}
v_max_f32 v{t}, v{t}, v{t2}
v_mov_b32 v{t2}, v{t}
v_permlane16_swap_b32 v{t}, v{t2}
v_max_f32 v{t}, v{t}, v{t2}""")
        vals = [Sm + 2, Sm + 3] + [S0 + i for i in range(4)] + [S1 + i for i in range(4)]
        for r in vals: A(f"v_sub_f32 v{r}, v{r}, v{t}")
        for r in vals: A(ex(r))
        A(cv(B2 + 4, Sm + 2)); A(cv(B2 + 7, Sm + 2))
        A(cv(PX, S0)); A(cv(PX + 1, S0 + 2)); A(cv(PX + 2, S1)); A(cv(PX + 3, S1 + 2))
        A(m16(LL, B2 + 4, B2 + 2, True)); A(m16(O0, B2 + 4, B2, True)); A(m16(O1, B2 + 6, B2, True))
        A(m16(LL, PX, B2 + 2, False)); A(m16(LL, PX + 2, B2 + 2, False))
        A(mf(O0, PX, B6, False)); A(mf(O1, PX, B6 + 4, False))
    SEL, RA, T1 = B2, B2 + 4, B3
    g2 = O.get("g2", [60, 200])[red - 1]
    G1 = [B0, B0 + 4, B1, B1 + 4]; G2 = [B7, B7 + 4, B6, B6 + 4]
    def reduce(A, regs):
        for i, r in enumerate(regs):
            A(f"v_mfma_f32_16x16x32_bf16 {v(RA, 4)}, {v(r, 4)}, {v(SEL, 4)}, {'0' if i == 0 else v(RA, 4)}")
            A(f"v_bitop3_b32 v{T1 + min(i, 1)}, v{r}, v{r + 2}, s{S_PHM} bitop3:0x7e")
            if 0 < i < len(regs) - 1: A(f"v_or_b32 v{T1}, v{T1}, v{T1+1}")
        A(f"""v_bitop3_b32 v{T1}, v{T1}, v{T1+1}, 1 bitop3:0xa8
v_cmp_ne_u32 vcc, 0, v{T1}
v_permlane32_swap_b32 v{RA}, v{RA+2}
v_permlane32_swap_b32 v{RA+1}, v{RA+3}
v_pk_add_f32 {v(RA, 2)}, {v(RA, 2)}, {v(RA + 2, 2)}""")
        if red == 2:
            A(f"""v_mov_b64 {v(RA + 2, 2)}, {v(RA, 2)}
v_permlane16_swap_b32 v{RA}, v{RA+2}
v_permlane16_swap_b32 v{RA+1}, v{RA+3}
v_pk_add_f32 {v(RA, 2)}, {v(RA, 2)}, {v(RA + 2, 2)}""")
        A(cv(RA, RA))
        A(f"v_min_u32 v{RA}, -2, v{RA}")
    gexit = []
    if red:
        keep = (list(A.out), A.snap(), A.n_nop, A.n_ins)
        for regs in (G1, G2):
            A.force_wait(); gather(A, regs); A("s_nop 7"); gexit.append(A.snap())
        A.out[:] = keep[0]; A.restore(keep[1]); A.n_nop, A.n_ins = keep[2:]
    if O.get("stamp"):
        for i in range(NST): stamp(A, O["stamp"][i])
        for i in range(88, 100): A(f"s_mov_b32 s{i}, 0")
    ex_at = O.get("exat", -1)
    if red and ex_at >= 0: A(f"v_mov_b32 v{RA}, v21\ns_mov_b32 s{S_EXW}, s{S_EXO}")
    sets = [b0, b1, c0, c1][:O.get("ns", 2)]
    aexit = []
    keep = (list(A.out), A.snap(), A.n_nop, A.n_ins)
    for r in sets:
        A.force_wait(); A(ld(r, S_AGA)); A(f"ds_write_b128 v{L16}, {v(a0, 4)}"); A("s_nop 7"); aexit.append(A.snap())
    A.out[:] = keep[0]; A.restore(keep[1]); A.n_nop, A.n_ins = keep[2:]
    A.skip = O.get("skip")

    def body(A):
        side.clear()
        A.raw(".p2align 4")
        A.label(f"L_step{u}")
        for i, r in enumerate(sets):
            A(ld(r, S_AGA))
            if red and i == ex_at:
                delay(A, 16); A(f"buffer_store_dword v{RA}, v{SP}, {WS}, s{S_EXW} offen sc1")
            if i < len(sets) - 1: delay(A, O.get("gap", 76))
        prep(A)
        if O.get("touch") is not None and W == 2:
            A(f"v_lshlrev_b32 v{c1}, 3, v{L16}\nv_min_u32 v{c1}, 5116, v{c1}\ns_sub_u32 s3, s{S_RM9}, 4096"); delay(A, O["touch"])
            A(f"buffer_load_dword v{c1}, v{c1}, {WS}, s3 offen sc1")
        def acheck(A, r):
            A(f"ds_write_b128 v{L16}, {v(r, 4)} offset:{MEM + W * 1024}")
            for x in chk(r, a0): A(x)
        acheck(A, sets[0])
        A(f"s_cbranch_vccnz L_aretry{u}"); side.append(("a", A.snap()))
        A.label(f"L_aback{u}")
        A.join(*aexit)
        A(ld(b0, S_AG4))
        rb = O.get("rb", -1)
        if rb == -2: A(ld(b1, S_RMB)); A(ld(c0, S_RM9))
        A.wait_lg()
        stamp(A, "A"); A("s_barrier"); stamp(A, "A2")
        frag(A, 0, a0)
        if rb == -1: A(ld(b1, S_RMB)); A(ld(c0, S_RM9))
        frag(A, 1, a1)
        order = p1_order()
        fb = {0: a0, 1: a1, 2: a0, 3: a1, 4: b0, 5: a0, 6: a1, 7: b1, 8: b0, 9: c0}
        N = {i: [] for i in range(90)}; V = {i: [] for i in range(90)}
        L = lambda t, hi=False: (lambda: lds_tile(A, W, t, hi))
        if rb >= 0: N[rb] += [ld(b1, S_RMB), ld(c0, S_RM9)]
        for i in range(1, 7): N[6 * (i - 1)] += [L(PL[i], i >= 3)]
        V[7] += [f"v_add_u32 v{LB2}, 0x10000, v{LB2}"]
        N[5] += [lambda: frag(A, 2, a0)]
        N[11] += [lambda: frag(A, 3, a1)]
        def branch(kind):
            def f():
                A(f"s_cbranch_vccnz L_{kind}retry{u}"); side.append((kind, A.snap())); A.label(f"L_{kind}back{u}")
            return f
        for i, x in enumerate(chk(b0, c1)): V[13 + i] += [x]
        N[17] += [branch("f")]
        bp = O.get("bpos", 23)
        N[bp] += [lambda: A(f"ds_write_b128 v{L16}, {v(b1, 4)} offset:{MEM + (4 + W) * 1024}", tag="bw")]
        for i, x in enumerate(chk2): V[bp + min(i, 3)] += [x]
        N[bp + 5] = [branch("b")] + N[bp + 5]
        N[bp + 6] += [lambda: A.wait_lg("bw"), "s_barrier", lambda: frag(A, 4, a0)]
        N[31] += [lambda: frag(A, 5, a1), lambda: frag(A, 6, b1)]
        N[33] += [lambda: frag(A, 7, b0)]
        kvnt = O.get("kvnt", "")
        N[8] += [f"s_mov_b32 m0, s{S_KM0}", f"s_xor_b32 s{S_KM0}, s{S_KM0}, {KB ^ (KB + 8192)}"]
        N[34] += [f"buffer_load_dwordx4 v{L16}, {WS}, s{S_KV} offen sc1{kvnt} lds", f"buffer_load_dwordx4 v{L16}, {WS}, s{S_KV} offen offset:1024 sc1{kvnt} lds",
                  f"s_mov_b32 m0, {VB + W * 2048}"]
        N[35] += [f"buffer_load_dwordx4 v{L16}, {WS}, s{S_V} offen sc1{kvnt} lds"]
        N[39] += [f"buffer_load_dwordx4 v{L16}, {WS}, s{S_V} offen offset:1024 sc1{kvnt} lds"]
        N[32] += [f"ds_read_b64_tr_b16 {v(c1, 2)}, v{XR} offset:{XB + W * 512}", f"ds_read_b64_tr_b16 {v(c1 + 2, 2)}, v{XR} offset:{XB + (4 + W) * 512}"]
        N[36] += [f"ds_read_b64 {v(d0, 2)}, v{XW} offset:{VMS + W * 512}"]
        N[40 + (W & 1)] += [f"buffer_store_dwordx4 {v(c1, 4)}, v{L16}, {WS}, s{S_PUB} offen offset:{W * 1024} sc1"]
        N[42] += [f"buffer_store_dwordx2 {v(d0, 2)}, v{XW}, {WS}, s{S_PUB2} offen offset:{W * 512} sc1"]
        if red:
            V[37] += [f"v_mov_b32 v{d1}, -1"]
            N[38] += [f"buffer_store_dword v{d1}, v{SP}, {WS}, s{S_EXZ} offen sc1"]
        if W == 2:
            N[37] += [f"s_sub_u32 s3, s{S_STEP}, 1\ns_max_i32 s3, s3, 0"]
            V[37] += [f"v_mov_b32 v{SP}, s3"]
            N[38] += [f"buffer_store_dword v{SP}, off, {WS}, s{S_FR} sc1"]
        if W == 3:
            V[37] += [f"v_bfe_u32 v{SP}, v{L16}, 2, 5"]
            N[38] += [f"buffer_load_dword v{SP}, v{SP}, {WS}, s{S_FKV} offen sc1"]
        N[1] += [f"s_mul_i32 s3, s{S_SLOT}, {AGS}\ns_add_u32 s{S_AGZ}, s{S_AGL}, s3\ns_lshl_b32 s30, s{S_SLOT}, 14"]
        N[2] += [f"s_add_u32 s{S_SLOT}, s{S_SLOT}, 1\ns_cmp_eq_u32 s{S_SLOT}, 3\ns_cselect_b32 s{S_SLOT}, 0, s{S_SLOT}"]
        N[3] += [f"s_mul_i32 s3, s{S_SLOT}, {AGS}\ns_add_u32 s{S_AGW}, s{S_AGL}, s3\ns_lshl_b32 s31, s{S_SLOT}, 14"]
        N[4] += [f"s_add_u32 s{S_EXW}, s{S_EXO}, s31\ns_add_u32 s31, s31, s{S_EXR}\ns_add_u32 s{S_AGA}, s{S_AGW}, {W * 1024}"]
        N[43] += [f"s_add_u32 s{S_AG4}, s{S_AGW}, 4096\ns_add_u32 s{S_RMB}, s31, {W * 1024}\ns_add_u32 s{S_RM9}, s31, 4096"]
        N[44] += [f"s_add_u32 s{S_EXZ}, s{S_EXO}, s30\ns_add_u32 s{S_KV}, s{S_KV}, {lay.QKV_S}\ns_add_u32 s{S_V}, s{S_V}, {lay.QKV_S}"]
        N[45] += [f"s_add_u32 s{S_PUB}, s{S_PUB}, {lay.KM_S}\ns_add_u32 s{S_PUB2}, s{S_PUB2}, {lay.KM_S}"]
        N[52] += [f"s_sub_u32 s3, s{S_KM0}, {W * 2048}"]
        N[46] += [f"s_add_u32 s{S_NEED}, s{S_STEP}, 3\ns_min_u32 s{S_NEED}, s{S_NEED}, 64"]
        V[52] += [f"v_add_u32 v{KR}, s3, v{L16}"]
        k0, k1 = ACC["k"]; q0, q1 = ACC["q"]; v0_, v1_ = ACC["v"]
        ad = lambda r, i: f"v_add_f32 v{r + i}, v{r + i}, v{r + i + 2}"
        mu = lambda r, i: f"v_mul_f32 v{r + i}, s{S_CS}, v{r + i}"
        V[45] += [ad(k0, 0)]
        V[46] += [ad(k0, 1), mu(k0, 0)]
        V[47] += [mu(k0, 1), ad(k1, 0)]
        V[48] += [ad(k1, 1), cv(c1 + 1, k0), mu(k1, 0)]
        V[49] += [mu(k1, 1), ad(q0, 0), ad(q0, 1)]
        V[50] += [cv(c1, q0), cv(c1 + 3, k1)]
        N[51] += [f"ds_write_b64 v{XW}, {v(c1, 2)} offset:{XB + W * 512}"]
        V[51] += [ad(q1, 0), ad(q1, 1), cv(c1 + 2, q1), lambda: A(f"ds_write_b64 v{XW}, {v(c1 + 2, 2)} offset:{XB + (4 + W) * 512}", tag="xw")]
        xb = O.get("xb", 55)
        N[xb] += [lambda: [A.wait_lg("xw"), stamp(A, "X"), A("s_barrier"), stamp(A, "X2"), xread(A, 0)]]
        N[xb + 1] += [lambda: [xread(A, 1)]]
        N[xb + 2] += [lambda: [xread(A, 2)]]
        N[xb + 3] += [lambda: [xread(A, 3)]]
        N[53] += [lambda: kfrag(A, 0, 0, d0), lambda: kfrag(A, 0, 1, d1)]
        N[59] += [lambda: kfrag(A, 0, 2, a0), lambda: kfrag(A, 0, 3, a1)]
        N[60] += [lambda: kfrag(A, 1, 0, b1)]
        N[61] += [lambda: kfrag(A, 1, 1, b0)]
        fast = O.get("fast", 1)
        V[62] += [ad(v0_, 0), ad(v0_, 1)]
        V[63] += [ad(v1_, 0), ad(v1_, 1)]
        N[64] += [lambda: kfrag(A, 1, 2, d0)]
        V[64] += [cv(B2, v0_), cv(B2 + 1, v1_)]
        N[65] += [lambda: kfrag(A, 1, 3, d1)]
        V[65] += [f"v_mov_b32 v{B2 + 2}, 0x3f803f80", f"v_mov_b32 v{B2 + 3}, 0x3f803f80"]
        N[66] += [f"ds_write_b64 v{XW}, {v(B2, 2)} offset:{VMS + W * 512}"]
        N[67] += [f"s_cmp_eq_u32 s{S_STEP}, 63"]
        N[68] += [lambda: [A(f"s_cbranch_scc1 L_last{u}"), side.append(("l", A.snap()))]]
        V[69] += [f"v_mov_b32 v{B2 + 5}, 0", f"v_mov_b32 v{B2 + 6}, 0"]
        if fast:
            V[66] += [ex(Sm + 2)]; V[67] += [ex(Sm + 3)]; V[68] += [cv(B2 + 4, Sm + 2), cv(B2 + 7, Sm + 2)]
            V[70] += [ex(S0)]; V[71] += [ex(S0 + 1)]; V[72] += [ex(S0 + 2)]; V[73] += [ex(S0 + 3)]
            V[74] += [ex(S1), cv(PX, S0), cv(PX + 1, S0 + 2), ex(S1 + 1), ex(S1 + 2)]
            V[75] += [ex(S1 + 3), cv(PX + 2, S1), cv(PX + 3, S1 + 2)]
            N[72] += [lambda: A(f"ds_read_b128 {v(B0, 4)}, v{L16} offset:{TILES + W * 1024}")]
            N[73] += [lambda: A(f"ds_read_b128 {v(B0 + 4, 4)}, v{L16} offset:{TILES + 4096 + W * 1024}")]
            N[76] += [L(WL[1])]; N[77] += [L(WL[2])]
        seq = [f"v_smfmac_f32_16x16x64_bf16 {v(ACC[m][t], 4)}, {v(fb[ks], 4)}, {breg((m, ks, t))}, v{IDXR}" for m, ks, t in order]
        seq += [mf(Sm, B0 + 4 * ks, B0 + 4 * ks, ks == 0) for ks in range(4)]
        seq += [mf(S0, r, B0 + 4 * ks, ks == 0) for ks, r in enumerate((d0, d1, a0, a1))]
        seq += [mf(S1, r, B0 + 4 * ks, ks == 0) for ks, r in enumerate((b1, b0, d0, d1))]
        if fast:
            seq += [m16(LL, B2 + 4, B2 + 2, True), m16(O0, B2 + 4, B2, True), m16(O1, B2 + 6, B2, True), m16(LL, PX, B2 + 2, False),
                    m16(LL, PX + 2, B2 + 2, False), mf(O0, PX, B6, False), mf(O1, PX, B6 + 4, False)]
        def run(seq, N, V, pfx, tail=0):
            for i in range(len(seq) + tail):
                if i < len(seq): A(seq[i])
                for x in N[i]: x() if callable(x) else A(x)
                if V[i] and i + 1 < len(seq): A.prewait(seq[i + 1])
                for x in V[i]: x() if callable(x) else A(x)
                stamp(A, f"{pfx}{i}")
        run(seq, N, V, "p")
        if not fast:
            for t in WL[:3]: lds_tile(A, W, t)
            truemax(A)
        A(f"v_add_u32 v{LB2}, 0x10000, v{L16}")
        owrite(A, "ow")
        if fast:
            A(f"""v_subrev_u32 v{LL}, {67 << 23}, v{LL}
v_subrev_u32 v{LL+1}, {67 << 23}, v{LL+1}
v_max_u32 v{LL}, v{LL}, v{LL+1}
v_cmp_le_u32 vcc, s{S_RNG}, v{LL}""")
        zero(A, B4, 8); zero(A, c1, 4)
        if fast: branch("s")()
        lds_tile(A, W, WL[3])
        A.wait_lg("ow"); stamp(A, "O"); A("s_barrier"); stamp(A, "O2")
        OA = [B2, B2 + 4, B3, B3 + 4]
        for kk in (0, 1, 2, 3) if W < 2 else (2, 3, 0, 1):
            for hf in range(2): A(f"ds_read_b64_tr_b16 {v(OA[kk] + 2 * hf, 2)}, v{XR} offset:{OB + (4 * hf + kk) * 512}")
        acc = [b0, b1, c1]
        N = {i: [] for i in range(30)}; V = {i: [] for i in range(30)}
        for i in range(4): N[i] += [L(WL[4 + i])]
        rs = lambda g: (lambda: A(f"buffer_store_dwordx2 {v(acc[g], 2)}, v{RSA}, {WS}, s{S_RS + g} offen{M.st}", tag=f"rs{g}"))
        tg = lambda g: f"v_and_or_b32 v{acc[g]}, v{acc[g]}, -2, s{S_PH}"
        V[3] += [cv(c1, c1)]; V[4] += [cv(c1 + 1, c1 + 2), tg(2)]; N[5] += [rs(2), "s_nop 0"]
        N[6] += ["s_nop 1"]
        V[7] += [cv(b0, b0)]; V[8] += [cv(b0 + 1, b0 + 2), tg(0)]; N[9] += [rs(0)]
        V[9] += [cv(b1, b1), cv(b1 + 1, b1 + 2), tg(1), rs(1)]
        seq = [f"v_smfmac_f32_16x16x64_bf16 {v(acc[x >> 1], 4)}, {v(OA[2 * (x & 1 if x < 4 else W >> 1) + t], 4)}, {breg((m, x, t))}, v{IDXR}" for m, x, t in P4]
        run(seq, N, V, "w")
        stamp(A, "T0")
        trc = 0
        if O.get("stamp"):
            trc = 108
            A.force_wait("lgkmcnt(0)")
            A(f"s_cmp_ge_u32 s{S_STEP}, 4\ns_cselect_b32 s72, -1, 0")
            for i in range(NST - 1): A(f"s_sub_u32 s3, s{S_T + 2*i + 2}, s{S_T + 2*i}\ns_and_b32 s3, s3, s72\ns_add_u32 s{88 + i}, s{88 + i}, s3")
            A(f"s_cmp_eq_u32 s{S_STEP}, 4\ns_cmov_b32 s93, s{S_T}\ns_cmov_b32 s73, {TMO}\ns_cmp_eq_u32 s{S_STEP}, {O.get('snap', 30)}")
            for i in range(NST): A(f"s_cmov_b32 s{94 + i}, s{S_T + 2*i}")
        A(f"s_xor_b32 s{S_PH}, s{S_PH}, 1\ns_add_u32 s{S_STEP}, s{S_STEP}, 1")
        if red:
            gd = O.get("gd", [220, 140, 20])
            if red == 1:
                A(f"s_cmp_lt_u32 {IDX}, 16\ns_cbranch_scc1 L_glo{u}"); delay(A, gd[2]); A.label(f"L_glo{u}")
                delay(A, gd[0] - gd[2] - 20 - trc)
            else: delay(A, gd[1] - trc)
            gather(A, G1); stamp(A, "G")
            A(f"""v_and_b32 v{T1}, 16, v{L16}
v_lshlrev_b32 v{T1}, v{T1}, s{S_ONE}""")
            for j in range(4): A(f"v_cndmask_b32 v{SEL + j}, 0, v{T1}, s[{S_SEL+2*j}:{S_SEL+2*j+1}]")
            A(f"v_mov_b32 v{T1+5}, -1")
            if g2 is not None:
                delay(A, g2); gather(A, G2)
            reduce(A, G1)
            A(f"s_cbranch_vccnz L_gretry{u}"); side.append(("g", A.snap()))
            A.label(f"L_gback{u}")
            if gexit: A.join(*gexit)
            A(f"buffer_store_dword v{RA}, v{SP}, {WS}, s{S_AGW} offen{M.st}")
            if ex_at < 0: A(f"buffer_store_dword v{RA}, v{SP}, {WS}, s{S_EXW} offen sc1")
            stamp(A, "T1")
            A("s_barrier")
            A(f"buffer_store_dword v{T1+5}, v{SP}, {WS}, s{S_AGZ} offen{M.st}")
            A(f"s_not_b32 s{S_PHM}, s{S_PHM}")
        else:
            stamp(A, "G")
            A.wait_vm()
            stamp(A, "T1")
            if W == 3:
                A(f"v_cmp_gt_u32 vcc, s{S_NEED}, v{SP}")
                branch("k")()
            A("s_barrier")
        delay(A, O.get("ad", [200, 192, 192])[red])
        A(f"s_branch L_step{u}")
        return A.snap()
    A.loop(body)
    A.skip = None
    for kind, st in list(side):
        A.restore(st)
        if kind == "a":
            def al(A):
                A.label(f"L_aretry{u}")
                for i in range(len(sets)):
                    A(ld(sets[i], S_AGA))
                    r = sets[(i + 1) % len(sets)]
                    A(f"s_add_u32 {TMO}, {TMO}, 1")
                    A(f"ds_write_b128 v{L16}, {v(r, 4)} offset:{MEM + W * 1024}")
                    for x in chk(r, a0): A(x)
                    A(f"s_cbranch_vccz L_aback{u}")
                A(f"s_cmp_gt_u32 {TMO}, {TMO_MAX}\ns_cbranch_scc0 L_aretry{u}")
                st = A.snap(); A("s_branch L_fail")
                return st
            A.loop(al)
        elif kind in "fb":
            A.label(f"L_{kind}retry{u}"); A.force_wait("lgkmcnt(0)")
            if kind == "f": A(ld(b0, S_AG4))
            else: A(ld(b1, S_RMB)); A(ld(c0, S_RM9))
            tmo(A, "L_fail"); A.wait_vm()
            if kind == "b": A(f"ds_write_b128 v{L16}, {v(b1, 4)} offset:{MEM + (4 + W) * 1024}")
            for x in chk(b0, c1) if kind == "f" else chk2: A(x)
            A.wait_all()
            A(f"s_cbranch_vccnz L_{kind}retry{u}\ns_branch L_{kind}back{u}")
        elif kind == "g":
            A.label(f"L_gretry{u}")
            if g2 is None: gather(A, G2); delay(A, 100)
            def gl(A):
                A.label(f"L_gloop{u}")
                for again, regs in ((G1, G2), (G2, G1)):
                    gather(A, again)
                    A(f"s_add_u32 {TMO}, {TMO}, 1")
                    reduce(A, regs)
                    A(f"s_cbranch_vccz L_gback{u}")
                A(f"s_cmp_gt_u32 {TMO}, {TMO_MAX}\ns_cbranch_scc0 L_gloop{u}")
                st = A.snap(); A("s_branch L_fail")
                return st
            A.loop(gl)
        elif kind == "k":
            A.label(f"L_kretry{u}"); tmo(A, "L_fail")
            A(f"""v_bfe_u32 v{SP}, v{L16}, 2, 5
buffer_load_dword v{SP}, v{SP}, {WS}, s{S_FKV} offen sc1
v_cmp_gt_u32 vcc, s{S_NEED}, v{SP}
s_cbranch_vccnz L_kretry{u}
s_branch L_kback{u}""")
        elif kind == "s":
            A.label(f"L_sretry{u}"); A.force_wait("lgkmcnt(0)")
            A(f"s_sub_u32 s3, s{S_KM0}, {W * 2048}\nv_add_u32 v{KR}, s3, v{L16}")
            for ks in range(4): xread(A, ks)
            for ks in range(4): A(mf(Sm, B0 + 4 * ks, B0 + 4 * ks, ks == 0))
            for xt, d in ((0, S0), (1, S1)):
                for ks, r in enumerate((d0, d1, b0, b1)): kfrag(A, xt, ks, r)
                for ks, r in enumerate((d0, d1, b0, b1)): A(mf(d, r, B0 + 4 * ks, ks == 0))
            truemax(A)
            for t in WL[:3]: lds_tile(A, W, t)
            A(f"v_add_u32 v{LB2}, 0x10000, v{L16}")
            owrite(A)
            zero(A, B4, 8); zero(A, c1, 4)
            A.force_wait("lgkmcnt(0)")
            A(f"s_branch L_sback{u}")
        elif kind == "l":
            A.label(f"L_last{u}")
            A(f"buffer_store_dwordx4 {v(B0 + 4 * W, 4)}, v{L16}, {WS}, s{S_PUB} offen offset:{W * 1024} sc1")
            A(f"buffer_store_dwordx2 {v(B2, 2)}, v{XW}, {WS}, s{S_PUB2} offen offset:{W * 512} sc1")
            A.wait_all(); A("s_barrier")
            if W == 2:
                A(f"v_mov_b32 v{SP}, 64\nbuffer_store_dword v{SP}, off, {WS}, s{S_FR} sc1")
            if O.get("stamp"):
                A(f"s_lshl_b32 s100, {TEAM}, 5\ns_add_u32 s100, s100, {IDX}\ns_lshl_b32 s100, s100, 10\ns_add_u32 s100, s100, {lay.DBGOUT + W * 256}")
                A.force_wait("lgkmcnt(0)")
                A(f"s_sub_u32 s93, s{S_T}, s93\ns_sub_u32 s73, {TMO}, s73")
                for i in range(12): A(f"v_mov_b32 v{8 + i}, s{88 + i}")
                A("v_mov_b32 v20, s73")
                for i in range(16):
                    A(f"s_memrealtime s[30:31]\ns_memtime s[74:75]"); A.wait_lg(); A(f"v_mov_b32 v{24 + 2*i}, s30\nv_mov_b32 v{25 + 2*i}, s74\ns_nop {i % 7}")
                for i in range(12): A(f"buffer_store_dwordx4 {v(8 + 4 * i, 4)}, off, {WS}, s100 offset:{16 * i}")
            A("s_endpgm")

def role(A, M, O):
    u = M.sfx
    prologue(A, M, O)
    st = A.snap()
    A(f"""s_cmp_eq_u32 {WAVE}, 2
s_cbranch_scc1 L_rw2{u}
s_cmp_eq_u32 {WAVE}, 3
s_cbranch_scc1 L_rw3{u}
s_cmp_eq_u32 {WAVE}, 0
s_cbranch_scc1 L_rw0{u}
s_cmp_lt_u32 {IDX}, 16
s_cbranch_scc1 L_rw1{u}""")
    for lbl, W, red in ((None, 1, 0), ("L_rw0", 0, 1), ("L_rw1", 1, 2), ("L_rw2", 2, 0), ("L_rw3", 3, 0)):
        if lbl: A.label(lbl + u)
        A.restore(st)
        step(A, M, W, red, O)
```

```python
import sys
sys.path.insert(0, "tools")
from common import *
import importlib
NAME = "adaLN_cond__memory_aug_recurrent_mem_tr__glu_gated_reglu__prompt"
HEAD = open("cdna_kernels/%s.s.ref" % NAME).read().split("; Override launch")[0]

def generate(O):
    import role_r
    roles = O.get("roles", "rkp")
    A = Asm()
    A(f"""s_cmp_ge_u32 s2, 256
s_cbranch_scc1 L_exit
s_load_dwordx16 s[64:79], s[0:1], 0
s_load_dwordx16 s[80:95], s[0:1], 64
s_getreg_b32 {TEAM}, hwreg(HW_REG_XCC_ID)
s_and_b32 {TEAM}, {TEAM}, 15
v_lshrrev_b32 v1, 6, v0
v_readfirstlane_b32 {WAVE}, v1
s_mov_b32 {TMO}, 0
s_mov_b32 s28, s{KA+2*P_DBG}
s_mov_b32 s29, s{KA+2*P_DBG+1}
s_mov_b32 s4, s{KA+2*P_WS}
s_mov_b32 s5, s{KA+2*P_WS+1}
s_mov_b32 s6, {lay.REGION}
s_mov_b32 s7, 0x20000""")
    if O.get("force_safe"): A("s_branch L_restart_safe")
    else:
        A(f"""s_min_u32 s30, {TEAM}, 8
s_cmp_lt_u32 {TEAM}, 8
s_cselect_b32 s31, 1, 33
s_cmp_lg_u32 {WAVE}, 0
s_cbranch_scc1 L_notick
s_lshl_b32 s30, s30, 2
v_mov_b32 v1, s30
v_mov_b32 v2, s31
v_mov_b32 v3, 0
s_mov_b64 exec, 1
global_atomic_add v2, v1, v2, {DBG} sc0 sc1
ds_write_b32 v3, v2
s_mov_b64 exec, -1""")
        A.wait_all()
        A(f"""L_notick:
s_barrier
v_mov_b32 v3, 0
ds_read_b32 v2, v3
v_readfirstlane_b32 {IDX}, v2
s_barrier
s_cmp_ge_u32 {TEAM}, 8
s_cbranch_scc1 L_restart_safe
s_cmp_ge_u32 {IDX}, 32
s_cbranch_scc1 L_restart_safe""")
    modes = []
    if not O.get("force_safe"): modes.append(Mode(False))
    if O.get("safe", True): modes.append(Mode(True))
    st0 = A.snap()
    for M in modes:
        u = M.sfx
        if M.safe:
            A.label("L_restart_safe")
            A.force_wait()
            A(f"""s_mov_b64 exec, -1
s_barrier
s_load_dwordx16 s[64:79], s[0:1], 0
s_load_dwordx16 s[80:95], s[0:1], 64
s_lshr_b32 {TEAM}, s2, 5
s_and_b32 {IDX}, s2, 31
s_add_u32 s4, s{KA+2*P_WS}, {lay.REGION}
s_addc_u32 s5, s{KA+2*P_WS+1}, 0""")
            st0 = A.snap()
        far = lambda l: f"s_getpc_b64 s[30:31]\nL_pc{l}:\ns_add_u32 s30, s30, {l}-L_pc{l}\ns_addc_u32 s31, s31, 0\ns_setpc_b64 s[30:31]"
        A(f"""s_cmp_lt_u32 {TEAM}, 2
s_cbranch_scc1 L_role_r{u}
s_cmp_lt_u32 {TEAM}, 4
s_cbranch_scc1 L_role_k{u}""")
        for r, mod in (("p", "role_p"), ("k", "role_k"), ("r", "role_r")):
            A.label(f"L_role_{r}{u}"); A.restore(st0)
            if r in roles: importlib.import_module(mod).role(A, M, O)
            else:
                arrive(A, M, r + u, 8); A("s_endpgm")
    if not O.get("safe", True): A.label("L_restart_safe")
    A.label("L_fail")
    A.restore(st0)
    A(f"""s_mov_b64 exec, 1
v_mov_b32 v1, 252
v_mov_b32 v2, 1
global_atomic_add v1, v2, {DBG} sc1
L_exit:
s_endpgm""")
    return f"""{HEAD}; @launch grid=(256,1,1) block=(256,1,1) lds=163840
.amdgcn_target "amdgcn-amd-amdhsa--gfx950"
.text
.globl {NAME}_kernel
.p2align 8
.type {NAME}_kernel,@function
{NAME}_kernel:
{A.text()}.section .rodata,"a"
.p2align 6
.amdhsa_kernel {NAME}_kernel
  .amdhsa_next_free_vgpr 512
  .amdhsa_next_free_sgpr 102
  .amdhsa_accum_offset 256
  .amdhsa_group_segment_fixed_size 0
  .amdhsa_kernarg_size 128
  .amdhsa_user_sgpr_count 2
  .amdhsa_user_sgpr_kernarg_segment_ptr 1
  .amdhsa_system_sgpr_workgroup_id_x 1
  .amdhsa_float_denorm_mode_32 3
.end_amdhsa_kernel
"""
if __name__ == "__main__":
    O = eval(sys.argv[2]) if len(sys.argv) > 2 else {}
    open(sys.argv[1], "w").write(generate(O))
```

```python
from asmgen import *
import lay

WS = "s[4:7]"
SA, SB, SC, SD = "s[8:11]", "s[12:15]", "s[16:19]", "s[20:23]"
TEAM, IDX, WAVE, TMO = "s24", "s25", "s26", "s27"
DBG = "s[28:29]"
KA = 64
P_X, P_MEM0, P_WQ, P_WK, P_WV, P_WO, P_SEG, P_BX, P_WG, P_WU, P_WD, P_C, P_WM, P_OUT, P_DBG, P_WS = range(16)
SIZES = {P_X: 2621440, P_MEM0: 10240, P_WQ: 5242880, P_WK: 5242880, P_WV: 5242880, P_WO: 5242880,
         P_WG: 640 * 1728 * 2, P_WU: 640 * 1728 * 2, P_WD: 640 * 1728 * 2, P_C: 1280, P_WM: 640 * 3840 * 2, P_OUT: 2621440}
OOB = 0x7FFFFFF0
TMO_MAX = 0x40000

def srd(A, base, p):
    A(f"""s_mov_b32 s{base}, s{KA+2*p}
s_mov_b32 s{base+1}, s{KA+2*p+1}
s_mov_b32 s{base+2}, {SIZES[p]}
s_mov_b32 s{base+3}, 0x20000""")

def lane(A, r):
    A(f"v_mbcnt_lo_u32_b32 v{r}, -1, 0\nv_mbcnt_hi_u32_b32 v{r}, -1, v{r}")

class Mode:
    def __init__(self, safe):
        self.safe = safe
        self.st = " sc1" if safe else ""
        self.sfx = "_s" if safe else "_f"
        self.fail = "L_fail" + self.sfx

def tmo(A, fail):
    A(f"s_add_u32 {TMO}, {TMO}, 1\ns_cmp_gt_u32 {TMO}, {TMO_MAX}\ns_cbranch_scc1 {fail}")

S_CNT, S_ATT, S_BAD = "s76", "s77", "s78"
def arrive(A, M, uid, t0, tag=None):
    A.wait_vm(tag)
    A(f"""s_barrier
s_cmp_lg_u32 {WAVE}, 0
s_cbranch_scc1 L_arr{uid}""")
    st = A.snap()
    A(f"""s_lshl_b32 s3, {TEAM}, 3
s_add_u32 s3, s3, {S_CNT}
v_mov_b32 v{t0+2}, s3
s_lshl_b32 s3, 1, {IDX}
v_mov_b32 v{t0}, s3
s_add_u32 s3, {S_BAD}, 0x10000
v_mov_b32 v{t0+1}, s3
s_mov_b64 exec, 1
global_atomic_add_x2 v{t0+2}, {v(t0, 2)}, {DBG} sc1
s_mov_b64 exec, -1
L_arr{uid}:""")
    A.join(st)

def census(A, M, uid, t0):
    lane(A, t0 + 2)
    A(f"v_and_b32 v{t0+2}, 7, v{t0+2}\nv_lshl_add_u32 v{t0+2}, v{t0+2}, 3, {S_CNT}")
    A.wait_all()
    A(f"""L_cen{uid}:
global_load_dwordx2 {v(t0, 2)}, v{t0+2}, {DBG} sc1""")
    tmo(A, M.fail)
    A(f"""v_cmp_eq_u32 s[30:31], -1, v{t0}
v_cmp_eq_u32 vcc, 0x200000, v{t0+1}
s_and_b64 s[30:31], s[30:31], vcc
s_cmp_eq_u64 s[30:31], -1
s_cbranch_scc1 L_cenok{uid}
v_lshrrev_b32 v{t0+1}, 16, v{t0+1}""")
    for k in (4, 2, 1): A(f"v_add_u32_dpp v{t0+1}, v{t0+1}, v{t0+1} row_ror:{k} row_mask:0xf bank_mask:0xf")
    A(f"""v_cmp_lt_u32 vcc, 255, v{t0+1}
s_cbranch_vccnz {M.fail if M.safe else "L_next"}
s_sleep 4
s_branch L_cen{uid}
L_cenok{uid}:""")

def vote_class(A, M, pid, t0):
    A(f"""s_and_b32 s33, {pid}, 3
s_lshl_b32 s33, s33, 14
s_bfe_u32 s3, {pid}, 0x40002
s_lshl_b32 s3, s3, 7
s_add_u32 s33, s33, s3
s_add_u32 s33, s33, {lay.R_EX + 5632}
s_add_u32 s34, s33, 8192
s_mov_b32 s35, -1
s_mov_b32 s36, -1
s_mov_b64 exec, 1""")
    A.wait_all()
    for r in range(4):
        for c in range(2):
            A("s_memtime s[30:31]"); A.wait_lg()
            A(f"buffer_store_dword v{t0}, off, {WS}, s{33 + c} sc1"); A.wait_vm()
            A("s_memtime s[44:45]"); A.wait_lg()
            A(f"s_sub_u32 s3, s44, s30\ns_min_u32 s{35 + c}, s{35 + c}, s3")
    A(f"""s_cmp_lt_u32 s36, s35
s_cselect_b32 s3, 1, 0
s_add_u32 s3, s3, 0x10000
v_mov_b32 v{t0}, s3
s_lshl_b32 s3, {S_ATT}, 2
s_add_u32 s3, s3, 100
v_mov_b32 v{t0+1}, s3
global_atomic_add v{t0+1}, v{t0}, {DBG} sc1
s_mov_b64 exec, -1""")
def read_class(A, M, uid, t0):
    A(f"""s_lshl_b32 s3, {S_ATT}, 2
s_add_u32 s3, s3, 100
v_mov_b32 v{t0}, s3
L_cls{uid}:
global_load_dword v{t0+1}, v{t0}, {DBG} sc1""")
    tmo(A, M.fail)
    A(f"""v_readfirstlane_b32 s3, v{t0+1}
s_cmp_lt_u32 s3, 0x400000
s_cbranch_scc1 L_cls{uid}
s_and_b32 s3, s3, 0xffff
s_cmp_ge_u32 s3, 32
s_cselect_b32 s30, 8192, 0""")

def ev(A, O, i, t):
    if not O.get("ev"): return
    A.force_wait("lgkmcnt(0)")
    A(f"s_memrealtime s[30:31]\ns_lshl_b32 s3, {TEAM}, 5\ns_add_u32 s3, s3, {IDX}\ns_lshl_b32 s3, s3, 2\ns_add_u32 s3, s3, {WAVE}\ns_lshl_b32 s3, s3, 7\ns_add_u32 s3, s3, {lay.DBGOUT + 0x80000}")
    A(f"v_mov_b32 v{t}, s30\nbuffer_store_dword v{t}, off, {WS}, s3 offset:{4 * i}")
```

```python
MB = 1 << 20
WS_BYTES = 256 * MB
REGION = 80 * MB
FLG_KV   = 0x0000
FLG_R    = 0x1000
FLG_MOD  = 0x2000
FLG_H    = 0x2400
FLG_T    = 0x3000
MOD      = 0x8000
R_AG     = 0x10000
R_MK     = 0x18000
R_EX     = 0x20000
R_RS     = 0x100000
R_RSS    = 0x40000
H        = 0x200000
KM_H, KM_S = 66 * 6144, 6144
KMVM     = 0xB00000 + 6144
T_BASE   = 0x500000
T_STRIDE = 0x180000
T_RS1, T_AG, T_RS2 = 0, 0x150000, 0x180000
QKV_H, QKV_S = 64 * 24576 + 20480, 24576
QKV      = 0x1800000
C_SCALE = (128 ** -0.5) * 1.4426950408889634
DBGOUT   = 0x4C00000
```

```python
from common import *
import struct

IDXR, L16, LB2, XW, XR, RSA, GA, SP = range(8)
B0, B1, B2, B3, B4, B5, B6, B7 = (8 + 8 * i for i in range(8))
a0, a1, b0, b1, c0, c1, d0, d1 = B3, B3 + 4, B4, B4 + 4, B5, B5 + 4, B7, B7 + 4
STATIC0 = 72
MEM, KB, VB, XB, VMS, TILES = 0, 8192, 24576, 32768, 36864, 40960
OB = MEM + 4096
S_STEP, S_PH, S_PHM = 32, 33, 34
S_AGA, S_AG4, S_RMB, S_RM9 = 35, 36, 37, 38
S_AGW, S_AGZ, S_EXW, S_EXZ = 39, 40, 41, 42
S_RS = 43
S_GAT, S_GAT2 = 46, 47
S_KV, S_V, S_PUB, S_PUB2 = 48, 49, 50, 51
S_SLOT, S_OUTO, S_FKV, S_FR = 52, 53, 54, 55
S_CS, S_ONE, S_NEED, S_KM0 = 56, 57, 58, 59
S_AGL, S_EXO, S_EXR, S_RNG = 60, 61, 62, 63
S_SEL = 64
S_T = 76
ACC = {"k": (B0, B0 + 4), "q": (B1, B1 + 4), "v": (B2, B2 + 4)}
AGS, EXS = 5120, 16384

def f32bits(x): return struct.unpack("<I", struct.pack("<f", x))[0]

def p1_order():
    o = []
    for ks in range(5): o += [("k",ks,0),("k",ks,1),("q",ks,0),("q",ks,1),("v",ks,0),("v",ks,1)]
    for ks in (9, 5, 6): o += [("k",ks,0),("k",ks,1),("q",ks,0),("q",ks,1)]
    o += [("k",7,0),("k",8,0),("k",7,1),("k",8,1),("q",7,0),("q",8,0),("q",7,1),("q",8,1)]
    for ks in range(5, 10): o += [("v",ks,0),("v",ks,1)]
    return o
P4 = [("o", x, t) for x in (4, 0, 1, 2, 3) for t in range(2)]
WL = [P4[i] for i in (0, 1, 2, 3, 6, 7, 8, 9)]
PL = [("k", ks, 0) for ks in (0, 1, 2, 3, 4, 9)] + [("q", 5, 0)]
LDS_PAIRS = [WL[2 * i][:2] for i in range(4)]
LAND = {t: B7 for t in PL}
LAND.update({WL[0]: B0, WL[1]: B1, WL[2]: B7, WL[3]: B6, WL[4]: B0, WL[5]: B1, WL[6]: B7, WL[7]: B6})
SRC = {}
for i, t in enumerate(WL + PL): SRC[t] = ("lds", i)
_n = 0
for m in "qkvo":
    for ks in range(5 if m == "o" else 10):
        for t in range(2):
            if (m, ks, t) not in SRC:
                SRC[(m, ks, t)] = ("reg", STATIC0 + 8 * _n); _n += 1
assert STATIC0 + 8 * _n == 512, _n
def breg(tile): return ur(SRC[tile][1] if SRC[tile][0] == "reg" else LAND[tile], 8)

def prologue(A, M, O):
    u = M.sfx
    GQ, GO, TQ, TO, TA, W16, LN, T = range(8)
    srd(A, 8, P_WQ); srd(A, 12, P_WK); srd(A, 16, P_WV); srd(A, 20, P_WO)
    lane(A, LN)
    A(f"""s_lshl_b32 s32, {WAVE}, 6
s_lshl_b32 s3, {IDX}, 8
s_add_u32 s3, s3, s32
s_mul_i32 s33, {TEAM}, {320 * 8192}
s_sub_u32 s34, {320 * 8192}, s33
s_lshl_b32 s35, {WAVE}, 10
v_lshrrev_b32 v{T}, 2, v{LN}
v_and_b32 v{TA}, 3, v{LN}
v_lshlrev_b32 v{GQ}, 13, v{T}
v_lshl_add_u32 v{GQ}, v{TA}, 4, v{GQ}
v_add_u32 v{GQ}, s3, v{GQ}
s_mul_i32 s3, {IDX}, 163840
s_mul_i32 s30, {TEAM}, 640
s_add_u32 s3, s3, s30
v_mul_u32_u24 v{GO}, 1280, v{T}
v_lshl_add_u32 v{GO}, v{TA}, 4, v{GO}
v_add_u32 v{GO}, s3, v{GO}
s_and_b32 s37, s32, 64
s_lshr_b32 s30, {WAVE}, 1
s_mul_i32 s30, s30, {64 * 1280}
s_add_u32 s37, s37, s30
s_add_u32 s37, s37, 512""")
    pairs = [(m, ks) for m in "kqvo" for ks in range(5 if m == "o" else 10) if (m, ks) not in LDS_PAIRS]
    pairs = pairs[:-3] + LDS_PAIRS + pairs[-3:]
    NA = 7
    assert len(pairs) % NA == 0
    def dma(n):
        m, ks = pairs[n]
        for i in range(4):
            if m != "o": so = f"s_add_u32 s36, s{33 if ks < 5 else 34}, {(64 * (ks % 5) + 16 * i) * 8192}"
            elif ks < 4: so = f"s_add_u32 s36, s32, {(64 * (ks & 1) + 16 * i) * 1280 + (ks >> 1) * 256}"
            else: so = f"s_add_u32 s36, s37, {16 * i * 1280}"
            A(f"s_add_u32 m0, s35, {TILES + (n % NA) * 16384 + i * 4096}\n{so}")
            A(f"buffer_load_dwordx4 v{GO if m == 'o' else GQ}, {dict(q=SA, k=SB, v=SC, o=SD)[m]}, s36 offen{O.get('wnt', '')} lds", tag=f"p{n}")
    A(f"""v_bfe_u32 v8, v{LN}, 5, 1
v_bfe_u32 v9, v{LN}, 4, 1
v_bfe_u32 v10, v{LN}, 3, 1
v_bfe_u32 v11, v{LN}, 2, 1
s_min_u32 s41, {WAVE}, 1
s_lshr_b32 s38, {IDX}, s41
s_lshl_b32 s3, {WAVE}, 5
s_add_u32 s38, s38, s3
s_and_b32 s42, {IDX}, s41
s_mul_i32 s30, {TEAM}, {lay.R_RSS}
s_add_u32 s30, s30, {lay.R_RS}
s_lshl_b32 s{S_GAT}, s38, 12
s_add_u32 s{S_GAT}, s{S_GAT}, s30
s_lshl_b32 s3, s42, 6
s_add_u32 s{S_GAT}, s{S_GAT}, s3
s_add_u32 s{S_GAT2}, s{S_GAT}, 32768
s_lshr_b32 s39, s38, 2
s_lshl_b32 s{S_OUTO}, s39, 9
s_and_b32 s40, s38, 3
s_lshl_b32 s3, s40, 6
s_add_u32 s{S_OUTO}, s{S_OUTO}, s3
s_lshl_b32 s3, {WAVE}, 14
s_lshl_b32 s{S_FR}, {IDX}, 7
s_add_u32 s{S_RS}, s3, s{S_FR}
s_add_u32 s{S_RS}, s{S_RS}, s30
s_add_u32 s{S_RS+1}, s{S_RS}, 65536
s_add_u32 s{S_RS+2}, s{S_RS}, 131072
s_add_u32 s{S_FKV}, s{S_FR}, {lay.FLG_KV}
s_lshl_b32 s3, {TEAM}, 2
s_add_u32 s{S_FR}, s{S_FR}, s3
s_add_u32 s{S_FR}, s{S_FR}, {lay.FLG_R}
s_lshl_b32 s{S_AGL}, {TEAM}, 14
s_add_u32 s{S_AGL}, s{S_AGL}, {lay.R_AG}
s_mul_i32 s{S_EXO}, {TEAM}, {3 * EXS}
s_sub_u32 s{S_EXR}, {lay.R_EX + 3 * EXS}, s{S_EXO}
s_add_u32 s{S_EXO}, s{S_EXO}, {lay.R_EX}
v_lshrrev_b32 v12, 4, v{LN}
v_and_b32 v13, 15, v{LN}
v_lshlrev_b32 v14, 12, v12
v_lshl_add_u32 v14, v13, 3, v14
v_mov_b32 v16, 1
v_mov_b32 v17, 1
v_mov_b32 v18, 0""")
    for j in range(3): A(f"buffer_store_dwordx2 v[16:17], v14, {WS}, s{S_RS+j} offen{M.st}")
    A(f"buffer_store_dword v18, off, {WS}, s{S_FR} sc1")
    A(f"""s_mov_b32 s96, s{KA+2*P_MEM0}
s_mov_b32 s97, s{KA+2*P_MEM0+1}
s_mov_b32 s98, 10240
s_mov_b32 s99, 0x20000
s_mul_i32 s40, s40, 2560
s_lshl_b32 s39, s39, 6
s_add_u32 s39, s39, s40
s_mul_i32 s3, {TEAM}, 640
s_add_u32 s101, s39, s3
v_and_b32 v15, 1, v{LN}
v_bfe_u32 v20, v{LN}, 1, 1
v_lshlrev_b32 v23, 8, v20
v_lshl_add_u32 v23, v11, 5, v23
v_lshl_add_u32 v23, v15, 4, v23
s_xor_b32 s3, s41, 1
v_and_b32 v25, s3, v12
v_add_u32 v25, s42, v25
v_lshl_add_u32 v25, v25, 1, v8
v_lshl_add_u32 v23, v25, 2, v23
v_add_u32 v23, s{S_OUTO}, v23
v_mov_b32 v24, -1
s_cmp_ge_u32 s38, 40
s_cbranch_scc1 L_rinit{u}""")
    st0 = A.snap()
    for sl in range(3):
        A(f"s_add_u32 s3, s{S_AGL}, {sl * AGS}\nbuffer_store_dword v24, v23, {WS}, s3 offen{M.st}")
        for cl in range(2): A(f"s_add_u32 s3, s{S_EXO}, {sl * EXS + cl * 8192}\nbuffer_store_dword v24, v23, {WS}, s3 offen sc1")
    A.label(f"L_rinit{u}"); A.join(st0)
    A(f"buffer_store_dword v18, off, {WS}, s{S_FR} offset:8 sc1", tag="init")
    for n in range(NA): dma(n)
    arrive(A, M, "r" + u, 16, "init")
    A(f"""v_lshlrev_b32 v{W16}, 4, v{LN}
v_add_u32 v{W16}, s35, v{W16}
v_lshlrev_b32 v{TA}, 3, v{TA}
v_add_u32 v{TA}, s35, v{TA}
v_lshl_add_u32 v{TQ}, v8, 12, v{TA}
v_lshl_add_u32 v{TQ}, v9, 9, v{TQ}
v_lshl_add_u32 v{TQ}, v11, 7, v{TQ}
v_lshl_add_u32 v{TQ}, v10, 6, v{TQ}
v_lshl_add_u32 v{TO}, v9, 12, v{TA}
v_lshl_add_u32 v{TO}, v10, 5, v{TO}
v_lshl_add_u32 v{TO}, v8, 8, v{TO}
v_lshl_add_u32 v{TO}, v11, 6, v{TO}""")
    held = {}
    for n, (m, ks) in enumerate(pairs):
        A.wait_vm(f"p{n}")
        A(f"v_add_u32 v{TA}, {TILES + (n % NA) * 16384}, v{TO if m == 'o' else TQ}")
        dst = []
        for t in range(2):
            kind, w = SRC[(m, ks, t)]
            if kind == "reg": d = w
            elif 8 <= w < 14: d = B2 + 8 * (w - 8); held[w] = d
            else: d = B0 + 8 * t
            dst.append(d)
            for qd in range(4):
                off = (qd >> 1) * 512 + (qd & 1) * 128 + 8192 * t if m == "o" else (qd >> 1) * 8192 + (qd & 1) * 256 + 32 * t
                A(f"ds_read_b64_tr_b16 {ur(d + 2 * qd, 2)}, v{TA} offset:{off}")
        A.wait_lg()
        if n + NA < len(pairs): dma(n + NA)
        for t in range(2):
            kind, w = SRC[(m, ks, t)]
            if kind == "lds" and w not in held:
                A(f"v_add_u32 v{T}, {TILES + w * 8192}, v{W16}")
                for hf in range(2): A(f"ds_write_b128 v{T}, {v(dst[t] + 4 * hf, 4)} offset:{4096 * hf}")
    A(f"v_mov_b32 v{T}, 1\nbuffer_store_dword v{T}, off, {WS}, s{S_FR} offset:8 sc1")
    for w, d in held.items():
        A(f"v_add_u32 v{T}, {TILES + w * 8192}, v{W16}")
        for hf in range(2): A(f"ds_write_b128 v{T}, {v(d + 4 * hf, 4)} offset:{4096 * hf}")
    A.wait_all()
    ev(A, O, 2, 8)
    A(f"""v_mov_b32 v8, v{LN}
v_lshrrev_b32 v9, 4, v8
v_and_b32 v10, 15, v8
v_lshlrev_b32 v{L16}, 4, v8
v_add_u32 v{LB2}, 0x10000, v{L16}
v_lshrrev_b32 v11, 5, v8
v_lshlrev_b32 v11, 6, v11
v_lshlrev_b32 v12, 3, v10
v_xor_b32 v11, v11, v12
v_lshl_add_u32 v{XW}, v9, 7, v11
v_lshrrev_b32 v11, 2, v8
v_lshlrev_b32 v11, 3, v11
v_bfe_u32 v13, v8, 1, 1
v_lshlrev_b32 v14, 6, v13
v_xor_b32 v11, v11, v14
v_and_b32 v14, 3, v8
v_lshl_add_u32 v{XR}, v14, 7, v11
v_lshl_add_u32 v{RSA}, v9, 12, v12
v_lshrrev_b32 v{GA}, 2, v8
v_lshlrev_b32 v{GA}, 7, v{GA}
v_lshl_add_u32 v{GA}, v14, 4, v{GA}
v_and_b32 v15, 1, v8
v_mul_u32_u24 v{IDXR}, 0xaaaa, v13
v_add_u32 v{IDXR}, 0x4444, v{IDXR}
v_bfe_u32 v11, v8, 2, 1
v_lshlrev_b32 v{SP}, 8, v13
v_lshl_add_u32 v{SP}, v11, 5, v{SP}
v_lshl_add_u32 v{SP}, v15, 4, v{SP}
s_xor_b32 s3, s41, 1
v_and_b32 v25, s3, v9
v_add_u32 v25, s42, v25
v_lshrrev_b32 v26, 5, v8
v_lshl_add_u32 v25, v25, 1, v26
v_lshl_add_u32 v{SP}, v25, 2, v{SP}
v_add_u32 v{SP}, s{S_OUTO}, v{SP}
v_mul_u32_u24 v19, 1280, v15
v_lshl_add_u32 v19, v13, 5, v19
v_lshl_add_u32 v19, v25, 3, v19
v_lshl_add_u32 v19, v11, 1, v19
s_mov_b32 s100, s38
buffer_load_ushort v21, v19, s[96:99], s101 offen
buffer_load_ushort v22, v19, s[96:99], s101 offen offset:4""")
    for j in range(4):
        mk = sum(3 << (8 * b + 2 * j) for b in range(4))
        A(f"s_mov_b32 s{S_SEL+2*j}, {mk}\ns_mov_b32 s{S_SEL+2*j+1}, {mk}")
    A(f"""s_mov_b32 s{S_CS}, {f32bits(lay.C_SCALE)}
s_mov_b32 s{S_ONE}, 0x3f80
s_mov_b32 s{S_RNG}, {120 << 23}
s_mov_b32 s{S_STEP}, 0
s_mov_b32 s{S_PH}, 0
s_mov_b32 s{S_PHM}, 0
s_mov_b32 s{S_SLOT}, 0
s_mul_i32 s{S_KV}, {IDX}, {lay.QKV_H}
s_lshl_b32 s3, {WAVE}, 11
s_add_u32 s{S_KV}, s{S_KV}, s3
s_add_u32 s{S_KV}, s{S_KV}, {lay.QKV}
s_add_u32 s{S_V}, s{S_KV}, 8192
s_add_u32 s{S_KM0}, s3, {KB}
s_mul_i32 s{S_PUB}, {IDX}, {lay.KM_H}
s_add_u32 s{S_PUB}, s{S_PUB}, {lay.KMVM - lay.KM_S}
s_add_u32 s{S_PUB2}, s{S_PUB}, 4096
s_cmp_eq_u32 {TEAM}, 0
s_cselect_b32 s30, 0, 0x40000000
s_cselect_b32 s31, 0x40000000, 0
s_add_u32 s{S_PUB}, s{S_PUB}, s30
s_add_u32 s{S_PUB2}, s{S_PUB2}, s31
v_lshl_or_b32 v21, v22, 16, v21
v_min_u32 v21, -2, v21""")
    census(A, M, "r" + u, 8)
    A(f"""v_bfe_u32 v8, v{L16}, 2, 5
L_rkv{u}:
buffer_load_dword v9, v8, {WS}, s{S_FKV} offen sc1""")
    tmo(A, M.fail)
    A(f"""v_cmp_gt_u32 vcc, 2, v9
s_cbranch_vccz L_rkvok{u}
s_sleep 4
s_branch L_rkv{u}
L_rkvok{u}:""")
    if "cls" in O: A(f"s_mov_b32 s30, {O['cls'] * 8192}")
    else: read_class(A, M, "r" + u, 8)
    A(f"""s_add_u32 s{S_EXO}, s{S_EXO}, s30
s_add_u32 s{S_EXR}, s{S_EXR}, s30
s_lshl_b32 s3, {WAVE}, 10
s_add_u32 s{S_AGA}, s{S_AGL}, s3
s_add_u32 s{S_AG4}, s{S_AGL}, 4096
s_add_u32 s{S_RMB}, s{S_EXR}, s3
s_add_u32 s{S_RM9}, s{S_EXR}, 4096
s_add_u32 s{S_EXZ}, s{S_EXO}, {2 * EXS}
s_mov_b32 m0, s{S_KM0}
s_xor_b32 s{S_KM0}, s{S_KM0}, {KB ^ (KB + 8192)}
buffer_load_dwordx4 v{L16}, {WS}, s{S_KV} offen sc1 lds
buffer_load_dwordx4 v{L16}, {WS}, s{S_KV} offen offset:1024 sc1 lds
s_lshl_b32 s3, {WAVE}, 11
s_add_u32 m0, s3, {VB}
s_add_u32 s{S_KV}, s{S_KV}, {lay.QKV_S}
buffer_load_dwordx4 v{L16}, {WS}, s{S_V} offen sc1 lds
buffer_load_dwordx4 v{L16}, {WS}, s{S_V} offen offset:1024 sc1 lds
s_add_u32 s{S_V}, s{S_V}, {lay.QKV_S}
s_cmp_ge_u32 s100, 40
s_cbranch_scc1 L_rm0{u}
buffer_store_dword v21, v{SP}, {WS}, s{S_AGL} offen{M.st}
buffer_store_dword v21, v{SP}, {WS}, s{S_EXO} offen sc1
L_rm0{u}:""")
    ev(A, O, 3, 8)
    A.force_wait()

def lds_tile(A, W, tile, hi=False):
    w = SRC[tile][1]; d = LAND[tile]
    for hf in range(2):
        o = TILES + w * 8192 + hf * 4096 + W * 1024
        base = L16 if o < 65536 else LB2
        assert o < 65536 or (o >> 16) == (2 if hi else 1), (tile, o, hi)
        A(f"ds_read_b128 {v(d + 4 * hf, 4)}, v{base} offset:{o & 0xffff}")
def zero(A, r, n):
    for i in range(0, n, 2): A(f"v_mov_b64 {v(r + i, 2)}, 0")
def delay(A, cyc):
    d = cyc // 4
    while d > 0: A(f"s_nop {min(d, 16) - 1}"); d -= 16

class Stamps:
    def __init__(self, names): self.names = names or []
    def __call__(self, A, name):
        if name in self.names:
            i = self.names.index(name); A.raw(f"s_memtime s[{S_T + 2 * i}:{S_T + 2 * i + 1}]")

def step(A, M, W, red, O):
    u = f"{W}{red}{M.sfx}"
    stamp = Stamps(O.get("stamp"))
    NST = 6
    side = []
    ld = lambda r, so: f"buffer_load_dwordx4 {v(r, 4)}, v{L16}, {WS}, s{so} offen sc1"
    chk = lambda r, t: [f"v_max3_u32 v{t}, v{r}, v{r+1}, v{r+2}", f"v_max_u32 v{t}, v{t}, v{r+3}", f"v_cmp_eq_u32 vcc, -1, v{t}"]
    chk2 = [f"v_max3_u32 v{c1}, v{b1}, v{b1+1}, v{b1+2}", f"v_max3_u32 v{c1}, v{c1}, v{b1+3}, v{c0}", f"v_max3_u32 v{c1}, v{c1}, v{c0+1}, v{c0+2}",
            f"v_max_u32 v{c1}, v{c1}, v{c0+3}", f"v_cmp_eq_u32 vcc, -1, v{c1}"]
    def gather(A, regs):
        for i in range(4):
            so, off = (S_GAT, 1024 * i) if red == 1 else (S_GAT2 if i >> 1 else S_GAT, 2048 * (i & 1))
            A(f"buffer_load_dwordx4 {v(regs[i], 4)}, v{L16 if red == 1 else GA}, {WS}, s{so} offen offset:{off} sc1")
    def frag(A, j, r): A(f"ds_read_b128 {v(r, 4)}, v{L16} offset:{MEM + j * 1024}")
    def xread(A, ks):
        for hf in range(2): A(f"ds_read_b64_tr_b16 {v(B0 + 4 * ks + 2 * hf, 2)}, v{XR} offset:{XB + (4 * hf + ks) * 512}")
    KR = LB2
    def kfrag(A, xt, ks, r): A(f"ds_read_b128 {v(r, 4)}, v{KR} offset:{(xt * 4 + ks) * 1024}")
    def prep(A):
        for hf in range(2): A(f"ds_read_b128 {v(B6 + 4 * hf, 4)}, v{L16} offset:{VB + (2 * W + hf) * 1024}")
        lds_tile(A, W, PL[0])
        zero(A, B0, 24)
    cv = lambda d, r: f"v_cvt_pk_bf16_f32 v{d}, v{r}, v{r + 1}"
    mf = lambda d, x, y, first: f"v_mfma_f32_16x16x32_bf16 {v(d, 4)}, {v(x, 4)}, {v(y, 4)}, {'0' if first else v(d, 4)}"
    m16 = lambda d, x, y, first: f"v_mfma_f32_16x16x16_bf16 {v(d, 4)}, {v(x, 2)}, {v(y, 2)}, {'0' if first else v(d, 4)}"
    ex = lambda r: f"v_exp_f32 v{r}, v{r}"
    Sm, S0, S1, PX, LL, O0, O1, OP = c1, c0, a0, a1, c1, b1, b0, c0
    def owrite(A, tag=None):
        A(f"""v_rcp_f32 v{LL}, v{LL}
v_rcp_f32 v{LL+1}, v{LL+1}
v_pk_mul_f32 {v(O0, 2)}, {v(O0, 2)}, {v(LL, 2)}
v_pk_mul_f32 {v(O1, 2)}, {v(O1, 2)}, {v(LL, 2)}""")
        A(cv(OP, O0)); A(cv(OP + 1, O0))
        A(f"ds_write_b64 v{XW}, {v(OP, 2)} offset:{OB + W * 512}")
        A(cv(OP + 2, O1)); A(cv(OP + 3, O1))
        A(f"ds_write_b64 v{XW}, {v(OP + 2, 2)} offset:{OB + (4 + W) * 512}", tag=tag)
    def truemax(A):
        t, t2 = Sm, Sm + 1
        A(f"""v_max3_f32 v{t}, v{Sm+2}, v{Sm+3}, v{S0}
v_max3_f32 v{t}, v{t}, v{S0+1}, v{S0+2}
v_max3_f32 v{t}, v{t}, v{S0+3}, v{S1}
v_max3_f32 v{t}, v{t}, v{S1+1}, v{S1+2}
v_max_f32 v{t}, v{t}, v{S1+3}
v_mov_b32 v{t2}, v{t}
v_permlane32_swap_b32 v{t}, v{t2}
v_max_f32 v{t}, v{t}, v{t2}
v_mov_b32 v{t2}, v{t}
v_permlane16_swap_b32 v{t}, v{t2}
v_max_f32 v{t}, v{t}, v{t2}""")
        vals = [Sm + 2, Sm + 3] + [S0 + i for i in range(4)] + [S1 + i for i in range(4)]
        for r in vals: A(f"v_sub_f32 v{r}, v{r}, v{t}")
        for r in vals: A(ex(r))
        A(cv(B2 + 4, Sm + 2)); A(cv(B2 + 7, Sm + 2))
        A(cv(PX, S0)); A(cv(PX + 1, S0 + 2)); A(cv(PX + 2, S1)); A(cv(PX + 3, S1 + 2))
        A(m16(LL, B2 + 4, B2 + 2, True)); A(m16(O0, B2 + 4, B2, True)); A(m16(O1, B2 + 6, B2, True))
        A(m16(LL, PX, B2 + 2, False)); A(m16(LL, PX + 2, B2 + 2, False))
        A(mf(O0, PX, B6, False)); A(mf(O1, PX, B6 + 4, False))
    SEL, RA, T1 = B2, B2 + 4, B3
    g2 = O.get("g2", [60, 200])[red - 1]
    G1 = [B0, B0 + 4, B1, B1 + 4]; G2 = [B7, B7 + 4, B6, B6 + 4]
    def reduce(A, regs):
        for i, r in enumerate(regs):
            A(f"v_mfma_f32_16x16x32_bf16 {v(RA, 4)}, {v(r, 4)}, {v(SEL, 4)}, {'0' if i == 0 else v(RA, 4)}")
            A(f"v_bitop3_b32 v{T1 + min(i, 1)}, v{r}, v{r + 2}, s{S_PHM} bitop3:0x7e")
            if 0 < i < len(regs) - 1: A(f"v_or_b32 v{T1}, v{T1}, v{T1+1}")
        A(f"""v_bitop3_b32 v{T1}, v{T1}, v{T1+1}, 1 bitop3:0xa8
v_cmp_ne_u32 vcc, 0, v{T1}
v_permlane32_swap_b32 v{RA}, v{RA+2}
v_permlane32_swap_b32 v{RA+1}, v{RA+3}
v_pk_add_f32 {v(RA, 2)}, {v(RA, 2)}, {v(RA + 2, 2)}""")
        if red == 2:
            A(f"""v_mov_b64 {v(RA + 2, 2)}, {v(RA, 2)}
v_permlane16_swap_b32 v{RA}, v{RA+2}
v_permlane16_swap_b32 v{RA+1}, v{RA+3}
v_pk_add_f32 {v(RA, 2)}, {v(RA, 2)}, {v(RA + 2, 2)}""")
        A(cv(RA, RA))
        A(f"v_min_u32 v{RA}, -2, v{RA}")
    gexit = []
    if red:
        keep = (list(A.out), A.snap(), A.n_nop, A.n_ins)
        for regs in (G1, G2):
            A.force_wait(); gather(A, regs); A("s_nop 7"); gexit.append(A.snap())
        A.out[:] = keep[0]; A.restore(keep[1]); A.n_nop, A.n_ins = keep[2:]
    if O.get("stamp"):
        for i in range(NST): stamp(A, O["stamp"][i])
        for i in range(88, 100): A(f"s_mov_b32 s{i}, 0")
    ex_at = O.get("exat", -1)
    if red and ex_at >= 0: A(f"v_mov_b32 v{RA}, v21\ns_mov_b32 s{S_EXW}, s{S_EXO}")
    sets = [b0, b1, c0, c1][:O.get("ns", 2)]
    aexit = []
    keep = (list(A.out), A.snap(), A.n_nop, A.n_ins)
    for r in sets:
        A.force_wait(); A(ld(r, S_AGA)); A(f"ds_write_b128 v{L16}, {v(a0, 4)}"); A("s_nop 7"); aexit.append(A.snap())
    A.out[:] = keep[0]; A.restore(keep[1]); A.n_nop, A.n_ins = keep[2:]
    A.skip = O.get("skip")

    def body(A):
        side.clear()
        A.raw(".p2align 4")
        A.label(f"L_step{u}")
        for i, r in enumerate(sets):
            A(ld(r, S_AGA))
            if red and i == ex_at:
                delay(A, 16); A(f"buffer_store_dword v{RA}, v{SP}, {WS}, s{S_EXW} offen sc1")
            if i < len(sets) - 1: delay(A, O.get("gap", 76))
        prep(A)
        if O.get("touch") is not None and W == 2:
            A(f"v_lshlrev_b32 v{c1}, 3, v{L16}\nv_min_u32 v{c1}, 5116, v{c1}\ns_sub_u32 s3, s{S_RM9}, 4096"); delay(A, O["touch"])
            A(f"buffer_load_dword v{c1}, v{c1}, {WS}, s3 offen sc1")
        def acheck(A, r):
            A(f"ds_write_b128 v{L16}, {v(r, 4)} offset:{MEM + W * 1024}")
            for x in chk(r, a0): A(x)
        acheck(A, sets[0])
        A(f"s_cbranch_vccnz L_aretry{u}"); side.append(("a", A.snap()))
        A.label(f"L_aback{u}")
        A.join(*aexit)
        A(ld(b0, S_AG4))
        rb = O.get("rb", -1)
        if rb == -2: A(ld(b1, S_RMB)); A(ld(c0, S_RM9))
        A.wait_lg()
        stamp(A, "A"); A("s_barrier"); stamp(A, "A2")
        frag(A, 0, a0)
        if rb == -1: A(ld(b1, S_RMB)); A(ld(c0, S_RM9))
        frag(A, 1, a1)
        order = p1_order()
        fb = {0: a0, 1: a1, 2: a0, 3: a1, 4: b0, 5: a0, 6: a1, 7: b1, 8: b0, 9: c0}
        N = {i: [] for i in range(90)}; V = {i: [] for i in range(90)}
        L = lambda t, hi=False: (lambda: lds_tile(A, W, t, hi))
        if rb >= 0: N[rb] += [ld(b1, S_RMB), ld(c0, S_RM9)]
        for i in range(1, 7): N[6 * (i - 1)] += [L(PL[i], i >= 3)]
        V[7] += [f"v_add_u32 v{LB2}, 0x10000, v{LB2}"]
        N[5] += [lambda: frag(A, 2, a0)]
        N[11] += [lambda: frag(A, 3, a1)]
        def branch(kind):
            def f():
                A(f"s_cbranch_vccnz L_{kind}retry{u}"); side.append((kind, A.snap())); A.label(f"L_{kind}back{u}")
            return f
        for i, x in enumerate(chk(b0, c1)): V[13 + i] += [x]
        N[17] += [branch("f")]
        bp = O.get("bpos", 23)
        N[bp] += [lambda: A(f"ds_write_b128 v{L16}, {v(b1, 4)} offset:{MEM + (4 + W) * 1024}", tag="bw")]
        for i, x in enumerate(chk2): V[bp + min(i, 3)] += [x]
        N[bp + 5] = [branch("b")] + N[bp + 5]
        N[bp + 6] += [lambda: A.wait_lg("bw"), "s_barrier", lambda: frag(A, 4, a0)]
        N[31] += [lambda: frag(A, 5, a1), lambda: frag(A, 6, b1)]
        N[33] += [lambda: frag(A, 7, b0)]
        kvnt = O.get("kvnt", "")
        N[8] += [f"s_mov_b32 m0, s{S_KM0}", f"s_xor_b32 s{S_KM0}, s{S_KM0}, {KB ^ (KB + 8192)}"]
        N[34] += [f"buffer_load_dwordx4 v{L16}, {WS}, s{S_KV} offen sc1{kvnt} lds", f"buffer_load_dwordx4 v{L16}, {WS}, s{S_KV} offen offset:1024 sc1{kvnt} lds",
                  f"s_mov_b32 m0, {VB + W * 2048}"]
        N[35] += [f"buffer_load_dwordx4 v{L16}, {WS}, s{S_V} offen sc1{kvnt} lds"]
        N[39] += [f"buffer_load_dwordx4 v{L16}, {WS}, s{S_V} offen offset:1024 sc1{kvnt} lds"]
        N[32] += [f"ds_read_b64_tr_b16 {v(c1, 2)}, v{XR} offset:{XB + W * 512}", f"ds_read_b64_tr_b16 {v(c1 + 2, 2)}, v{XR} offset:{XB + (4 + W) * 512}"]
        N[36] += [f"ds_read_b64 {v(d0, 2)}, v{XW} offset:{VMS + W * 512}"]
        N[40 + (W & 1)] += [f"buffer_store_dwordx4 {v(c1, 4)}, v{L16}, {WS}, s{S_PUB} offen offset:{W * 1024} sc1"]
        N[42] += [f"buffer_store_dwordx2 {v(d0, 2)}, v{XW}, {WS}, s{S_PUB2} offen offset:{W * 512} sc1"]
        if red:
            V[37] += [f"v_mov_b32 v{d1}, -1"]
            N[38] += [f"buffer_store_dword v{d1}, v{SP}, {WS}, s{S_EXZ} offen sc1"]
        if W == 2:
            N[37] += [f"s_sub_u32 s3, s{S_STEP}, 1\ns_max_i32 s3, s3, 0"]
            V[37] += [f"v_mov_b32 v{SP}, s3"]
            N[38] += [f"buffer_store_dword v{SP}, off, {WS}, s{S_FR} sc1"]
        if W == 3:
            V[37] += [f"v_bfe_u32 v{SP}, v{L16}, 2, 5"]
            N[38] += [f"buffer_load_dword v{SP}, v{SP}, {WS}, s{S_FKV} offen sc1"]
        N[1] += [f"s_mul_i32 s3, s{S_SLOT}, {AGS}\ns_add_u32 s{S_AGZ}, s{S_AGL}, s3\ns_lshl_b32 s30, s{S_SLOT}, 14"]
        N[2] += [f"s_add_u32 s{S_SLOT}, s{S_SLOT}, 1\ns_cmp_eq_u32 s{S_SLOT}, 3\ns_cselect_b32 s{S_SLOT}, 0, s{S_SLOT}"]
        N[3] += [f"s_mul_i32 s3, s{S_SLOT}, {AGS}\ns_add_u32 s{S_AGW}, s{S_AGL}, s3\ns_lshl_b32 s31, s{S_SLOT}, 14"]
        N[4] += [f"s_add_u32 s{S_EXW}, s{S_EXO}, s31\ns_add_u32 s31, s31, s{S_EXR}\ns_add_u32 s{S_AGA}, s{S_AGW}, {W * 1024}"]
        N[43] += [f"s_add_u32 s{S_AG4}, s{S_AGW}, 4096\ns_add_u32 s{S_RMB}, s31, {W * 1024}\ns_add_u32 s{S_RM9}, s31, 4096"]
        N[44] += [f"s_add_u32 s{S_EXZ}, s{S_EXO}, s30\ns_add_u32 s{S_KV}, s{S_KV}, {lay.QKV_S}\ns_add_u32 s{S_V}, s{S_V}, {lay.QKV_S}"]
        N[45] += [f"s_add_u32 s{S_PUB}, s{S_PUB}, {lay.KM_S}\ns_add_u32 s{S_PUB2}, s{S_PUB2}, {lay.KM_S}"]
        N[52] += [f"s_sub_u32 s3, s{S_KM0}, {W * 2048}"]
        N[46] += [f"s_add_u32 s{S_NEED}, s{S_STEP}, 3\ns_min_u32 s{S_NEED}, s{S_NEED}, 64"]
        V[52] += [f"v_add_u32 v{KR}, s3, v{L16}"]
        k0, k1 = ACC["k"]; q0, q1 = ACC["q"]; v0_, v1_ = ACC["v"]
        ad = lambda r, i: f"v_add_f32 v{r + i}, v{r + i}, v{r + i + 2}"
        mu = lambda r, i: f"v_mul_f32 v{r + i}, s{S_CS}, v{r + i}"
        V[45] += [ad(k0, 0)]
        V[46] += [ad(k0, 1), mu(k0, 0)]
        V[47] += [mu(k0, 1), ad(k1, 0)]
        V[48] += [ad(k1, 1), cv(c1 + 1, k0), mu(k1, 0)]
        V[49] += [mu(k1, 1), ad(q0, 0), ad(q0, 1)]
        V[50] += [cv(c1, q0), cv(c1 + 3, k1)]
        N[51] += [f"ds_write_b64 v{XW}, {v(c1, 2)} offset:{XB + W * 512}"]
        V[51] += [ad(q1, 0), ad(q1, 1), cv(c1 + 2, q1), lambda: A(f"ds_write_b64 v{XW}, {v(c1 + 2, 2)} offset:{XB + (4 + W) * 512}", tag="xw")]
        xb = O.get("xb", 55)
        N[xb] += [lambda: [A.wait_lg("xw"), stamp(A, "X"), A("s_barrier"), stamp(A, "X2"), xread(A, 0)]]
        N[xb + 1] += [lambda: [xread(A, 1)]]
        N[xb + 2] += [lambda: [xread(A, 2)]]
        N[xb + 3] += [lambda: [xread(A, 3)]]
        N[53] += [lambda: kfrag(A, 0, 0, d0), lambda: kfrag(A, 0, 1, d1)]
        N[59] += [lambda: kfrag(A, 0, 2, a0), lambda: kfrag(A, 0, 3, a1)]
        N[60] += [lambda: kfrag(A, 1, 0, b1)]
        N[61] += [lambda: kfrag(A, 1, 1, b0)]
        fast = O.get("fast", 1)
        V[62] += [ad(v0_, 0), ad(v0_, 1)]
        V[63] += [ad(v1_, 0), ad(v1_, 1)]
        N[64] += [lambda: kfrag(A, 1, 2, d0)]
        V[64] += [cv(B2, v0_), cv(B2 + 1, v1_)]
        N[65] += [lambda: kfrag(A, 1, 3, d1)]
        V[65] += [f"v_mov_b32 v{B2 + 2}, 0x3f803f80", f"v_mov_b32 v{B2 + 3}, 0x3f803f80"]
        N[66] += [f"ds_write_b64 v{XW}, {v(B2, 2)} offset:{VMS + W * 512}"]
        N[67] += [f"s_cmp_eq_u32 s{S_STEP}, 63"]
        N[68] += [lambda: [A(f"s_cbranch_scc1 L_last{u}"), side.append(("l", A.snap()))]]
        V[69] += [f"v_mov_b32 v{B2 + 5}, 0", f"v_mov_b32 v{B2 + 6}, 0"]
        if fast:
            V[66] += [ex(Sm + 2)]; V[67] += [ex(Sm + 3)]; V[68] += [cv(B2 + 4, Sm + 2), cv(B2 + 7, Sm + 2)]
            V[70] += [ex(S0)]; V[71] += [ex(S0 + 1)]; V[72] += [ex(S0 + 2)]; V[73] += [ex(S0 + 3)]
            V[74] += [ex(S1), cv(PX, S0), cv(PX + 1, S0 + 2), ex(S1 + 1), ex(S1 + 2)]
            V[75] += [ex(S1 + 3), cv(PX + 2, S1), cv(PX + 3, S1 + 2)]
            N[72] += [lambda: A(f"ds_read_b128 {v(B0, 4)}, v{L16} offset:{TILES + W * 1024}")]
            N[73] += [lambda: A(f"ds_read_b128 {v(B0 + 4, 4)}, v{L16} offset:{TILES + 4096 + W * 1024}")]
            N[76] += [L(WL[1])]; N[77] += [L(WL[2])]
        seq = [f"v_smfmac_f32_16x16x64_bf16 {v(ACC[m][t], 4)}, {v(fb[ks], 4)}, {breg((m, ks, t))}, v{IDXR}" for m, ks, t in order]
        seq += [mf(Sm, B0 + 4 * ks, B0 + 4 * ks, ks == 0) for ks in range(4)]
        seq += [mf(S0, r, B0 + 4 * ks, ks == 0) for ks, r in enumerate((d0, d1, a0, a1))]
        seq += [mf(S1, r, B0 + 4 * ks, ks == 0) for ks, r in enumerate((b1, b0, d0, d1))]
        if fast:
            seq += [m16(LL, B2 + 4, B2 + 2, True), m16(O0, B2 + 4, B2, True), m16(O1, B2 + 6, B2, True), m16(LL, PX, B2 + 2, False),
                    m16(LL, PX + 2, B2 + 2, False), mf(O0, PX, B6, False), mf(O1, PX, B6 + 4, False)]
        def run(seq, N, V, pfx, tail=0):
            for i in range(len(seq) + tail):
                if i < len(seq): A(seq[i])
                for x in N[i]: x() if callable(x) else A(x)
                if V[i] and i + 1 < len(seq): A.prewait(seq[i + 1])
                for x in V[i]: x() if callable(x) else A(x)
                stamp(A, f"{pfx}{i}")
        run(seq, N, V, "p")
        if not fast:
            for t in WL[:3]: lds_tile(A, W, t)
            truemax(A)
        A(f"v_add_u32 v{LB2}, 0x10000, v{L16}")
        owrite(A, "ow")
        if fast:
            A(f"""v_subrev_u32 v{LL}, {67 << 23}, v{LL}
v_subrev_u32 v{LL+1}, {67 << 23}, v{LL+1}
v_max_u32 v{LL}, v{LL}, v{LL+1}
v_cmp_le_u32 vcc, s{S_RNG}, v{LL}""")
        zero(A, B4, 8); zero(A, c1, 4)
        if fast: branch("s")()
        lds_tile(A, W, WL[3])
        A.wait_lg("ow"); stamp(A, "O"); A("s_barrier"); stamp(A, "O2")
        OA = [B2, B2 + 4, B3, B3 + 4]
        for kk in (0, 1, 2, 3) if W < 2 else (2, 3, 0, 1):
            for hf in range(2): A(f"ds_read_b64_tr_b16 {v(OA[kk] + 2 * hf, 2)}, v{XR} offset:{OB + (4 * hf + kk) * 512}")
        acc = [b0, b1, c1]
        N = {i: [] for i in range(30)}; V = {i: [] for i in range(30)}
        for i in range(4): N[i] += [L(WL[4 + i])]
        rs = lambda g: (lambda: A(f"buffer_store_dwordx2 {v(acc[g], 2)}, v{RSA}, {WS}, s{S_RS + g} offen{M.st}", tag=f"rs{g}"))
        tg = lambda g: f"v_and_or_b32 v{acc[g]}, v{acc[g]}, -2, s{S_PH}"
        V[3] += [cv(c1, c1)]; V[4] += [cv(c1 + 1, c1 + 2), tg(2)]; N[5] += [rs(2), "s_nop 0"]
        N[6] += ["s_nop 1"]
        V[7] += [cv(b0, b0)]; V[8] += [cv(b0 + 1, b0 + 2), tg(0)]; N[9] += [rs(0)]
        V[9] += [cv(b1, b1), cv(b1 + 1, b1 + 2), tg(1), rs(1)]
        seq = [f"v_smfmac_f32_16x16x64_bf16 {v(acc[x >> 1], 4)}, {v(OA[2 * (x & 1 if x < 4 else W >> 1) + t], 4)}, {breg((m, x, t))}, v{IDXR}" for m, x, t in P4]
        run(seq, N, V, "w")
        stamp(A, "T0")
        trc = 0
        if O.get("stamp"):
            trc = 108
            A.force_wait("lgkmcnt(0)")
            A(f"s_cmp_ge_u32 s{S_STEP}, 4\ns_cselect_b32 s72, -1, 0")
            for i in range(NST - 1): A(f"s_sub_u32 s3, s{S_T + 2*i + 2}, s{S_T + 2*i}\ns_and_b32 s3, s3, s72\ns_add_u32 s{88 + i}, s{88 + i}, s3")
            A(f"s_cmp_eq_u32 s{S_STEP}, 4\ns_cmov_b32 s93, s{S_T}\ns_cmov_b32 s73, {TMO}\ns_cmp_eq_u32 s{S_STEP}, {O.get('snap', 30)}")
            for i in range(NST): A(f"s_cmov_b32 s{94 + i}, s{S_T + 2*i}")
        A(f"s_xor_b32 s{S_PH}, s{S_PH}, 1\ns_add_u32 s{S_STEP}, s{S_STEP}, 1")
        if red:
            gd = O.get("gd", [220, 140, 20])
            if red == 1:
                A(f"s_cmp_lt_u32 {IDX}, 16\ns_cbranch_scc1 L_glo{u}"); delay(A, gd[2]); A.label(f"L_glo{u}")
                delay(A, gd[0] - gd[2] - 20 - trc)
            else: delay(A, gd[1] - trc)
            gather(A, G1); stamp(A, "G")
            A(f"""v_and_b32 v{T1}, 16, v{L16}
v_lshlrev_b32 v{T1}, v{T1}, s{S_ONE}""")
            for j in range(4): A(f"v_cndmask_b32 v{SEL + j}, 0, v{T1}, s[{S_SEL+2*j}:{S_SEL+2*j+1}]")
            A(f"v_mov_b32 v{T1+5}, -1")
            if g2 is not None:
                delay(A, g2); gather(A, G2)
            reduce(A, G1)
            A(f"s_cbranch_vccnz L_gretry{u}"); side.append(("g", A.snap()))
            A.label(f"L_gback{u}")
            if gexit: A.join(*gexit)
            A(f"buffer_store_dword v{RA}, v{SP}, {WS}, s{S_AGW} offen{M.st}")
            if ex_at < 0: A(f"buffer_store_dword v{RA}, v{SP}, {WS}, s{S_EXW} offen sc1")
            stamp(A, "T1")
            A("s_barrier")
            A(f"buffer_store_dword v{T1+5}, v{SP}, {WS}, s{S_AGZ} offen{M.st}")
            A(f"s_not_b32 s{S_PHM}, s{S_PHM}")
        else:
            stamp(A, "G")
            A.wait_vm()
            stamp(A, "T1")
            if W == 3:
                A(f"v_cmp_gt_u32 vcc, s{S_NEED}, v{SP}")
                branch("k")()
            A("s_barrier")
        delay(A, O.get("ad", [200, 192, 192])[red])
        A(f"s_branch L_step{u}")
        return A.snap()
    A.loop(body)
    A.skip = None
    for kind, st in list(side):
        A.restore(st)
        if kind == "a":
            def al(A):
                A.label(f"L_aretry{u}")
                for i in range(len(sets)):
                    A(ld(sets[i], S_AGA))
                    r = sets[(i + 1) % len(sets)]
                    A(f"s_add_u32 {TMO}, {TMO}, 1")
                    A(f"ds_write_b128 v{L16}, {v(r, 4)} offset:{MEM + W * 1024}")
                    for x in chk(r, a0): A(x)
                    A(f"s_cbranch_vccz L_aback{u}")
                A(f"s_cmp_gt_u32 {TMO}, {TMO_MAX}\ns_cbranch_scc0 L_aretry{u}")
                st = A.snap(); A("s_branch " + M.fail)
                return st
            A.loop(al)
        elif kind in "fb":
            A.label(f"L_{kind}retry{u}"); A.force_wait("lgkmcnt(0)")
            if kind == "f": A(ld(b0, S_AG4))
            else: A(ld(b1, S_RMB)); A(ld(c0, S_RM9))
            tmo(A, M.fail); A.wait_vm()
            if kind == "b": A(f"ds_write_b128 v{L16}, {v(b1, 4)} offset:{MEM + (4 + W) * 1024}")
            for x in chk(b0, c1) if kind == "f" else chk2: A(x)
            A.wait_all()
            A(f"s_cbranch_vccnz L_{kind}retry{u}\ns_branch L_{kind}back{u}")
        elif kind == "g":
            A.label(f"L_gretry{u}")
            if g2 is None: gather(A, G2); delay(A, 100)
            def gl(A):
                A.label(f"L_gloop{u}")
                for again, regs in ((G1, G2), (G2, G1)):
                    gather(A, again)
                    A(f"s_add_u32 {TMO}, {TMO}, 1")
                    reduce(A, regs)
                    A(f"s_cbranch_vccz L_gback{u}")
                A(f"s_cmp_gt_u32 {TMO}, {TMO_MAX}\ns_cbranch_scc0 L_gloop{u}")
                st = A.snap(); A("s_branch " + M.fail)
                return st
            A.loop(gl)
        elif kind == "k":
            A.label(f"L_kretry{u}"); tmo(A, M.fail)
            A(f"""v_bfe_u32 v{SP}, v{L16}, 2, 5
buffer_load_dword v{SP}, v{SP}, {WS}, s{S_FKV} offen sc1
v_cmp_gt_u32 vcc, s{S_NEED}, v{SP}
s_cbranch_vccnz L_kretry{u}
s_branch L_kback{u}""")
        elif kind == "s":
            A.label(f"L_sretry{u}"); A.force_wait("lgkmcnt(0)")
            A(f"s_sub_u32 s3, s{S_KM0}, {W * 2048}\nv_add_u32 v{KR}, s3, v{L16}")
            for ks in range(4): xread(A, ks)
            for ks in range(4): A(mf(Sm, B0 + 4 * ks, B0 + 4 * ks, ks == 0))
            for xt, d in ((0, S0), (1, S1)):
                for ks, r in enumerate((d0, d1, b0, b1)): kfrag(A, xt, ks, r)
                for ks, r in enumerate((d0, d1, b0, b1)): A(mf(d, r, B0 + 4 * ks, ks == 0))
            truemax(A)
            for t in WL[:3]: lds_tile(A, W, t)
            A(f"v_add_u32 v{LB2}, 0x10000, v{L16}")
            owrite(A)
            zero(A, B4, 8); zero(A, c1, 4)
            A.force_wait("lgkmcnt(0)")
            A(f"s_branch L_sback{u}")
        elif kind == "l":
            A.label(f"L_last{u}")
            A(f"buffer_store_dwordx4 {v(B0 + 4 * W, 4)}, v{L16}, {WS}, s{S_PUB} offen offset:{W * 1024} sc1")
            A(f"buffer_store_dwordx2 {v(B2, 2)}, v{XW}, {WS}, s{S_PUB2} offen offset:{W * 512} sc1")
            A.wait_all(); A("s_barrier")
            if W == 2:
                A(f"v_mov_b32 v{SP}, 64\nbuffer_store_dword v{SP}, off, {WS}, s{S_FR} sc1")
            ev(A, O, 4, 8)
            if O.get("stamp"):
                A(f"s_lshl_b32 s100, {TEAM}, 5\ns_add_u32 s100, s100, {IDX}\ns_lshl_b32 s100, s100, 10\ns_add_u32 s100, s100, {lay.DBGOUT + W * 256}")
                A.force_wait("lgkmcnt(0)")
                A(f"s_sub_u32 s93, s{S_T}, s93\ns_sub_u32 s73, {TMO}, s73")
                for i in range(12): A(f"v_mov_b32 v{8 + i}, s{88 + i}")
                A("v_mov_b32 v20, s73")
                for i in range(16):
                    A(f"s_memrealtime s[30:31]\ns_memtime s[74:75]"); A.wait_lg(); A(f"v_mov_b32 v{24 + 2*i}, s30\nv_mov_b32 v{25 + 2*i}, s74\ns_nop {i % 7}")
                for i in range(12): A(f"buffer_store_dwordx4 {v(8 + 4 * i, 4)}, off, {WS}, s100 offset:{16 * i}")
            A("s_endpgm")

def role(A, M, O):
    u = M.sfx
    prologue(A, M, O)
    st = A.snap()
    A(f"""s_cmp_eq_u32 {WAVE}, 2
s_cbranch_scc1 L_rw2{u}
s_cmp_eq_u32 {WAVE}, 3
s_cbranch_scc1 L_rw3{u}
s_cmp_eq_u32 {WAVE}, 0
s_cbranch_scc1 L_rw0{u}
s_cmp_lt_u32 {IDX}, 16
s_cbranch_scc1 L_rw1{u}""")
    for lbl, W, red in ((None, 1, 0), ("L_rw0", 0, 1), ("L_rw1", 1, 2), ("L_rw2", 2, 0), ("L_rw3", 3, 0)):
        if lbl: A.label(lbl + u)
        A.restore(st)
        step(A, M, W, red, O)
```

```python
import sys
sys.path.insert(0, "tools")
from common import *
import importlib
NAME = "adaLN_cond__memory_aug_recurrent_mem_tr__glu_gated_reglu__prompt"
HEAD = open("cdna_kernels/%s.s.ref" % NAME).read().split("; Override launch")[0]

def generate(O):
    import role_r
    roles = O.get("roles", "rkp")
    A = Asm()
    att0 = O.get("attempt", 0)
    A(f"""s_cmp_ge_u32 s2, 256
s_cbranch_scc1 L_exit
{"s_memrealtime s[100:101]" if O.get("ev") else ""}
v_lshrrev_b32 v1, 6, v0
v_readfirstlane_b32 {WAVE}, v1
s_mov_b32 {TMO}, 0
s_mov_b32 s3, {att0}
s_branch L_start
L_exit:
s_endpgm
L_next:""")
    A.force_wait()
    A(f"""s_mov_b64 exec, -1
s_barrier
s_add_u32 s3, {S_ATT}, 1
L_start:
s_load_dwordx16 s[64:79], s[0:1], 0
s_load_dwordx16 s[80:95], s[0:1], 64
s_getreg_b32 s30, hwreg(HW_REG_XCC_ID)
s_mul_i32 s31, s3, {lay.REGION}
s_mov_b32 s28, s{KA+2*P_DBG}
s_mov_b32 s29, s{KA+2*P_DBG+1}
s_add_u32 s4, s{KA+2*P_WS}, s31
s_addc_u32 s5, s{KA+2*P_WS+1}, 0
s_mov_b32 s6, {lay.REGION}
s_mov_b32 s7, 0x20000
s_mov_b32 {S_ATT}, s3
s_and_b32 {S_BAD}, s30, 8
s_and_b32 s30, s30, 7
s_lshl_b32 s30, s30, 2
s_lshr_b32 {TEAM}, {O.get("map", 0x54327610)}, s30
s_and_b32 {TEAM}, {TEAM}, 7
s_lshr_b32 {IDX}, s2, 3
s_mov_b32 {S_CNT}, 0
s_cmp_eq_u32 s3, 0
s_cbranch_scc1 L_roles_f
s_cmp_eq_u32 s3, 1
s_cbranch_scc0 L_safe
s_mov_b32 {S_CNT}, 128
s_cmp_lg_u32 {WAVE}, 0
s_cbranch_scc1 L_notick
s_lshl_b32 s30, {TEAM}, 2
s_add_u32 s30, s30, 64
v_mov_b32 v1, s30
v_mov_b32 v2, 1
v_mov_b32 v3, 0
s_mov_b64 exec, 1
global_atomic_add v2, v1, v2, {DBG} sc0 sc1
ds_write_b32 v3, v2
s_mov_b64 exec, -1""")
    A.wait_all()
    A(f"""L_notick:
s_barrier
v_mov_b32 v3, 0
ds_read_b32 v2, v3
v_readfirstlane_b32 {IDX}, v2
s_barrier
s_and_b32 {IDX}, {IDX}, 31""")
    st0 = A.snap()
    for M in (Mode(False), Mode(True)):
        u = M.sfx
        if M.safe:
            A.label("L_safe")
            if not O.get("safe", True):
                A("s_branch L_fail_f"); break
            A(f"s_lshr_b32 {TEAM}, s2, 5\ns_and_b32 {IDX}, s2, 31\ns_mov_b32 {S_CNT}, 192\ns_mov_b32 {S_BAD}, 0")
        A.label(f"L_roles{u}")
        if O.get("ev"):
            ev(A, O, 1, 1); A(f"v_mov_b32 v1, s100\nbuffer_store_dword v1, off, {WS}, s3"); st0 = A.snap()
        A(f"""s_cmp_lt_u32 {TEAM}, 2
s_cbranch_scc1 L_role_r{u}
s_cmp_lt_u32 {TEAM}, 4
s_cbranch_scc1 L_role_k{u}""")
        for r, mod in (("p", "role_p"), ("k", "role_k"), ("r", "role_r")):
            A.label(f"L_role_{r}{u}"); A.restore(st0)
            if r in roles: importlib.import_module(mod).role(A, M, O)
            else:
                arrive(A, M, r + u, 8); A("s_endpgm")
        A.label(M.fail)
        A.restore(st0)
        A(f"""s_mov_b64 exec, 1
v_mov_b32 v1, 96
v_mov_b32 v2, 1
global_atomic_add v1, v2, {DBG} sc1
s_endpgm""")
    return f"""{HEAD}; @launch grid=(256,1,1) block=(256,1,1) lds=163840
.amdgcn_target "amdgcn-amd-amdhsa--gfx950"
.text
.globl {NAME}_kernel
.p2align 8
.type {NAME}_kernel,@function
{NAME}_kernel:
{A.text()}.section .rodata,"a"
.p2align 6
.amdhsa_kernel {NAME}_kernel
  .amdhsa_next_free_vgpr 512
  .amdhsa_next_free_sgpr 102
  .amdhsa_accum_offset 256
  .amdhsa_group_segment_fixed_size 0
  .amdhsa_kernarg_size 128
  .amdhsa_user_sgpr_count 2
  .amdhsa_user_sgpr_kernarg_segment_ptr 1
  .amdhsa_system_sgpr_workgroup_id_x 1
  .amdhsa_float_denorm_mode_32 3
.end_amdhsa_kernel
"""
if __name__ == "__main__":
    O = eval(sys.argv[2]) if len(sys.argv) > 2 else {}
    open(sys.argv[1], "w").write(generate(O))
```

```python
from asmgen import *
import lay

WS = "s[4:7]"
SA, SB, SC, SD = "s[8:11]", "s[12:15]", "s[16:19]", "s[20:23]"
TEAM, IDX, WAVE, TMO = "s24", "s25", "s26", "s27"
DBG = "s[28:29]"
KA = 64
P_X, P_MEM0, P_WQ, P_WK, P_WV, P_WO, P_SEG, P_BX, P_WG, P_WU, P_WD, P_C, P_WM, P_OUT, P_DBG, P_WS = range(16)
SIZES = {P_X: 2621440, P_MEM0: 10240, P_WQ: 5242880, P_WK: 5242880, P_WV: 5242880, P_WO: 5242880,
         P_WG: 640 * 1728 * 2, P_WU: 640 * 1728 * 2, P_WD: 640 * 1728 * 2, P_C: 1280, P_WM: 640 * 3840 * 2, P_OUT: 2621440}
OOB = 0x7FFFFFF0
TMO_MAX = 0x40000

def srd(A, base, p):
    A(f"""s_mov_b32 s{base}, s{KA+2*p}
s_mov_b32 s{base+1}, s{KA+2*p+1}
s_mov_b32 s{base+2}, {SIZES[p]}
s_mov_b32 s{base+3}, 0x20000""")

def lane(A, r):
    A(f"v_mbcnt_lo_u32_b32 v{r}, -1, 0\nv_mbcnt_hi_u32_b32 v{r}, -1, v{r}")

class Mode:
    def __init__(self, safe):
        self.safe = safe
        self.st = " sc1" if safe else ""
        self.sfx = "_s" if safe else "_f"
        self.fail = "L_fail" + self.sfx

def tmo(A, fail):
    A(f"s_add_u32 {TMO}, {TMO}, 1\ns_cmp_gt_u32 {TMO}, {TMO_MAX}\ns_cbranch_scc1 {fail}")

S_CNT, S_ATT, S_BAD = "s76", "s77", "s78"
def arrive(A, M, uid, t0, tag=None):
    A.wait_vm(tag)
    A(f"""s_barrier
s_cmp_lg_u32 {WAVE}, 0
s_cbranch_scc1 L_arr{uid}""")
    st = A.snap()
    A(f"""s_mul_i32 s3, {TEAM}, 66
s_and_b32 s3, s3, 0xc8
s_add_u32 s3, s3, {S_CNT}
v_mov_b32 v{t0+2}, s3
s_lshl_b32 s3, 1, {IDX}
v_mov_b32 v{t0}, s3
s_add_u32 s3, {S_BAD}, 0x10000
v_mov_b32 v{t0+1}, s3
s_mov_b64 exec, 1
global_atomic_add_x2 v{t0+2}, {v(t0, 2)}, {DBG} sc1
s_mov_b64 exec, -1
L_arr{uid}:""")
    A.join(st)

def census(A, M, uid, t0, lds):
    A(f"v_mov_b32 v{t0+3}, {lds}")
    A.wait_all()
    A(f"s_cmp_lg_u32 {WAVE}, 0\ns_cbranch_scc1 L_cenw{uid}")
    lane(A, t0 + 2)
    A(f"v_and_b32 v{t0+2}, 7, v{t0+2}\nv_mul_u32_u24 v{t0+2}, 66, v{t0+2}\nv_and_b32 v{t0+2}, 0xc8, v{t0+2}\nv_add_u32 v{t0+2}, {S_CNT}, v{t0+2}")
    A(f"""L_cen{uid}:
global_load_dwordx2 {v(t0, 2)}, v{t0+2}, {DBG} sc1""")
    tmo(A, M.fail)
    A(f"""v_cmp_eq_u32 s[30:31], -1, v{t0}
v_cmp_eq_u32 vcc, 0x200000, v{t0+1}
s_and_b64 s[30:31], s[30:31], vcc
v_lshrrev_b32 v{t0+1}, 16, v{t0+1}""")
    for k in (4, 2, 1): A(f"v_add_u32_dpp v{t0+1}, v{t0+1}, v{t0+1} row_ror:{k} row_mask:0xf bank_mask:0xf")
    A(f"""v_cmp_lt_u32 vcc, 255, v{t0+1}
s_cbranch_vccnz L_cend{uid}
s_sleep 12
s_branch L_cen{uid}
L_cend{uid}:
v_mov_b32 v{t0}, s30
ds_write_b32 v{t0+3}, v{t0}""")
    A.wait_all()
    A(f"""L_cenw{uid}:
s_barrier
ds_read_b32 v{t0}, v{t0+3}
v_cmp_ne_u32 vcc, -1, v{t0}
s_cbranch_vccnz {M.fail if M.safe else "L_next"}""")

def vote_class(A, M, pid, t0):
    A(f"""s_and_b32 s33, {pid}, 3
s_lshl_b32 s33, s33, 14
s_bfe_u32 s3, {pid}, 0x40002
s_lshl_b32 s3, s3, 7
s_add_u32 s33, s33, s3
s_add_u32 s33, s33, {lay.R_EX + 5632}
s_add_u32 s34, s33, 8192
s_mov_b32 s35, -1
s_mov_b32 s36, -1
s_mov_b64 exec, 1""")
    A.wait_all()
    for r in range(4):
        for c in range(2):
            A("s_memtime s[30:31]"); A.wait_lg()
            A(f"buffer_store_dword v{t0}, off, {WS}, s{33 + c} sc1"); A.wait_vm()
            A("s_memtime s[44:45]"); A.wait_lg()
            A(f"s_sub_u32 s3, s44, s30\ns_min_u32 s{35 + c}, s{35 + c}, s3")
    A(f"""s_cmp_lt_u32 s36, s35
s_cselect_b32 s3, 1, 0
s_add_u32 s3, s3, 0x10000
v_mov_b32 v{t0}, s3
s_lshl_b32 s3, {S_ATT}, 6
s_add_u32 s3, s3, 56
v_mov_b32 v{t0+1}, s3
global_atomic_add v{t0+1}, v{t0}, {DBG} sc1
s_mov_b64 exec, -1""")
def read_class(A, M, uid, t0):
    A(f"""s_lshl_b32 s3, {S_ATT}, 6
s_add_u32 s3, s3, 56
v_mov_b32 v{t0}, s3
L_cls{uid}:
global_load_dword v{t0+1}, v{t0}, {DBG} sc1""")
    tmo(A, M.fail)
    A(f"""v_readfirstlane_b32 s3, v{t0+1}
s_cmp_lt_u32 s3, 0x400000
s_cbranch_scc1 L_cls{uid}
s_and_b32 s3, s3, 0xffff
s_cmp_ge_u32 s3, 32
s_cselect_b32 s30, 8192, 0""")

def ev(A, O, i, t):
    if not O.get("ev"): return
    A.force_wait("lgkmcnt(0)")
    A(f"s_memrealtime s[30:31]\ns_lshl_b32 s3, {TEAM}, 5\ns_add_u32 s3, s3, {IDX}\ns_lshl_b32 s3, s3, 2\ns_add_u32 s3, s3, {WAVE}\ns_lshl_b32 s3, s3, 7\ns_add_u32 s3, s3, {lay.DBGOUT + 0x80000}")
    A(f"v_mov_b32 v{t}, s30\nbuffer_store_dword v{t}, off, {WS}, s3 offset:{4 * i}")
    A(f"s_memtime s[30:31]\nv_mov_b32 v{t}, s30\nbuffer_store_dword v{t}, off, {WS}, s3 offset:{4 * i + 32}")
```

```python
from common import *
import struct

IDXR, L16, LB2, XW, XR, RSA, GA, SP = range(8)
B0, B1, B2, B3, B4, B5, B6, B7 = (8 + 8 * i for i in range(8))
a0, a1, b0, b1, c0, c1, d0, d1 = B3, B3 + 4, B4, B4 + 4, B5, B5 + 4, B7, B7 + 4
STATIC0 = 72
MEM, XB, VMS, KB, VB, TILES = 0, 10240, 14336, 16384, 32768, 40960
OB = MEM + 5120
S_STEP, S_PH, S_PHM = 32, 33, 34
S_AGA, S_AG4, S_RMB, S_RM9 = 35, 36, 37, 38
S_AGW, S_AGZ, S_EXW, S_EXZ = 39, 40, 41, 42
S_RS = 43
S_GAT, S_GAT2 = 46, 47
S_KV, S_V, S_PUB, S_PUB2 = 48, 49, 50, 51
S_SLOT, S_OUTO, S_FKV, S_FR = 52, 53, 54, 55
S_CS, S_ONE, S_NEED, S_KM0 = 56, 57, 58, 59
S_AGL, S_EXO, S_EXR, S_RNG = 60, 61, 62, 63
S_SEL = 64
S_T = 76
ACC = {"k": (B0, B0 + 4), "q": (B1, B1 + 4), "v": (B2, B2 + 4)}
AGS, EXS = 5120, 16384

def f32bits(x): return struct.unpack("<I", struct.pack("<f", x))[0]

def p1_order():
    o = []
    for ks in range(5):
        if ks in (0, 2): o += [("k",ks,0),("q",ks,0),("q",ks,1),("v",ks,0),("v",ks,1),("k",ks,1)]
        else: o += [("k",ks,0),("k",ks,1),("q",ks,0),("q",ks,1),("v",ks,0),("v",ks,1)]
    o += [("k",5,0),("k",5,1),("k",6,0),("k",6,1),("k",7,0),("k",8,0),("k",9,0),("k",7,1),("k",8,1),("k",9,1)]
    o += [("q",ks,t) for t in range(2) for ks in range(5, 10)]
    for ks in (7, 9, 6, 5, 8): o += [("v",ks,0),("v",ks,1)]
    return o
P1 = p1_order()
P4 = [("o", x, t) for x in (4, 0, 1, 2, 3) for t in range(2)]
WL = [P4[i] for i in (0, 1, 2, 3, 9)]
PLS = (0, 5, 12, 17, 22, 27, 32, 37, 42, 47)
PL = [P1[i] for i in PLS]
LDS_PAIRS = [WL[0][:2], WL[2][:2], ("k", 0), ("k", 2)]
LORDER = WL[:4] + PL[:4] + [WL[4]] + PL[4:]
LAND = {t: B7 for t in PL}
LAND.update({WL[0]: B0, WL[1]: B1, WL[2]: B7, WL[3]: B6, WL[4]: B0})
SRC = {}
for i, t in enumerate(LORDER): SRC[t] = ("lds", i)
_n = 0
for m in "qkvo":
    for ks in range(5 if m == "o" else 10):
        for t in range(2):
            if (m, ks, t) not in SRC:
                SRC[(m, ks, t)] = ("reg", STATIC0 + 8 * _n); _n += 1
assert STATIC0 + 8 * _n == 512, _n
def breg(tile): return ur(SRC[tile][1] if SRC[tile][0] == "reg" else LAND[tile], 8)

def prologue(A, M, O):
    u = M.sfx
    GQ, GO, TQ, TO, TA, W16, LN, T = range(8)
    srd(A, 8, P_WQ); srd(A, 12, P_WK); srd(A, 16, P_WV); srd(A, 20, P_WO)
    lane(A, LN)
    A(f"""s_lshl_b32 s32, {WAVE}, 6
s_lshl_b32 s3, {IDX}, 8
s_add_u32 s3, s3, s32
s_mul_i32 s33, {TEAM}, {320 * 8192}
s_sub_u32 s34, {320 * 8192}, s33
s_lshl_b32 s35, {WAVE}, 10
v_lshrrev_b32 v{T}, 2, v{LN}
v_and_b32 v{TA}, 3, v{LN}
v_lshlrev_b32 v{GQ}, 13, v{T}
v_lshl_add_u32 v{GQ}, v{TA}, 4, v{GQ}
v_add_u32 v{GQ}, s3, v{GQ}
s_mul_i32 s3, {IDX}, 163840
s_mul_i32 s30, {TEAM}, 640
s_add_u32 s3, s3, s30
v_mul_u32_u24 v{GO}, 1280, v{T}
v_lshl_add_u32 v{GO}, v{TA}, 4, v{GO}
v_add_u32 v{GO}, s3, v{GO}
s_and_b32 s37, s32, 64
s_lshr_b32 s30, {WAVE}, 1
s_mul_i32 s30, s30, {64 * 1280}
s_add_u32 s37, s37, s30
s_add_u32 s37, s37, 512""")
    pairs = [(m, ks) for m in O.get("worder", "kqvo") for ks in range(5 if m == "o" else 10) if (m, ks) not in LDS_PAIRS]
    pairs = pairs[:-3] + LDS_PAIRS + pairs[-3:]
    NA = 7
    assert len(pairs) % NA == 0
    def dma(n):
        m, ks = pairs[n]
        for i in range(4):
            if m != "o": so = f"s_add_u32 s36, s{33 if ks < 5 else 34}, {(64 * (ks % 5) + 16 * i) * 8192}"
            elif ks < 4: so = f"s_add_u32 s36, s32, {(64 * (ks & 1) + 16 * i) * 1280 + (ks >> 1) * 256}"
            else: so = f"s_add_u32 s36, s37, {16 * i * 1280}"
            A(f"s_add_u32 m0, s35, {TILES + (n % NA) * 16384 + i * 4096}\n{so}")
            A(f"buffer_load_dwordx4 v{GO if m == 'o' else GQ}, {dict(q=SA, k=SB, v=SC, o=SD)[m]}, s36 offen{O.get('wnt', '')} lds", tag=f"p{n}")
    A(f"""v_bfe_u32 v8, v{LN}, 5, 1
v_bfe_u32 v9, v{LN}, 4, 1
v_bfe_u32 v10, v{LN}, 3, 1
v_bfe_u32 v11, v{LN}, 2, 1
s_min_u32 s41, {WAVE}, 1
s_lshr_b32 s38, {IDX}, s41
s_lshl_b32 s3, {WAVE}, 5
s_add_u32 s38, s38, s3
s_and_b32 s42, {IDX}, s41
s_mul_i32 s30, {TEAM}, {lay.R_RSS}
s_add_u32 s30, s30, {lay.R_RS}
s_lshl_b32 s{S_GAT}, s38, 12
s_add_u32 s{S_GAT}, s{S_GAT}, s30
s_lshl_b32 s3, s42, 6
s_add_u32 s{S_GAT}, s{S_GAT}, s3
s_add_u32 s{S_GAT2}, s{S_GAT}, 32768
s_lshr_b32 s39, s38, 2
s_lshl_b32 s{S_OUTO}, s39, 9
s_and_b32 s40, s38, 3
s_lshl_b32 s3, s40, 6
s_add_u32 s{S_OUTO}, s{S_OUTO}, s3
s_lshl_b32 s3, {WAVE}, 14
s_lshl_b32 s{S_FR}, {IDX}, 7
s_add_u32 s{S_RS}, s3, s{S_FR}
s_add_u32 s{S_RS}, s{S_RS}, s30
s_add_u32 s{S_RS+1}, s{S_RS}, 65536
s_add_u32 s{S_RS+2}, s{S_RS}, 131072
s_add_u32 s{S_FKV}, s{S_FR}, {lay.FLG_KV}
s_lshl_b32 s3, {TEAM}, 2
s_add_u32 s{S_FR}, s{S_FR}, s3
s_add_u32 s{S_FR}, s{S_FR}, {lay.FLG_R}
s_lshl_b32 s{S_AGL}, {TEAM}, 14
s_add_u32 s{S_AGL}, s{S_AGL}, {lay.R_AG}
s_mul_i32 s{S_EXO}, {TEAM}, {3 * EXS}
s_sub_u32 s{S_EXR}, {lay.R_EX + 3 * EXS}, s{S_EXO}
s_add_u32 s{S_EXO}, s{S_EXO}, {lay.R_EX}
v_lshrrev_b32 v12, 4, v{LN}
v_and_b32 v13, 15, v{LN}
v_lshlrev_b32 v14, 12, v12
v_lshl_add_u32 v14, v13, 3, v14
v_mov_b32 v16, 1
v_mov_b32 v17, 1
v_mov_b32 v18, 0""")
    for j in range(3): A(f"buffer_store_dwordx2 v[16:17], v14, {WS}, s{S_RS+j} offen{M.st}")
    A(f"""s_mov_b32 s96, s{KA+2*P_MEM0}
s_mov_b32 s97, s{KA+2*P_MEM0+1}
s_mov_b32 s98, 10240
s_mov_b32 s99, 0x20000
s_mul_i32 s40, s40, 2560
s_lshl_b32 s39, s39, 6
s_add_u32 s39, s39, s40
s_mul_i32 s3, {TEAM}, 640
s_add_u32 s101, s39, s3
v_and_b32 v15, 1, v{LN}
v_bfe_u32 v20, v{LN}, 1, 1
v_lshlrev_b32 v23, 8, v20
v_lshl_add_u32 v23, v11, 5, v23
v_lshl_add_u32 v23, v15, 4, v23
s_xor_b32 s3, s41, 1
v_and_b32 v25, s3, v12
v_add_u32 v25, s42, v25
v_lshl_add_u32 v25, v25, 1, v8
v_lshl_add_u32 v23, v25, 2, v23
v_add_u32 v23, s{S_OUTO}, v23
v_mov_b32 v24, -1
s_cmp_ge_u32 s38, 40
s_cbranch_scc1 L_rinit{u}""")
    st0 = A.snap()
    for sl in range(3):
        A(f"s_add_u32 s3, s{S_AGL}, {sl * AGS}\nbuffer_store_dword v24, v23, {WS}, s3 offen{M.st}")
        for cl in range(2): A(f"s_add_u32 s3, s{S_EXO}, {sl * EXS + cl * 8192}\nbuffer_store_dword v24, v23, {WS}, s3 offen sc1")
    A.label(f"L_rinit{u}"); A.join(st0)
    A(f"""v_lshlrev_b32 v19, 3, v{LN}
v_mov_b32 v20, {OOB}
s_cmp_eq_u32 {WAVE}, 3
s_cselect_b32 s3, 2, 0
v_cmp_gt_u32 vcc, s3, v{LN}
v_cndmask_b32 v19, v20, v19, vcc""")
    A(f"buffer_store_dword v18, v19, {WS}, s{S_FR} offen sc1", tag="init")
    DEP = O.get("wdep", 3)
    for n in range(DEP):
        dma(n)
        if n == 0: arrive(A, M, "r" + u, 16, "init")
        else: A("s_barrier")
    A(f"""v_lshlrev_b32 v{W16}, 4, v{LN}
v_add_u32 v{W16}, s35, v{W16}
v_lshlrev_b32 v{TA}, 3, v{TA}
v_add_u32 v{TA}, s35, v{TA}
v_lshl_add_u32 v{TQ}, v8, 12, v{TA}
v_lshl_add_u32 v{TQ}, v9, 9, v{TQ}
v_lshl_add_u32 v{TQ}, v11, 7, v{TQ}
v_lshl_add_u32 v{TQ}, v10, 6, v{TQ}
v_lshl_add_u32 v{TO}, v9, 12, v{TA}
v_lshl_add_u32 v{TO}, v10, 5, v{TO}
v_lshl_add_u32 v{TO}, v8, 8, v{TO}
v_lshl_add_u32 v{TO}, v11, 6, v{TO}""")
    held = {}
    for n, (m, ks) in enumerate(pairs):
        A.wait_vm(f"p{n}")
        A(f"v_add_u32 v{TA}, {TILES + (n % NA) * 16384}, v{TO if m == 'o' else TQ}")
        dst = []
        for t in range(2):
            kind, w = SRC[(m, ks, t)]
            if kind == "reg": d = w
            elif 8 <= w < 14: d = B2 + 8 * (w - 8); held[w] = d
            else: d = B0 + 8 * t
            dst.append(d)
            for qd in range(4):
                off = (qd >> 1) * 512 + (qd & 1) * 128 + 8192 * t if m == "o" else (qd >> 1) * 8192 + (qd & 1) * 256 + 32 * t
                A(f"ds_read_b64_tr_b16 {ur(d + 2 * qd, 2)}, v{TA} offset:{off}")
        A.wait_lg()
        if O.get("wbar", 1) and n + DEP < len(pairs): A("s_barrier")
        if n + DEP < len(pairs): dma(n + DEP)
        for t in range(2):
            kind, w = SRC[(m, ks, t)]
            if kind == "lds" and w not in held:
                A(f"v_add_u32 v{T}, {TILES + w * 8192}, v{W16}")
                for hf in range(2): A(f"ds_write_b128 v{T}, {v(dst[t] + 4 * hf, 4)} offset:{4096 * hf}")
    A(f"s_cmp_eq_u32 {WAVE}, 3\ns_cselect_b32 s3, s{S_FR}, 0x40000000\nv_mov_b32 v{T}, 1\nbuffer_store_dword v{T}, off, {WS}, s3 offset:8 sc1")
    for w, d in held.items():
        A(f"v_add_u32 v{T}, {TILES + w * 8192}, v{W16}")
        for hf in range(2): A(f"ds_write_b128 v{T}, {v(d + 4 * hf, 4)} offset:{4096 * hf}")
    A.wait_all()
    ev(A, O, 2, 8)
    A(f"""v_mov_b32 v8, v{LN}
v_lshrrev_b32 v9, 4, v8
v_and_b32 v10, 15, v8
v_lshlrev_b32 v{L16}, 4, v8
v_add_u32 v{LB2}, 0x10000, v{L16}
v_lshrrev_b32 v11, 5, v8
v_lshlrev_b32 v11, 6, v11
v_lshlrev_b32 v12, 3, v10
v_xor_b32 v11, v11, v12
v_lshl_add_u32 v{XW}, v9, 7, v11
v_lshrrev_b32 v11, 2, v8
v_lshlrev_b32 v11, 3, v11
v_bfe_u32 v13, v8, 1, 1
v_lshlrev_b32 v14, 6, v13
v_xor_b32 v11, v11, v14
v_and_b32 v14, 3, v8
v_lshl_add_u32 v{XR}, v14, 7, v11
v_lshl_add_u32 v{RSA}, v9, 12, v12
v_lshrrev_b32 v{GA}, 2, v8
v_lshlrev_b32 v{GA}, 7, v{GA}
v_lshl_add_u32 v{GA}, v14, 4, v{GA}
v_and_b32 v15, 1, v8
v_mul_u32_u24 v{IDXR}, 0xaaaa, v13
v_add_u32 v{IDXR}, 0x4444, v{IDXR}
v_bfe_u32 v11, v8, 2, 1
v_lshlrev_b32 v{SP}, 8, v13
v_lshl_add_u32 v{SP}, v11, 5, v{SP}
v_lshl_add_u32 v{SP}, v15, 4, v{SP}
s_xor_b32 s3, s41, 1
v_and_b32 v25, s3, v9
v_add_u32 v25, s42, v25
v_lshrrev_b32 v26, 5, v8
v_lshl_add_u32 v25, v25, 1, v26
v_lshl_add_u32 v{SP}, v25, 2, v{SP}
v_add_u32 v{SP}, s{S_OUTO}, v{SP}
v_mul_u32_u24 v19, 1280, v15
v_lshl_add_u32 v19, v13, 5, v19
v_lshl_add_u32 v19, v25, 3, v19
v_lshl_add_u32 v19, v11, 1, v19
s_mov_b32 s100, s38
buffer_load_ushort v21, v19, s[96:99], s101 offen
buffer_load_ushort v22, v19, s[96:99], s101 offen offset:4""")
    for j in range(4):
        mk = sum(3 << (8 * b + 2 * j) for b in range(4))
        A(f"s_mov_b32 s{S_SEL+2*j}, {mk}\ns_mov_b32 s{S_SEL+2*j+1}, {mk}")
    A(f"""s_mov_b32 s{S_CS}, {f32bits(lay.C_SCALE)}
s_mov_b32 s{S_ONE}, 0x3f80
s_mov_b32 s74, 0x3f803f80
s_mov_b32 s75, 0x3f803f80
s_mov_b32 s{S_RNG}, {120 << 23}
s_mov_b32 s{S_STEP}, 0
s_mov_b32 s{S_PH}, 0
s_mov_b32 s{S_PHM}, 0
s_mov_b32 s{S_SLOT}, 0
s_mul_i32 s{S_KV}, {IDX}, {lay.QKV_H}
s_lshl_b32 s3, {WAVE}, 11
s_add_u32 s{S_KV}, s{S_KV}, s3
s_add_u32 s{S_KV}, s{S_KV}, {lay.QKV}
s_add_u32 s{S_V}, s{S_KV}, 8192
s_add_u32 s{S_KM0}, s3, {KB}
s_mul_i32 s{S_PUB}, {IDX}, {lay.KM_H}
s_add_u32 s{S_PUB}, s{S_PUB}, {lay.KMVM - lay.KM_S}
s_add_u32 s{S_PUB2}, s{S_PUB}, 4096
s_cmp_eq_u32 {TEAM}, 0
s_cselect_b32 s30, 0, 0x40000000
s_cselect_b32 s31, 0x40000000, 0
s_add_u32 s{S_PUB}, s{S_PUB}, s30
s_add_u32 s{S_PUB2}, s{S_PUB2}, s31
v_lshl_or_b32 v21, v22, 16, v21
v_min_u32 v21, -2, v21""")
    census(A, M, "r" + u, 8, XB)
    A(f"""v_bfe_u32 v8, v{L16}, 2, 5
L_rkv{u}:
buffer_load_dword v9, v8, {WS}, s{S_FKV} offen sc1""")
    tmo(A, M.fail)
    A(f"""v_cmp_gt_u32 vcc, 2, v9
s_cbranch_vccz L_rkvok{u}
s_sleep 4
s_branch L_rkv{u}
L_rkvok{u}:""")
    if "cls" in O: A(f"s_mov_b32 s30, {O['cls'] * 8192}")
    else: read_class(A, M, "r" + u, 8)
    A(f"""s_add_u32 s{S_EXO}, s{S_EXO}, s30
s_add_u32 s{S_EXR}, s{S_EXR}, s30
s_lshl_b32 s3, {WAVE}, 10
s_add_u32 s{S_AGA}, s{S_AGL}, s3
s_add_u32 s{S_RMB}, s{S_EXR}, s3
s_lshr_b32 s3, s3, 2
s_add_u32 s3, s3, 4096
s_add_u32 s{S_AG4}, s{S_AGL}, s3
s_add_u32 s{S_RM9}, s{S_EXR}, s3
s_add_u32 s{S_EXZ}, s{S_EXO}, {2 * EXS}
s_mov_b32 m0, s{S_KM0}
s_xor_b32 s{S_KM0}, s{S_KM0}, 8192
buffer_load_dwordx4 v{L16}, {WS}, s{S_KV} offen sc1 lds
buffer_load_dwordx4 v{L16}, {WS}, s{S_KV} offen offset:1024 sc1 lds
s_lshl_b32 s3, {WAVE}, 11
s_add_u32 m0, s3, {VB}
s_add_u32 s{S_KV}, s{S_KV}, {lay.QKV_S}
buffer_load_dwordx4 v{L16}, {WS}, s{S_V} offen sc1 lds
buffer_load_dwordx4 v{L16}, {WS}, s{S_V} offen offset:1024 sc1 lds
s_add_u32 s{S_V}, s{S_V}, {lay.QKV_S}
s_cmp_ge_u32 s100, 40
s_cbranch_scc1 L_rm0{u}
buffer_store_dword v21, v{SP}, {WS}, s{S_AGL} offen{M.st}
buffer_store_dword v21, v{SP}, {WS}, s{S_EXO} offen sc1
L_rm0{u}:""")
    ev(A, O, 3, 8)
    A.force_wait()

def lds_tile(A, W, tile, hi=False):
    w = SRC[tile][1]; d = LAND[tile]
    for hf in range(2):
        o = TILES + w * 8192 + hf * 4096 + W * 1024
        base = L16 if o < 65536 else LB2
        assert o < 65536 or (o >> 16) == (2 if hi else 1), (tile, o, hi)
        A(f"ds_read_b128 {v(d + 4 * hf, 4)}, v{base} offset:{o & 0xffff}")
def zero(A, r, n):
    for i in range(0, n, 2): A(f"v_mov_b64 {v(r + i, 2)}, 0")
def delay(A, cyc):
    d = cyc // 4
    while d > 0: A(f"s_nop {min(d, 16) - 1}"); d -= 16

class Stamps:
    def __init__(self, names): self.names = names or []
    def __call__(self, A, name):
        if name in self.names:
            i = self.names.index(name); A.raw(f"s_memtime s[{S_T + 2 * i}:{S_T + 2 * i + 1}]")

def step(A, M, W, red, O):
    u = f"{W}{red}{M.sfx}"
    stamp = Stamps(O.get("stamp"))
    NST = 6
    side = []
    L4 = b1 + 1
    mk4 = lambda t=L4: f"v_lshrrev_b32 v{t}, 2, v{L16}"
    ld = lambda r, so, t=L4: f"buffer_load_dwordx4 {v(r, 4)}, v{L16}, {WS}, s{so} offen sc1\nbuffer_load_dword v{r + 4}, v{t}, {WS}, s{so + 1} offen sc1"
    wr = lambda r, base, t=L4: [f"ds_write_b128 v{L16}, {v(r, 4)} offset:{base + W * 1024}", f"ds_write_b32 v{t}, v{r + 4} offset:{base + 4096 + W * 256}"]
    chk = lambda r, t: [f"v_max3_u32 v{t}, v{r}, v{r+1}, v{r+2}", f"v_max3_u32 v{t}, v{t}, v{r+3}, v{r+4}", f"v_cmp_eq_u32 vcc, -1, v{t}"]
    def gather(A, regs):
        for i in range(4):
            so, off = (S_GAT, 1024 * i) if red == 1 else (S_GAT2 if i >> 1 else S_GAT, 2048 * (i & 1))
            A(f"buffer_load_dwordx4 {v(regs[i], 4)}, v{L16 if red == 1 else GA}, {WS}, s{so} offen offset:{off} sc1")
    def frag(A, j, r): A(f"ds_read_b128 {v(r, 4)}, v{L16} offset:{MEM + j * 1024}")
    def xread(A, ks):
        for hf in range(2): A(f"ds_read_b64_tr_b16 {v(B0 + 4 * ks + 2 * hf, 2)}, v{XR} offset:{XB + (4 * hf + ks) * 512}")
    KR = LB2
    def kfrag(A, xt, ks, r): A(f"ds_read_b128 {v(r, 4)}, v{KR} offset:{(xt * 4 + ks) * 1024}")
    def prep(A):
        for hf in range(2): A(f"ds_read_b128 {v(B6 + 4 * hf, 4)}, v{L16} offset:{VB + (2 * W + hf) * 1024}")
        lds_tile(A, W, PL[0])
        zero(A, B0, 24)
    cv = lambda d, r: f"v_cvt_pk_bf16_f32 v{d}, v{r}, v{r + 1}"
    mf = lambda d, x, y, first: f"v_mfma_f32_16x16x32_bf16 {v(d, 4)}, {v(x, 4)}, {v(y, 4)}, {'0' if first else v(d, 4)}"
    m16 = lambda d, x, y, first: f"v_mfma_f32_16x16x16_bf16 {v(d, 4)}, {v(x, 2)}, {v(y, 2)}, {'0' if first else v(d, 4)}"
    ex = lambda r: f"v_exp_f32 v{r}, v{r}"
    Sm, S0, S1, PX, LL, O0, O1, OP = c1, c0, a0, a1, c1, b1, b0, c0
    def owrite(A, tag=None):
        A(f"""v_rcp_f32 v{LL}, v{LL}
v_rcp_f32 v{LL+1}, v{LL+1}
v_mul_f32 v{O0}, v{O0}, v{LL}
v_mul_f32 v{O0+1}, v{O0+1}, v{LL+1}""")
        A(cv(OP, O0)); A(cv(OP + 1, O0))
        A(f"ds_write_b64 v{XW}, {v(OP, 2)} offset:{OB + W * 512}")
        A(f"v_pk_mul_f32 {v(O1, 2)}, {v(O1, 2)}, {v(LL, 2)}")
        A(cv(OP + 2, O1)); A(cv(OP + 3, O1))
        A(f"ds_write_b64 v{XW}, {v(OP + 2, 2)} offset:{OB + (4 + W) * 512}", tag=tag)
    def truemax(A):
        t, t2 = Sm, Sm + 1
        A(f"""v_max3_f32 v{t}, v{Sm+2}, v{Sm+3}, v{S0}
v_max3_f32 v{t}, v{t}, v{S0+1}, v{S0+2}
v_max3_f32 v{t}, v{t}, v{S0+3}, v{S1}
v_max3_f32 v{t}, v{t}, v{S1+1}, v{S1+2}
v_max_f32 v{t}, v{t}, v{S1+3}
v_mov_b32 v{t2}, v{t}
v_permlane32_swap_b32 v{t}, v{t2}
v_max_f32 v{t}, v{t}, v{t2}
v_mov_b32 v{t2}, v{t}
v_permlane16_swap_b32 v{t}, v{t2}
v_max_f32 v{t}, v{t}, v{t2}""")
        vals = [Sm + 2, Sm + 3] + [S0 + i for i in range(4)] + [S1 + i for i in range(4)]
        for r in vals: A(f"v_sub_f32 v{r}, v{r}, v{t}")
        for r in vals: A(ex(r))
        A(cv(B2 + 4, Sm + 2)); A(cv(B2 + 7, Sm + 2))
        A(cv(PX, S0)); A(cv(PX + 1, S0 + 2)); A(cv(PX + 2, S1)); A(cv(PX + 3, S1 + 2))
        A(m16(LL, B2 + 4, B2 + 2, True)); A(m16(O0, B2 + 4, B2, True)); A(m16(O1, B2 + 6, B2, True))
        A(m16(LL, PX, B2 + 2, False)); A(m16(LL, PX + 2, B2 + 2, False))
        A(mf(O0, PX, B6, False)); A(mf(O1, PX, B6 + 4, False))
    SEL, RA, T1 = B2, B2 + 4, B3
    g2 = O.get("g2", [60, 200])[red - 1]
    G1 = [B0, B0 + 4, B1, B1 + 4]; G2 = [B7, B7 + 4, B6, B6 + 4]
    def reduce(A, regs):
        for i, r in enumerate(regs):
            A(f"v_mfma_f32_16x16x32_bf16 {v(RA, 4)}, {v(r, 4)}, {v(SEL, 4)}, {'0' if i == 0 else v(RA, 4)}")
            A(f"v_bitop3_b32 v{T1 + min(i, 1)}, v{r}, v{r + 2}, s{S_PHM} bitop3:0x7e")
            if 0 < i < len(regs) - 1: A(f"v_or_b32 v{T1}, v{T1}, v{T1+1}")
        A(f"""v_bitop3_b32 v{T1}, v{T1}, v{T1+1}, 1 bitop3:0xa8
v_cmp_ne_u32 vcc, 0, v{T1}
s_nop 3""")
    def finish(A):
        A(f"""v_permlane32_swap_b32 v{RA}, v{RA+2}
v_permlane32_swap_b32 v{RA+1}, v{RA+3}
v_pk_add_f32 {v(RA, 2)}, {v(RA, 2)}, {v(RA + 2, 2)}""")
        if red == 2:
            A(f"""v_mov_b64 {v(RA + 2, 2)}, {v(RA, 2)}
v_permlane16_swap_b32 v{RA}, v{RA+2}
v_permlane16_swap_b32 v{RA+1}, v{RA+3}
v_pk_add_f32 {v(RA, 2)}, {v(RA, 2)}, {v(RA + 2, 2)}""")
        A(cv(RA, RA))
        A(f"v_min_u32 v{RA}, -2, v{RA}")
    gexit = []
    if red:
        keep = (list(A.out), A.snap(), A.n_nop, A.n_ins)
        for regs in (G1, G2):
            A.force_wait(); gather(A, regs); A("s_nop 7"); gexit.append(A.snap())
        A.out[:] = keep[0]; A.restore(keep[1]); A.n_nop, A.n_ins = keep[2:]
    if O.get("stamp"):
        for i in range(NST): stamp(A, O["stamp"][i])
        for i in range(88, 100): A(f"s_mov_b32 s{i}, 0")
    sets = [b0, c0]
    A(mk4())
    def acheck(A, r):
        w = wr(r, MEM); c = chk(r, a0)
        for x in (w[0], c[0], w[1], c[1], c[2]): A(x)
    aexit = []
    keep = (list(A.out), A.snap(), A.n_nop, A.n_ins)
    for r in sets:
        A.force_wait(); A(ld(r, S_AGA)); A(f"ds_write_b128 v{L16}, {v(a0, 4)}"); A("s_nop 7"); aexit.append(A.snap())
    A.out[:] = keep[0]; A.restore(keep[1]); A.n_nop, A.n_ins = keep[2:]
    A.skip = O.get("skip")

    def body(A):
        side.clear()
        A.raw(".p2align 4")
        A.label(f"L_step{u}")
        A(ld(sets[0], S_AGA)); delay(A, O.get("gap", 88)); A(ld(sets[1], S_AGA))
        prep(A)
        acheck(A, sets[0])
        A(f"s_cbranch_vccnz L_aretry{u}"); side.append(("a", A.snap()))
        A.label(f"L_aback{u}")
        A.join(*aexit)
        rb = O.get("rb", -1)
        if rb == -2: A(ld(c0, S_RMB))
        A.wait_lg()
        stamp(A, "A"); A("s_barrier"); stamp(A, "A2")
        frag(A, 0, a0)
        if rb == -1: A(ld(c0, S_RMB))
        frag(A, 1, a1)
        order = P1
        fb = {0: a0, 1: a1, 2: b0, 3: a0, 4: a1, 5: b0, 6: b1, 7: a0, 8: c0, 9: a1}
        N = {i: [] for i in range(90)}; V = {i: [] for i in range(90)}
        L = lambda t, hi=False: (lambda: lds_tile(A, W, t, hi))
        for i in range(1, 10): N[PLS[i - 1]] += [L(PL[i], i >= 6)]
        V[24] += [f"v_add_u32 v{LB2}, 0x10000, v{LB2}"]
        N[7] += [lambda: frag(A, 2, b0)]
        N[9] += [lambda: frag(A, 3, a0)]
        N[14] += [lambda: frag(A, 4, a1)]
        def branch(kind):
            def f():
                A(f"s_cbranch_vccnz L_{kind}retry{u}"); side.append((kind, A.snap())); A.label(f"L_{kind}back{u}")
            return f
        bp = O.get("bpos", 20)
        w_, c_ = wr(c0, MEM + 5120), chk(c0, c1 + 1)
        N[bp] += [w_[0]]; V[bp] += [c_[0]]
        N[bp + 1] += [lambda: A(w_[1], tag="bw")]; V[bp + 1] += [c_[1]]; V[bp + 2] += [c_[2]]
        N[bp + 4] += [branch("b")]
        N[bp + 5] += [lambda: A.wait_lg("bw"), "s_barrier", lambda: frag(A, 5, b0)]
        N[bp + 6] += [lambda: frag(A, 6, b1)]
        N[28] += [lambda: frag(A, 7, a0)]
        N[29] += [lambda: frag(A, 8, c0)]
        N[30] += [lambda: frag(A, 9, a1)]
        N[8] += [f"s_mov_b32 m0, s{S_KM0}", f"s_xor_b32 s{S_KM0}, s{S_KM0}, 8192"]
        kv = [f"buffer_load_dwordx4 v{L16}, {WS}, s{S_KV} offen sc1 lds",
              f"buffer_load_dwordx4 v{L16}, {WS}, s{S_KV} offen offset:1024 sc1 lds\ns_mov_b32 m0, {VB + W * 2048}",
              f"buffer_load_dwordx4 v{L16}, {WS}, s{S_V} offen sc1 lds", f"buffer_load_dwordx4 v{L16}, {WS}, s{S_V} offen offset:1024 sc1 lds"]
        for x, i in zip(kv, O.get("kvs", (bp + 6, 28, 31, 33))): N[i] += [x]
        N[10] += [f"ds_read_b64 {v(c1 + 2, 2)}, v{XW} offset:{VMS + W * 512}"]
        N[34] += [f"buffer_store_dwordx2 {v(c1 + 2, 2)}, v{XW}, {WS}, s{S_PUB2} offen offset:{W * 512} sc1"]
        N[35] += [f"ds_read_b64_tr_b16 {v(c1, 2)}, v{XR} offset:{XB + W * 512}", f"ds_read_b64_tr_b16 {v(c1 + 2, 2)}, v{XR} offset:{XB + (4 + W) * 512}"]
        N[40 + (W >> 1)] += [f"buffer_store_dwordx4 {v(c1, 4)}, v{L16}, {WS}, s{S_PUB} offen offset:{W * 1024} sc1"]
        if red:
            V[31] += [f"v_mov_b32 v{GA}, -1"]
            N[38] += [f"buffer_store_dword v{GA}, v{SP}, {WS}, s{S_EXZ} offen sc1"]
        if W == 2:
            N[19] += [f"s_sub_u32 s3, s{S_STEP}, 1\ns_max_i32 s3, s3, 0"]
            V[19] += [f"v_mov_b32 v{SP}, s3"]
            N[38] += [f"buffer_store_dword v{SP}, off, {WS}, s{S_FR} sc1"]
        if W == 3:
            V[19] += [f"v_bfe_u32 v{SP}, v{L16}, 2, 5"]
            N[38] += [f"buffer_load_dword v{SP}, v{SP}, {WS}, s{S_FKV} offen sc1"]
        N[1] += [f"s_mul_i32 s3, s{S_SLOT}, {AGS}\ns_add_u32 s{S_AGZ}, s{S_AGL}, s3\ns_lshl_b32 s30, s{S_SLOT}, 14"]
        N[2] += [f"s_add_u32 s{S_SLOT}, s{S_SLOT}, 1\ns_cmp_eq_u32 s{S_SLOT}, 3\ns_cselect_b32 s{S_SLOT}, 0, s{S_SLOT}"]
        N[3] += [f"s_mul_i32 s3, s{S_SLOT}, {AGS}\ns_add_u32 s{S_AGW}, s{S_AGL}, s3\ns_lshl_b32 s31, s{S_SLOT}, 14"]
        N[6] += [f"s_add_u32 s{S_EXW}, s{S_EXO}, s31\ns_add_u32 s31, s31, s{S_EXR}\ns_add_u32 s{S_AGA}, s{S_AGW}, {W * 1024}"]
        N[13] += [f"s_add_u32 s{S_AG4}, s{S_AGW}, {4096 + W * 256}\ns_add_u32 s{S_NEED}, s{S_STEP}, 3\ns_min_u32 s{S_NEED}, s{S_NEED}, 64"]
        N[36] += [f"s_add_u32 s{S_RMB}, s31, {W * 1024}\ns_add_u32 s{S_RM9}, s31, {4096 + W * 256}"]
        N[39] += [f"s_add_u32 s{S_KV}, s{S_KV}, {lay.QKV_S}\ns_add_u32 s{S_V}, s{S_V}, {lay.QKV_S}"]
        N[43] += [f"s_add_u32 s{S_PUB}, s{S_PUB}, {lay.KM_S}\ns_add_u32 s{S_PUB2}, s{S_PUB2}, {lay.KM_S}"]
        N[44] += [f"s_add_u32 s{S_EXZ}, s{S_EXO}, s30\ns_sub_u32 s3, s{S_KM0}, {W * 2048}"]
        N[45] += ["s_nop 1"]; N[49] += ["s_nop 1"]; N[50] += ["s_nop 0"]
        N[48] += [f"s_cmp_eq_u32 s{S_STEP}, 63"]
        k0, k1 = ACC["k"]; q0, q1 = ACC["q"]; v0_, v1_ = ACC["v"]
        ad = lambda r, i: f"v_add_f32 v{r + i}, v{r + i}, v{r + i + 2}"
        mu = lambda r, i: f"v_mul_f32 v{r + i}, s{S_CS}, v{r + i}"
        pv = [ad(k0, 0), ad(k0, 1), mu(k0, 0), mu(k0, 1), ad(k1, 0), ad(k1, 1), mu(k1, 0), mu(k1, 1), ad(q0, 0), ad(q0, 1), cv(c1 + 1, k0), cv(c1 + 3, k1)]
        for i, x in enumerate(pv): V[39 + i] += [x]
        V[49] += [cv(c1, q0)]
        N[50] += [f"ds_write_b64 v{XW}, {v(c1, 2)} offset:{XB + W * 512}"]
        V[51] += [ad(q1, 0), ad(q1, 1), cv(c1 + 2, q1), lambda: A(f"ds_write_b64 v{XW}, {v(c1 + 2, 2)} offset:{XB + (4 + W) * 512}", tag="xw")]
        V[52] += [f"v_add_u32 v{KR}, s3, v{L16}"]
        xb = O.get("xb", 55)
        N[xb] += [lambda: [A.wait_lg("xw"), stamp(A, "X"), A("s_barrier"), stamp(A, "X2"), xread(A, 0)]]
        N[xb + 1] += [lambda: [xread(A, 1)]]
        N[xb + 2] += [lambda: [xread(A, 2)]]
        N[xb + 3] += [lambda: [xread(A, 3)]]
        N[53] += [lambda: kfrag(A, 0, 0, d0), lambda: kfrag(A, 0, 1, d1)]
        N[54] += [lambda: kfrag(A, 0, 2, a0), lambda: kfrag(A, 0, 3, a1)]
        N[59] += [lambda: kfrag(A, 1, 0, b1)]
        N[60] += [lambda: kfrag(A, 1, 1, b0)]
        fast = O.get("fast", 1)
        V[61] += [ad(v0_, 0), ad(v0_, 1)]
        V[62] += [ad(v1_, 0), ad(v1_, 1)]
        V[63] += [cv(B2, v0_), cv(B2 + 1, v1_)]
        N[64] += [lambda: kfrag(A, 1, 2, d0)]
        V[64] += [f"v_mov_b64 {v(B2 + 2, 2)}, s[74:75]"]
        N[65] += [lambda: kfrag(A, 1, 3, d1)]
        V[65] += [f"v_mov_b32 v{B2 + 5}, 0"]
        N[66] += [lambda: [A(f"s_cbranch_scc1 L_last{u}"), side.append(("l", A.snap()))]]
        N[69] += [f"ds_write_b64 v{XW}, {v(B2, 2)} offset:{VMS + W * 512}"]
        V[69] += [f"v_mov_b32 v{B2 + 6}, 0"]
        if fast:
            V[67] += [ex(Sm + 3)]; V[66] += [ex(Sm + 2)]; V[68] += [cv(B2 + 4, Sm + 2), cv(B2 + 7, Sm + 2)]
            V[70] += [ex(S0)]; V[71] += [ex(S0 + 1)]; V[72] += [ex(S0 + 2)]; V[73] += [ex(S0 + 3)]
            N[72] += ["s_nop 0"]; N[73] += ["s_nop 0"]
            V[74] += [ex(S1), cv(PX, S0), cv(PX + 1, S0 + 2), ex(S1 + 1), ex(S1 + 2)]
            V[75] += [ex(S1 + 3), cv(PX + 2, S1), cv(PX + 3, S1 + 2), L(WL[0])]
            N[76] += [L(WL[1])]; N[77] += [L(WL[2])]
        seq = [f"v_smfmac_f32_16x16x64_bf16 {v(ACC[m][t], 4)}, {v(fb[ks], 4)}, {breg((m, ks, t))}, v{IDXR}" for m, ks, t in order]
        seq += [mf(Sm, B0 + 4 * ks, B0 + 4 * ks, ks == 0) for ks in range(4)]
        seq += [mf(S0, r, B0 + 4 * ks, ks == 0) for ks, r in enumerate((d0, d1, a0, a1))]
        seq += [mf(S1, r, B0 + 4 * ks, ks == 0) for ks, r in enumerate((b1, b0, d0, d1))]
        if fast:
            seq += [m16(LL, B2 + 4, B2 + 2, True), m16(O0, B2 + 4, B2, True), m16(O1, B2 + 6, B2, True), m16(LL, PX, B2 + 2, False),
                    m16(LL, PX + 2, B2 + 2, False), mf(O0, PX, B6, False), mf(O1, PX, B6 + 4, False)]
        def run(seq, N, V, pfx, tail=0):
            for i in range(len(seq) + tail):
                if i < len(seq): A(seq[i])
                for x in N[i]: x() if callable(x) else A(x)
                if V[i] and i + 1 < len(seq): A.prewait(seq[i + 1])
                for x in V[i]: x() if callable(x) else A(x)
                stamp(A, f"{pfx}{i}")
        run(seq, N, V, "p")
        if not fast:
            for t in WL[:3]: lds_tile(A, W, t)
            truemax(A)
        A(f"v_add_u32 v{LB2}, 0x10000, v{L16}")
        owrite(A, "ow")
        if fast:
            A(f"""v_subrev_u32 v{LL}, {67 << 23}, v{LL}
v_subrev_u32 v{LL+1}, {67 << 23}, v{LL+1}
v_max_u32 v{LL}, v{LL}, v{LL+1}
v_cmp_le_u32 vcc, s{S_RNG}, v{LL}""")
        zero(A, B4, 8); zero(A, c1, 4)
        if fast: branch("s")()
        lds_tile(A, W, WL[3])
        A.wait_lg("ow"); stamp(A, "O"); A("s_barrier"); stamp(A, "O2")
        OA = [B2, B2 + 4, B3, B3 + 4]
        for kk in (0, 1, 2, 3) if W < 2 else (2, 3, 0, 1):
            for hf in range(2): A(f"ds_read_b64_tr_b16 {v(OA[kk] + 2 * hf, 2)}, v{XR} offset:{OB + (4 * hf + kk) * 512}")
        acc = [b0, b1, c1]
        N = {i: [] for i in range(30)}; V = {i: [] for i in range(30)}
        N[2] += [L(WL[4])]; N[1] += ["s_nop 1"]
        rs = lambda g: (lambda: A(f"buffer_store_dwordx2 {v(acc[g], 2)}, v{RSA}, {WS}, s{S_RS + g} offen{M.st}", tag=f"rs{g}"))
        tg = lambda g: f"v_and_or_b32 v{acc[g]}, v{acc[g]}, -2, s{S_PH}"
        V[3] += [cv(c1, c1)]; V[4] += [cv(c1 + 1, c1 + 2), tg(2)]; N[5] += [rs(2), "s_nop 0"]
        N[6] += ["s_nop 1"]
        V[7] += [cv(b0, b0)]; V[8] += [cv(b0 + 1, b0 + 2), tg(0)]; N[9] += [rs(0)]
        V[9] += [cv(b1, b1), cv(b1 + 1, b1 + 2), tg(1), rs(1)]
        seq = [f"v_smfmac_f32_16x16x64_bf16 {v(acc[x >> 1], 4)}, {v(OA[2 * (x & 1 if x < 4 else W >> 1) + t], 4)}, {breg((m, x, t))}, v{IDXR}" for m, x, t in P4]
        run(seq, N, V, "w")
        stamp(A, "T0")
        trc = 0
        if O.get("stamp"):
            trc = 108
            A.force_wait("lgkmcnt(0)")
            A(f"s_cmp_ge_u32 s{S_STEP}, 4\ns_cselect_b32 s72, -1, 0")
            for i in range(NST - 1): A(f"s_sub_u32 s3, s{S_T + 2*i + 2}, s{S_T + 2*i}\ns_and_b32 s3, s3, s72\ns_add_u32 s{88 + i}, s{88 + i}, s3")
            A(f"s_cmp_eq_u32 s{S_STEP}, 4\ns_cmov_b32 s93, s{S_T}\ns_cmov_b32 s73, {TMO}\ns_cmov_b32 s101, 0\ns_cmp_eq_u32 s{S_STEP}, {O.get('snap', 30)}")
            for i in range(NST): A(f"s_cmov_b32 s{94 + i}, s{S_T + 2*i}")
        A(f"s_xor_b32 s{S_PH}, s{S_PH}, 1\ns_add_u32 s{S_STEP}, s{S_STEP}, 1")
        if red:
            gd = O.get("gd", [220, 140, 20])
            if red == 1:
                A(f"s_cmp_lt_u32 {IDX}, 16\ns_cbranch_scc1 L_glo{u}"); delay(A, gd[2]); A.label(f"L_glo{u}")
                delay(A, gd[0] - gd[2] - 20 - trc)
            else:
                A(f"v_and_b32 v{GA}, 0x3c0, v{L16}\nv_add_u32 v{GA}, v{GA}, v{L16}")
                delay(A, gd[1] - trc)
            gather(A, G1); stamp(A, "G")
            A(f"""v_and_b32 v{T1}, 16, v{L16}
v_lshlrev_b32 v{T1}, v{T1}, s{S_ONE}""")
            for j in range(4): A(f"v_cndmask_b32 v{SEL + j}, 0, v{T1}, s[{S_SEL+2*j}:{S_SEL+2*j+1}]")
            A(f"v_mov_b32 v{T1+5}, -1")
            if g2 is not None:
                delay(A, g2); gather(A, G2)
            reduce(A, G1)
            A(f"s_cbranch_vccnz L_gretry{u}"); side.append(("g", A.snap()))
            A.label(f"L_gback{u}")
            if gexit: A.join(*gexit)
            finish(A)
            A(f"buffer_store_dword v{RA}, v{SP}, {WS}, s{S_AGW} offen{M.st}")
            A(f"buffer_store_dword v{RA}, v{SP}, {WS}, s{S_EXW} offen sc1")
            stamp(A, "T1")
            A("s_barrier")
            A(f"buffer_store_dword v{T1+5}, v{SP}, {WS}, s{S_AGZ} offen{M.st}")
            A(f"s_not_b32 s{S_PHM}, s{S_PHM}")
        else:
            stamp(A, "G")
            A.wait_vm()
            stamp(A, "T1")
            if W == 3:
                A(f"v_cmp_gt_u32 vcc, s{S_NEED}, v{SP}")
                branch("k")()
            A("s_barrier")
        A(mk4())
        delay(A, O.get("ad", [200, 192, 192])[red])
        A(f"s_branch L_step{u}")
        return A.snap()
    A.loop(body)
    A.skip = None
    def cnt(kind):
        if O.get("stamp"): A(f"s_add_u32 s101, s101, {1 << (8 * 'fabg'.index(kind))}")
    for kind, st in list(side):
        A.restore(st)
        if kind == "a":
            def al(A):
                A.label(f"L_aretry{u}")
                for i in range(2):
                    A(ld(sets[i], S_AGA))
                    A(f"s_add_u32 {TMO}, {TMO}, 1"); cnt("a")
                    acheck(A, sets[1 - i])
                    A(f"s_cbranch_vccz L_aback{u}")
                A(f"s_cmp_gt_u32 {TMO}, {TMO_MAX}\ns_cbranch_scc0 L_aretry{u}")
                st = A.snap(); A("s_branch " + M.fail)
                return st
            A.loop(al)
        elif kind == "b":
            A.label(f"L_bretry{u}"); A.force_wait("lgkmcnt(0)")
            A(ld(c0, S_RMB)); cnt("b"); tmo(A, M.fail); A.wait_vm()
            for x in wr(c0, MEM + 5120) + chk(c0, c1 + 1): A(x)
            A.wait_all()
            A(f"s_cbranch_vccnz L_bretry{u}\ns_branch L_bback{u}")
        elif kind == "g":
            A.label(f"L_gretry{u}")
            if g2 is None: gather(A, G2); delay(A, 100)
            def gl(A):
                A.label(f"L_gloop{u}")
                for again, regs in ((G1, G2), (G2, G1)):
                    gather(A, again); cnt("g")
                    A(f"s_add_u32 {TMO}, {TMO}, 1")
                    reduce(A, regs)
                    A(f"s_cbranch_vccz L_gback{u}")
                A(f"s_cmp_gt_u32 {TMO}, {TMO_MAX}\ns_cbranch_scc0 L_gloop{u}")
                st = A.snap(); A("s_branch " + M.fail)
                return st
            A.loop(gl)
        elif kind == "k":
            A.label(f"L_kretry{u}"); tmo(A, M.fail)
            A(f"""v_bfe_u32 v{SP}, v{L16}, 2, 5
buffer_load_dword v{SP}, v{SP}, {WS}, s{S_FKV} offen sc1
v_cmp_gt_u32 vcc, s{S_NEED}, v{SP}
s_cbranch_vccnz L_kretry{u}
s_branch L_kback{u}""")
        elif kind == "s":
            A.label(f"L_sretry{u}"); A.force_wait("lgkmcnt(0)")
            A(f"s_sub_u32 s3, s{S_KM0}, {W * 2048}\nv_add_u32 v{KR}, s3, v{L16}")
            for ks in range(4): xread(A, ks)
            for ks in range(4): A(mf(Sm, B0 + 4 * ks, B0 + 4 * ks, ks == 0))
            for xt, d in ((0, S0), (1, S1)):
                for ks, r in enumerate((d0, d1, b0, b1)): kfrag(A, xt, ks, r)
                for ks, r in enumerate((d0, d1, b0, b1)): A(mf(d, r, B0 + 4 * ks, ks == 0))
            truemax(A)
            for t in WL[:3]: lds_tile(A, W, t)
            A(f"v_add_u32 v{LB2}, 0x10000, v{L16}")
            owrite(A)
            zero(A, B4, 8); zero(A, c1, 4)
            A.force_wait("lgkmcnt(0)")
            A(f"s_branch L_sback{u}")
        elif kind == "l":
            A.label(f"L_last{u}")
            A(f"buffer_store_dwordx4 {v(B0 + 4 * W, 4)}, v{L16}, {WS}, s{S_PUB} offen offset:{W * 1024} sc1")
            A(f"buffer_store_dwordx2 {v(B2, 2)}, v{XW}, {WS}, s{S_PUB2} offen offset:{W * 512} sc1")
            A.wait_all(); A("s_barrier")
            if W == 2:
                A(f"v_mov_b32 v{SP}, 64\nbuffer_store_dword v{SP}, off, {WS}, s{S_FR} sc1")
            ev(A, O, 4, 8)
            if O.get("stamp"):
                A(f"s_lshl_b32 s100, {TEAM}, 5\ns_add_u32 s100, s100, {IDX}\ns_lshl_b32 s100, s100, 10\ns_add_u32 s100, s100, {lay.DBGOUT + W * 256}")
                A.force_wait("lgkmcnt(0)")
                A(f"s_sub_u32 s93, s{S_T}, s93\ns_sub_u32 s73, {TMO}, s73")
                for i in range(12): A(f"v_mov_b32 v{8 + i}, s{88 + i}")
                A("v_mov_b32 v20, s73\nv_mov_b32 v21, s101")
                for i in range(16):
                    A(f"s_memrealtime s[30:31]\ns_memtime s[74:75]"); A.wait_lg(); A(f"v_mov_b32 v{24 + 2*i}, s30\nv_mov_b32 v{25 + 2*i}, s74\ns_nop {i % 7}")
                for i in range(12): A(f"buffer_store_dwordx4 {v(8 + 4 * i, 4)}, off, {WS}, s100 offset:{16 * i}")
            A("s_endpgm")

def role(A, M, O):
    u = M.sfx
    prologue(A, M, O)
    st = A.snap()
    A(f"""s_cmp_eq_u32 {WAVE}, 2
s_cbranch_scc1 L_rw2{u}
s_cmp_eq_u32 {WAVE}, 3
s_cbranch_scc1 L_rw3{u}
s_cmp_eq_u32 {WAVE}, 0
s_cbranch_scc1 L_rw0{u}
s_cmp_lt_u32 {IDX}, 16
s_cbranch_scc1 L_rw1{u}""")
    for lbl, W, red in ((None, 1, 0), ("L_rw0", 0, 1), ("L_rw1", 1, 2), ("L_rw2", 2, 0), ("L_rw3", 3, 0)):
        if lbl: A.label(lbl + u)
        A.restore(st)
        step(A, M, W, red, O)
```

```python
import sys
sys.path.insert(0, "tools")
from common import *
import importlib
NAME = "adaLN_cond__memory_aug_recurrent_mem_tr__glu_gated_reglu__prompt"
HEAD = open("cdna_kernels/%s.s.ref" % NAME).read().split("; Override launch")[0]

def generate(O):
    import role_r
    roles = O.get("roles", "rkp")
    A = Asm()
    att0 = O.get("attempt", 0)
    A(f"""s_cmp_ge_u32 s2, 256
s_cbranch_scc1 L_exit
{"s_memrealtime s[100:101]" if O.get("ev") else ""}
v_lshrrev_b32 v1, 6, v0
v_readfirstlane_b32 {WAVE}, v1
s_mov_b32 {TMO}, 0
s_mov_b32 s3, {att0}
s_branch L_start
L_exit:
s_endpgm
L_next:""")
    A.force_wait()
    A(f"""s_mov_b64 exec, -1
s_barrier
s_add_u32 s3, {S_ATT}, 1
L_start:
s_load_dwordx16 s[64:79], s[0:1], 0
s_load_dwordx16 s[80:95], s[0:1], 64
s_getreg_b32 s30, hwreg(HW_REG_XCC_ID)
s_mul_i32 s31, s3, {lay.REGION}
s_mov_b32 s28, s{KA+2*P_DBG}
s_mov_b32 s29, s{KA+2*P_DBG+1}
s_add_u32 s4, s{KA+2*P_WS}, s31
s_addc_u32 s5, s{KA+2*P_WS+1}, 0
s_mov_b32 s6, {lay.REGION}
s_mov_b32 s7, 0x20000
s_mov_b32 {S_ATT}, s3
s_and_b32 {S_BAD}, s30, 8
s_and_b32 s30, s30, 7
s_lshl_b32 s30, s30, 2
s_lshr_b32 {TEAM}, {O.get("map", 0x54321706)}, s30
s_and_b32 {TEAM}, {TEAM}, 7
s_lshr_b32 {IDX}, s2, 3
s_mov_b32 {S_CNT}, 0
s_cmp_eq_u32 s3, 0
s_cbranch_scc1 L_roles_f
s_cmp_eq_u32 s3, 1
s_cbranch_scc0 L_safe
s_mov_b32 {S_CNT}, 16
s_cmp_lg_u32 {WAVE}, 0
s_cbranch_scc1 L_notick
s_mul_i32 s30, {TEAM}, 65
s_and_b32 s30, s30, 0xc4
s_add_u32 s30, s30, 48
v_mov_b32 v1, s30
v_mov_b32 v2, 1
v_mov_b32 v3, 0
s_mov_b64 exec, 1
global_atomic_add v2, v1, v2, {DBG} sc0 sc1
ds_write_b32 v3, v2
s_mov_b64 exec, -1""")
    A.wait_all()
    A(f"""L_notick:
s_barrier
v_mov_b32 v3, 0
ds_read_b32 v2, v3
v_readfirstlane_b32 {IDX}, v2
s_barrier
s_and_b32 {IDX}, {IDX}, 31""")
    st0 = A.snap()
    for M in (Mode(False), Mode(True)):
        u = M.sfx
        if M.safe:
            A.label("L_safe")
            if not O.get("safe", True):
                A("s_branch L_fail_f"); break
            A(f"s_lshr_b32 {TEAM}, s2, 5\ns_and_b32 {IDX}, s2, 31\ns_mov_b32 {S_CNT}, 32\ns_mov_b32 {S_BAD}, 0")
        A.label(f"L_roles{u}")
        if O.get("ev"):
            ev(A, O, 1, 1); A(f"v_mov_b32 v1, s100\nbuffer_store_dword v1, off, {WS}, s3"); st0 = A.snap()
        A(f"""s_cmp_lt_u32 {TEAM}, 2
s_cbranch_scc1 L_role_r{u}
s_cmp_lt_u32 {TEAM}, 4
s_cbranch_scc1 L_role_k{u}""")
        for r, mod in (("p", "role_p"), ("k", "role_k"), ("r", "role_r")):
            A.label(f"L_role_{r}{u}"); A.restore(st0)
            if r in roles: importlib.import_module(mod).role(A, M, O)
            else:
                arrive(A, M, r + u, 8); A("s_endpgm")
        A.label(M.fail)
        A.restore(st0)
        A(f"""s_mov_b64 exec, 1
v_mov_b32 v1, 252
v_mov_b32 v2, 1
global_atomic_add v1, v2, {DBG} sc1
s_endpgm""")
    return f"""{HEAD}; @launch grid=(256,1,1) block=(256,1,1) lds=163840
.amdgcn_target "amdgcn-amd-amdhsa--gfx950"
.text
.globl {NAME}_kernel
.p2align 8
.type {NAME}_kernel,@function
{NAME}_kernel:
{A.text()}.section .rodata,"a"
.p2align 6
.amdhsa_kernel {NAME}_kernel
  .amdhsa_next_free_vgpr 512
  .amdhsa_next_free_sgpr 102
  .amdhsa_accum_offset 256
  .amdhsa_group_segment_fixed_size 0
  .amdhsa_kernarg_size 128
  .amdhsa_user_sgpr_count 2
  .amdhsa_user_sgpr_kernarg_segment_ptr 1
  .amdhsa_system_sgpr_workgroup_id_x 1
  .amdhsa_float_denorm_mode_32 3
.end_amdhsa_kernel
"""
if __name__ == "__main__":
    O = eval(sys.argv[2]) if len(sys.argv) > 2 else {}
    open(sys.argv[1], "w").write(generate(O))
```

```python
from asmgen import *
import lay

WS = "s[4:7]"
SA, SB, SC, SD = "s[8:11]", "s[12:15]", "s[16:19]", "s[20:23]"
TEAM, IDX, WAVE, TMO = "s24", "s25", "s26", "s27"
DBG = "s[28:29]"
KA = 64
P_X, P_MEM0, P_WQ, P_WK, P_WV, P_WO, P_SEG, P_BX, P_WG, P_WU, P_WD, P_C, P_WM, P_OUT, P_DBG, P_WS = range(16)
SIZES = {P_X: 2621440, P_MEM0: 10240, P_WQ: 5242880, P_WK: 5242880, P_WV: 5242880, P_WO: 5242880,
         P_WG: 640 * 1728 * 2, P_WU: 640 * 1728 * 2, P_WD: 640 * 1728 * 2, P_C: 1280, P_WM: 640 * 3840 * 2, P_OUT: 2621440}
OOB = 0x7FFFFFF0
TMO_MAX = 0x40000

def srd(A, base, p):
    A(f"""s_mov_b32 s{base}, s{KA+2*p}
s_mov_b32 s{base+1}, s{KA+2*p+1}
s_mov_b32 s{base+2}, {SIZES[p]}
s_mov_b32 s{base+3}, 0x20000""")

def lane(A, r):
    A(f"v_mbcnt_lo_u32_b32 v{r}, -1, 0\nv_mbcnt_hi_u32_b32 v{r}, -1, v{r}")

class Mode:
    def __init__(self, safe):
        self.safe = safe
        self.st = " sc1" if safe else ""
        self.sfx = "_s" if safe else "_f"
        self.fail = "L_fail" + self.sfx

def tmo(A, fail):
    A(f"s_add_u32 {TMO}, {TMO}, 1\ns_cmp_gt_u32 {TMO}, {TMO_MAX}\ns_cbranch_scc1 {fail}")

S_CNT, S_ATT, S_BAD = "s76", "s77", "s78"
def arrive(A, M, uid, t0, tag=None):
    A.wait_vm(tag)
    A(f"""s_barrier
s_cmp_lg_u32 {WAVE}, 0
s_cbranch_scc1 L_arr{uid}""")
    st = A.snap()
    A(f"""s_mul_i32 s3, {TEAM}, 66
s_and_b32 s3, s3, 0xc8
s_add_u32 s3, s3, {S_CNT}
v_mov_b32 v{t0+2}, s3
s_lshl_b32 s3, 1, {IDX}
v_mov_b32 v{t0}, s3
s_add_u32 s3, {S_BAD}, 0x10000
v_mov_b32 v{t0+1}, s3
s_mov_b64 exec, 1
global_atomic_add_x2 v{t0+2}, {v(t0, 2)}, {DBG} sc1
s_mov_b64 exec, -1
L_arr{uid}:""")
    A.join(st)

def census(A, M, uid, t0, lds):
    A(f"v_mov_b32 v{t0+3}, {lds}")
    A.wait_all()
    A(f"s_cmp_lg_u32 {WAVE}, 0\ns_cbranch_scc1 L_cenw{uid}")
    lane(A, t0 + 2)
    A(f"v_and_b32 v{t0+2}, 7, v{t0+2}\nv_mul_u32_u24 v{t0+2}, 66, v{t0+2}\nv_and_b32 v{t0+2}, 0xc8, v{t0+2}\nv_add_u32 v{t0+2}, {S_CNT}, v{t0+2}")
    A(f"""L_cen{uid}:
global_load_dwordx2 {v(t0, 2)}, v{t0+2}, {DBG} sc1""")
    tmo(A, M.fail)
    A(f"""v_cmp_eq_u32 s[30:31], -1, v{t0}
v_cmp_eq_u32 vcc, 0x200000, v{t0+1}
s_and_b64 s[30:31], s[30:31], vcc
v_lshrrev_b32 v{t0+1}, 16, v{t0+1}""")
    for k in (4, 2, 1): A(f"v_add_u32_dpp v{t0+1}, v{t0+1}, v{t0+1} row_ror:{k} row_mask:0xf bank_mask:0xf")
    A(f"""v_cmp_lt_u32 vcc, 255, v{t0+1}
s_cbranch_vccnz L_cend{uid}
s_sleep 12
s_branch L_cen{uid}
L_cend{uid}:
v_mov_b32 v{t0}, s30
ds_write_b32 v{t0+3}, v{t0}""")
    A.wait_all()
    A(f"""L_cenw{uid}:
s_barrier
ds_read_b32 v{t0}, v{t0+3}
v_cmp_ne_u32 vcc, -1, v{t0}
s_cbranch_vccnz {M.fail if M.safe else "L_next"}""")

def vote_class(A, M, pid, t0):
    A(f"""s_and_b32 s33, {pid}, 3
s_lshl_b32 s33, s33, 15
s_bfe_u32 s3, {pid}, 0x40002
s_lshl_b32 s3, s3, 7
s_add_u32 s33, s33, s3
s_add_u32 s33, s33, {lay.R_EX + 5632}
s_mov_b32 s35, -1
s_mov_b32 s36, 0
s_mov_b32 s37, 0
s_mov_b64 exec, 1""")
    A.force_wait()
    A(f"""L_vote{M.sfx}:
s_and_b32 s34, s37, 3
s_lshl_b32 s3, s34, 13
s_add_u32 s3, s3, s33
s_memtime s[30:31]""")
    A.wait_lg()
    A(f"buffer_store_dword v{t0}, off, {WS}, s3 sc1"); A.wait_vm()
    A("s_memtime s[44:45]"); A.wait_lg()
    A(f"""s_sub_u32 s3, s44, s30
s_cmp_lt_u32 s3, s35
s_cselect_b32 s35, s3, s35
s_cselect_b32 s36, s34, s36
s_add_u32 s37, s37, 1
s_cmp_lt_u32 s37, 12
s_cbranch_scc1 L_vote{M.sfx}
s_mul_i32 s3, s36, 0x81
s_and_b32 s3, s3, 0x101
s_add_u32 s3, s3, 0x10000
v_mov_b32 v{t0}, s3
s_lshl_b32 s3, {S_ATT}, 6
s_add_u32 s3, s3, 56
v_mov_b32 v{t0+1}, s3
global_atomic_add v{t0+1}, v{t0}, {DBG} sc1
s_mov_b64 exec, -1""")
def read_class(A, M, uid, t0):
    A(f"""s_lshl_b32 s3, {S_ATT}, 6
s_add_u32 s3, s3, 56
v_mov_b32 v{t0}, s3
L_cls{uid}:
global_load_dword v{t0+1}, v{t0}, {DBG} sc1""")
    tmo(A, M.fail)
    A(f"""v_readfirstlane_b32 s3, v{t0+1}
s_cmp_lt_u32 s3, 0x400000
s_cbranch_scc1 L_cls{uid}
s_and_b32 s31, s3, 0xff
s_cmp_ge_u32 s31, 32
s_cselect_b32 s30, 8192, 0
s_bfe_u32 s31, s3, 0x80008
s_cmp_ge_u32 s31, 32
s_cselect_b32 s31, 0, 16384
s_add_u32 s30, s30, s31""")

def ev(A, O, i, t):
    if not O.get("ev"): return
    A.force_wait("lgkmcnt(0)")
    A(f"s_memrealtime s[30:31]\ns_lshl_b32 s3, {TEAM}, 5\ns_add_u32 s3, s3, {IDX}\ns_lshl_b32 s3, s3, 2\ns_add_u32 s3, s3, {WAVE}\ns_lshl_b32 s3, s3, 7\ns_add_u32 s3, s3, {lay.DBGOUT + 0x80000}")
    A(f"v_mov_b32 v{t}, s30\nbuffer_store_dword v{t}, off, {WS}, s3 offset:{4 * i}")
    A(f"s_memtime s[30:31]\nv_mov_b32 v{t}, s30\nbuffer_store_dword v{t}, off, {WS}, s3 offset:{4 * i + 32}")
```

```python
from common import *
import struct

IDXR, L16, LB2, XW, XR, RSA, GA, SP = range(8)
B0, B1, B2, B3, B4, B5, B6, B7 = (8 + 8 * i for i in range(8))
a0, a1, b0, b1, c0, c1, d0, d1 = B3, B3 + 4, B4, B4 + 4, B5, B5 + 4, B7, B7 + 4
STATIC0 = 72
MEM, XB, VMS, KB, VB, TILES = 0, 10240, 14336, 16384, 32768, 40960
OB = MEM + 5120
S_STEP, S_PH, S_PHM = 32, 33, 34
S_AGA, S_AG4, S_RMB, S_RM9 = 35, 36, 37, 38
S_AGW, S_AGZ, S_EXW, S_EXZ = 39, 40, 41, 42
S_RS = 43
S_GAT, S_GAT2 = 46, 47
S_KV, S_V, S_PUB, S_PUB2 = 48, 49, 50, 51
S_SLOT, S_OUTO, S_FKV, S_FR = 52, 53, 54, 55
S_CS, S_ONE, S_NEED, S_KM0 = 56, 57, 58, 59
S_AGL, S_EXO, S_EXR, S_RNG = 60, 61, 62, 63
S_SEL = 64
S_T = 76
ACC = {"k": (B0, B0 + 4), "q": (B1, B1 + 4), "v": (B2, B2 + 4)}
AGS, EXS = 5120, 32768

def f32bits(x): return struct.unpack("<I", struct.pack("<f", x))[0]

def p1_order():
    o = []
    for ks in range(5):
        if ks in (0, 2): o += [("k",ks,0),("q",ks,0),("q",ks,1),("v",ks,0),("v",ks,1),("k",ks,1)]
        else: o += [("k",ks,0),("k",ks,1),("q",ks,0),("q",ks,1),("v",ks,0),("v",ks,1)]
    o += [("k",5,0),("k",5,1),("k",6,0),("k",6,1),("k",7,0),("k",8,0),("k",9,0),("k",7,1),("k",8,1),("k",9,1)]
    o += [("q",ks,t) for t in range(2) for ks in range(5, 10)]
    for ks in (7, 9, 6, 5, 8): o += [("v",ks,0),("v",ks,1)]
    return o
P1 = p1_order()
P4 = [("o", x, t) for x in (4, 0, 1, 2, 3) for t in range(2)]
WL = [P4[i] for i in (0, 1, 2, 3, 9)]
PLS = (0, 5, 12, 17, 22, 27, 32, 37, 42, 47)
PL = [P1[i] for i in PLS]
LDS_PAIRS = [WL[0][:2], WL[2][:2], ("k", 0), ("k", 2)]
LORDER = WL[:4] + PL[:4] + [WL[4]] + PL[4:]
LAND = {t: B7 for t in PL}
LAND.update({WL[0]: B0, WL[1]: B1, WL[2]: B7, WL[3]: B6, WL[4]: B0})
SRC = {}
for i, t in enumerate(LORDER): SRC[t] = ("lds", i)
_n = 0
for m in "qkvo":
    for ks in range(5 if m == "o" else 10):
        for t in range(2):
            if (m, ks, t) not in SRC:
                SRC[(m, ks, t)] = ("reg", STATIC0 + 8 * _n); _n += 1
assert STATIC0 + 8 * _n == 512, _n
def breg(tile): return ur(SRC[tile][1] if SRC[tile][0] == "reg" else LAND[tile], 8)

def prologue(A, M, O):
    u = M.sfx
    GQ, GO, TQ, TO, TA, W16, LN, T = range(8)
    srd(A, 8, P_WQ); srd(A, 12, P_WK); srd(A, 16, P_WV); srd(A, 20, P_WO)
    lane(A, LN)
    A(f"""s_lshl_b32 s32, {WAVE}, 6
s_lshl_b32 s3, {IDX}, 8
s_add_u32 s3, s3, s32
s_mul_i32 s33, {TEAM}, {320 * 8192}
s_sub_u32 s34, {320 * 8192}, s33
s_lshl_b32 s35, {WAVE}, 10
v_lshrrev_b32 v{T}, 2, v{LN}
v_and_b32 v{TA}, 3, v{LN}
v_lshlrev_b32 v{GQ}, 13, v{T}
v_lshl_add_u32 v{GQ}, v{TA}, 4, v{GQ}
v_add_u32 v{GQ}, s3, v{GQ}
s_mul_i32 s3, {IDX}, 163840
s_mul_i32 s30, {TEAM}, 640
s_add_u32 s3, s3, s30
v_mul_u32_u24 v{GO}, 1280, v{T}
v_lshl_add_u32 v{GO}, v{TA}, 4, v{GO}
v_add_u32 v{GO}, s3, v{GO}
s_and_b32 s37, s32, 64
s_lshr_b32 s30, {WAVE}, 1
s_mul_i32 s30, s30, {64 * 1280}
s_add_u32 s37, s37, s30
s_add_u32 s37, s37, 512""")
    pairs = [(m, ks) for m in O.get("worder", "kqvo") for ks in range(5 if m == "o" else 10) if (m, ks) not in LDS_PAIRS]
    pairs = pairs[:-3] + LDS_PAIRS + pairs[-3:]
    NA = 7
    assert len(pairs) % NA == 0
    def dma(n):
        m, ks = pairs[n]
        for i in range(4):
            if m != "o": so = f"s_add_u32 s36, s{33 if ks < 5 else 34}, {(64 * (ks % 5) + 16 * i) * 8192}"
            elif ks < 4: so = f"s_add_u32 s36, s32, {(64 * (ks & 1) + 16 * i) * 1280 + (ks >> 1) * 256}"
            else: so = f"s_add_u32 s36, s37, {16 * i * 1280}"
            A(f"s_add_u32 m0, s35, {TILES + (n % NA) * 16384 + i * 4096}\n{so}")
            A(f"buffer_load_dwordx4 v{GO if m == 'o' else GQ}, {dict(q=SA, k=SB, v=SC, o=SD)[m]}, s36 offen{O.get('wnt', '')} lds", tag=f"p{n}")
    A(f"""v_bfe_u32 v8, v{LN}, 5, 1
v_bfe_u32 v9, v{LN}, 4, 1
v_bfe_u32 v10, v{LN}, 3, 1
v_bfe_u32 v11, v{LN}, 2, 1
s_min_u32 s41, {WAVE}, 1
s_lshr_b32 s38, {IDX}, s41
s_lshl_b32 s3, {WAVE}, 5
s_add_u32 s38, s38, s3
s_and_b32 s42, {IDX}, s41
s_mul_i32 s30, {TEAM}, {lay.R_RSS}
s_add_u32 s30, s30, {lay.R_RS}
s_lshl_b32 s{S_GAT}, s38, 12
s_add_u32 s{S_GAT}, s{S_GAT}, s30
s_lshl_b32 s3, s42, 6
s_add_u32 s{S_GAT}, s{S_GAT}, s3
s_add_u32 s{S_GAT2}, s{S_GAT}, 32768
s_lshr_b32 s39, s38, 2
s_lshl_b32 s{S_OUTO}, s39, 9
s_and_b32 s40, s38, 3
s_lshl_b32 s3, s40, 6
s_add_u32 s{S_OUTO}, s{S_OUTO}, s3
s_lshl_b32 s3, {WAVE}, 14
s_lshl_b32 s{S_FR}, {IDX}, 7
s_add_u32 s{S_RS}, s3, s{S_FR}
s_add_u32 s{S_RS}, s{S_RS}, s30
s_add_u32 s{S_RS+1}, s{S_RS}, 65536
s_add_u32 s{S_RS+2}, s{S_RS}, 131072
s_add_u32 s{S_FKV}, s{S_FR}, {lay.FLG_KV}
s_lshl_b32 s3, {TEAM}, 2
s_add_u32 s{S_FR}, s{S_FR}, s3
s_add_u32 s{S_FR}, s{S_FR}, {lay.FLG_R}
s_lshl_b32 s{S_AGL}, {TEAM}, 14
s_add_u32 s{S_AGL}, s{S_AGL}, {lay.R_AG}
s_mul_i32 s{S_EXO}, {TEAM}, {3 * EXS}
s_sub_u32 s{S_EXR}, {lay.R_EX + 3 * EXS}, s{S_EXO}
s_add_u32 s{S_EXO}, s{S_EXO}, {lay.R_EX}
v_lshrrev_b32 v12, 4, v{LN}
v_and_b32 v13, 15, v{LN}
v_lshlrev_b32 v14, 12, v12
v_lshl_add_u32 v14, v13, 3, v14
v_mov_b32 v16, 1
v_mov_b32 v17, 1
v_mov_b32 v18, 0""")
    for j in range(3): A(f"buffer_store_dwordx2 v[16:17], v14, {WS}, s{S_RS+j} offen{M.st}")
    A(f"""s_mov_b32 s96, s{KA+2*P_MEM0}
s_mov_b32 s97, s{KA+2*P_MEM0+1}
s_mov_b32 s98, 10240
s_mov_b32 s99, 0x20000
s_mul_i32 s40, s40, 2560
s_lshl_b32 s39, s39, 6
s_add_u32 s39, s39, s40
s_mul_i32 s3, {TEAM}, 640
s_add_u32 s101, s39, s3
v_and_b32 v15, 1, v{LN}
v_bfe_u32 v20, v{LN}, 1, 1
v_lshlrev_b32 v23, 8, v20
v_lshl_add_u32 v23, v11, 5, v23
v_lshl_add_u32 v23, v15, 4, v23
s_xor_b32 s3, s41, 1
v_and_b32 v25, s3, v12
v_add_u32 v25, s42, v25
v_lshl_add_u32 v25, v25, 1, v8
v_lshl_add_u32 v23, v25, 2, v23
v_add_u32 v23, s{S_OUTO}, v23
v_mov_b32 v24, -1
s_cmp_ge_u32 s38, 40
s_cbranch_scc1 L_rinit{u}""")
    st0 = A.snap()
    for sl in range(3):
        A(f"s_add_u32 s3, s{S_AGL}, {sl * AGS}\nbuffer_store_dword v24, v23, {WS}, s3 offen{M.st}")
        for cl in range(4): A(f"s_add_u32 s3, s{S_EXO}, {sl * EXS + cl * 8192}\nbuffer_store_dword v24, v23, {WS}, s3 offen sc1")
    A.label(f"L_rinit{u}"); A.join(st0)
    A(f"""v_lshlrev_b32 v19, 3, v{LN}
v_mov_b32 v20, {OOB}
s_cmp_eq_u32 {WAVE}, 3
s_cselect_b32 s3, 2, 0
v_cmp_gt_u32 vcc, s3, v{LN}
v_cndmask_b32 v19, v20, v19, vcc""")
    A(f"buffer_store_dword v18, v19, {WS}, s{S_FR} offen sc1", tag="init")
    DEP = O.get("wdep", 3)
    for n in range(DEP):
        dma(n)
        if n == 0: arrive(A, M, "r" + u, 16, "init")
        else: A("s_barrier")
    A(f"""v_lshlrev_b32 v{W16}, 4, v{LN}
v_add_u32 v{W16}, s35, v{W16}
v_lshlrev_b32 v{TA}, 3, v{TA}
v_add_u32 v{TA}, s35, v{TA}
v_lshl_add_u32 v{TQ}, v8, 12, v{TA}
v_lshl_add_u32 v{TQ}, v9, 9, v{TQ}
v_lshl_add_u32 v{TQ}, v11, 7, v{TQ}
v_lshl_add_u32 v{TQ}, v10, 6, v{TQ}
v_lshl_add_u32 v{TO}, v9, 12, v{TA}
v_lshl_add_u32 v{TO}, v10, 5, v{TO}
v_lshl_add_u32 v{TO}, v8, 8, v{TO}
v_lshl_add_u32 v{TO}, v11, 6, v{TO}""")
    held = {}
    for n, (m, ks) in enumerate(pairs):
        A.wait_vm(f"p{n}")
        A(f"v_add_u32 v{TA}, {TILES + (n % NA) * 16384}, v{TO if m == 'o' else TQ}")
        dst = []
        for t in range(2):
            kind, w = SRC[(m, ks, t)]
            if kind == "reg": d = w
            elif 8 <= w < 14: d = B2 + 8 * (w - 8); held[w] = d
            else: d = B0 + 8 * t
            dst.append(d)
            for qd in range(4):
                off = (qd >> 1) * 512 + (qd & 1) * 128 + 8192 * t if m == "o" else (qd >> 1) * 8192 + (qd & 1) * 256 + 32 * t
                A(f"ds_read_b64_tr_b16 {ur(d + 2 * qd, 2)}, v{TA} offset:{off}")
        A.wait_lg()
        if O.get("wbar", 1) and n + DEP < len(pairs): A("s_barrier")
        if n + DEP < len(pairs): dma(n + DEP)
        for t in range(2):
            kind, w = SRC[(m, ks, t)]
            if kind == "lds" and w not in held:
                A(f"v_add_u32 v{T}, {TILES + w * 8192}, v{W16}")
                for hf in range(2): A(f"ds_write_b128 v{T}, {v(dst[t] + 4 * hf, 4)} offset:{4096 * hf}")
    A(f"s_cmp_eq_u32 {WAVE}, 3\ns_cselect_b32 s3, s{S_FR}, 0x40000000\nv_mov_b32 v{T}, 1\nbuffer_store_dword v{T}, off, {WS}, s3 offset:8 sc1")
    for w, d in held.items():
        A(f"v_add_u32 v{T}, {TILES + w * 8192}, v{W16}")
        for hf in range(2): A(f"ds_write_b128 v{T}, {v(d + 4 * hf, 4)} offset:{4096 * hf}")
    A.wait_all()
    ev(A, O, 2, 8)
    A(f"""v_mov_b32 v8, v{LN}
v_lshrrev_b32 v9, 4, v8
v_and_b32 v10, 15, v8
v_lshlrev_b32 v{L16}, 4, v8
v_add_u32 v{LB2}, 0x10000, v{L16}
v_lshrrev_b32 v11, 5, v8
v_lshlrev_b32 v11, 6, v11
v_lshlrev_b32 v12, 3, v10
v_xor_b32 v11, v11, v12
v_lshl_add_u32 v{XW}, v9, 7, v11
v_lshrrev_b32 v11, 2, v8
v_lshlrev_b32 v11, 3, v11
v_bfe_u32 v13, v8, 1, 1
v_lshlrev_b32 v14, 6, v13
v_xor_b32 v11, v11, v14
v_and_b32 v14, 3, v8
v_lshl_add_u32 v{XR}, v14, 7, v11
v_lshl_add_u32 v{RSA}, v9, 12, v12
v_lshrrev_b32 v{GA}, 2, v8
v_lshlrev_b32 v{GA}, 7, v{GA}
v_lshl_add_u32 v{GA}, v14, 4, v{GA}
v_and_b32 v15, 1, v8
v_mul_u32_u24 v{IDXR}, 0xaaaa, v13
v_add_u32 v{IDXR}, 0x4444, v{IDXR}
v_bfe_u32 v11, v8, 2, 1
v_lshlrev_b32 v{SP}, 8, v13
v_lshl_add_u32 v{SP}, v11, 5, v{SP}
v_lshl_add_u32 v{SP}, v15, 4, v{SP}
s_xor_b32 s3, s41, 1
v_and_b32 v25, s3, v9
v_add_u32 v25, s42, v25
v_lshrrev_b32 v26, 5, v8
v_lshl_add_u32 v25, v25, 1, v26
v_lshl_add_u32 v{SP}, v25, 2, v{SP}
v_add_u32 v{SP}, s{S_OUTO}, v{SP}
v_mul_u32_u24 v19, 1280, v15
v_lshl_add_u32 v19, v13, 5, v19
v_lshl_add_u32 v19, v25, 3, v19
v_lshl_add_u32 v19, v11, 1, v19
s_mov_b32 s100, s38
buffer_load_ushort v21, v19, s[96:99], s101 offen
buffer_load_ushort v22, v19, s[96:99], s101 offen offset:4""")
    for j in range(4):
        mk = sum(3 << (8 * b + 2 * j) for b in range(4))
        A(f"s_mov_b32 s{S_SEL+2*j}, {mk}\ns_mov_b32 s{S_SEL+2*j+1}, {mk}")
    A(f"""s_mov_b32 s{S_CS}, {f32bits(lay.C_SCALE)}
s_mov_b32 s{S_ONE}, 0x3f80
s_mov_b32 s74, 0x3f803f80
s_mov_b32 s75, 0x3f803f80
s_mov_b32 s{S_RNG}, {120 << 23}
s_mov_b32 s{S_STEP}, 0
s_mov_b32 s{S_PH}, 0
s_mov_b32 s{S_PHM}, 0
s_mov_b32 s{S_SLOT}, 0
s_mul_i32 s{S_KV}, {IDX}, {lay.QKV_H}
s_lshl_b32 s3, {WAVE}, 11
s_add_u32 s{S_KV}, s{S_KV}, s3
s_add_u32 s{S_KV}, s{S_KV}, {lay.QKV}
s_add_u32 s{S_V}, s{S_KV}, 8192
s_add_u32 s{S_KM0}, s3, {KB}
s_mul_i32 s{S_PUB}, {IDX}, {lay.KM_H}
s_add_u32 s{S_PUB}, s{S_PUB}, {lay.KMVM - lay.KM_S}
s_add_u32 s{S_PUB2}, s{S_PUB}, 4096
s_cmp_eq_u32 {TEAM}, 0
s_cselect_b32 s30, 0, 0x40000000
s_cselect_b32 s31, 0x40000000, 0
s_add_u32 s{S_PUB}, s{S_PUB}, s30
s_add_u32 s{S_PUB2}, s{S_PUB2}, s31
v_lshl_or_b32 v21, v22, 16, v21
v_min_u32 v21, -2, v21""")
    census(A, M, "r" + u, 8, XB)
    A(f"""v_bfe_u32 v8, v{L16}, 2, 5
L_rkv{u}:
buffer_load_dword v9, v8, {WS}, s{S_FKV} offen sc1""")
    tmo(A, M.fail)
    A(f"""v_cmp_gt_u32 vcc, 2, v9
s_cbranch_vccz L_rkvok{u}
s_sleep 4
s_branch L_rkv{u}
L_rkvok{u}:""")
    if "cls" in O: A(f"s_mov_b32 s30, {O['cls'] * 8192}")
    else: read_class(A, M, "r" + u, 8)
    A(f"""s_add_u32 s{S_EXO}, s{S_EXO}, s30
s_add_u32 s{S_EXR}, s{S_EXR}, s30
s_lshl_b32 s3, {WAVE}, 10
s_add_u32 s{S_AGA}, s{S_AGL}, s3
s_add_u32 s{S_RMB}, s{S_EXR}, s3
s_lshr_b32 s3, s3, 2
s_add_u32 s3, s3, 4096
s_add_u32 s{S_AG4}, s{S_AGL}, s3
s_add_u32 s{S_RM9}, s{S_EXR}, s3
s_add_u32 s{S_EXZ}, s{S_EXO}, {2 * EXS}
s_mov_b32 m0, s{S_KM0}
s_xor_b32 s{S_KM0}, s{S_KM0}, 8192
buffer_load_dwordx4 v{L16}, {WS}, s{S_KV} offen sc1 lds
buffer_load_dwordx4 v{L16}, {WS}, s{S_KV} offen offset:1024 sc1 lds
s_lshl_b32 s3, {WAVE}, 11
s_add_u32 m0, s3, {VB}
s_add_u32 s{S_KV}, s{S_KV}, {lay.QKV_S}
buffer_load_dwordx4 v{L16}, {WS}, s{S_V} offen sc1 lds
buffer_load_dwordx4 v{L16}, {WS}, s{S_V} offen offset:1024 sc1 lds
s_add_u32 s{S_V}, s{S_V}, {lay.QKV_S}
s_cmp_ge_u32 s100, 40
s_cbranch_scc1 L_rm0{u}
buffer_store_dword v21, v{SP}, {WS}, s{S_AGL} offen{M.st}
buffer_store_dword v21, v{SP}, {WS}, s{S_EXO} offen sc1
L_rm0{u}:""")
    ev(A, O, 3, 8)
    A.force_wait()

def lds_tile(A, W, tile, hi=False):
    w = SRC[tile][1]; d = LAND[tile]
    for hf in range(2):
        o = TILES + w * 8192 + hf * 4096 + W * 1024
        base = L16 if o < 65536 else LB2
        assert o < 65536 or (o >> 16) == (2 if hi else 1), (tile, o, hi)
        A(f"ds_read_b128 {v(d + 4 * hf, 4)}, v{base} offset:{o & 0xffff}")
def zero(A, r, n):
    for i in range(0, n, 2): A(f"v_mov_b64 {v(r + i, 2)}, 0")
def delay(A, cyc):
    d = cyc // 4
    while d > 0: A(f"s_nop {min(d, 16) - 1}"); d -= 16

class Stamps:
    def __init__(self, names): self.names = names or []
    def __call__(self, A, name):
        if name in self.names:
            i = self.names.index(name); A.raw(f"s_memtime s[{S_T + 2 * i}:{S_T + 2 * i + 1}]")

def step(A, M, W, red, O):
    u = f"{W}{red}{M.sfx}"
    stamp = Stamps(O.get("stamp"))
    NST = 6
    side = []
    L4 = GA
    mk4 = lambda t=L4: f"v_lshrrev_b32 v{t}, 2, v{L16}"
    ld = lambda r, so, t=L4: f"buffer_load_dwordx4 {v(r, 4)}, v{L16}, {WS}, s{so} offen sc1\nbuffer_load_dword v{r + 4}, v{t}, {WS}, s{so + 1} offen sc1"
    wr = lambda r, base, t=L4: [f"ds_write_b128 v{L16}, {v(r, 4)} offset:{base + W * 1024}", f"ds_write_b32 v{t}, v{r + 4} offset:{base + 4096 + W * 256}"]
    chk = lambda r, t: [f"v_max3_u32 v{t}, v{r}, v{r+1}, v{r+2}", f"v_max3_u32 v{t}, v{t}, v{r+3}, v{r+4}", f"v_cmp_eq_u32 vcc, -1, v{t}"]
    def gather(A, regs):
        for i in range(4):
            so, off = (S_GAT, 1024 * i) if red == 1 else (S_GAT2 if i >> 1 else S_GAT, 2048 * (i & 1))
            A(f"buffer_load_dwordx4 {v(regs[i], 4)}, v{L16 if red == 1 else GA}, {WS}, s{so} offen offset:{off} sc1")
    def frag(A, j, r): A(f"ds_read_b128 {v(r, 4)}, v{L16} offset:{MEM + j * 1024}")
    def xread(A, ks):
        for hf in range(2): A(f"ds_read_b64_tr_b16 {v(B0 + 4 * ks + 2 * hf, 2)}, v{XR} offset:{XB + (4 * hf + ks) * 512}")
    KR = LB2
    def kfrag(A, xt, ks, r): A(f"ds_read_b128 {v(r, 4)}, v{KR} offset:{(xt * 4 + ks) * 1024}")
    def prep(A):
        for hf in range(2): A(f"ds_read_b128 {v(B6 + 4 * hf, 4)}, v{L16} offset:{VB + (2 * W + hf) * 1024}")
        lds_tile(A, W, PL[0])
        zero(A, B0, 24)
    cv = lambda d, r: f"v_cvt_pk_bf16_f32 v{d}, v{r}, v{r + 1}"
    mf = lambda d, x, y, first: f"v_mfma_f32_16x16x32_bf16 {v(d, 4)}, {v(x, 4)}, {v(y, 4)}, {'0' if first else v(d, 4)}"
    m16 = lambda d, x, y, first: f"v_mfma_f32_16x16x16_bf16 {v(d, 4)}, {v(x, 2)}, {v(y, 2)}, {'0' if first else v(d, 4)}"
    ex = lambda r: f"v_exp_f32 v{r}, v{r}"
    Sm, S0, S1, PX, LL, O0, O1, OP = c1, c0, a0, a1, c1, b1, b0, c0
    def owrite(A, tag=None):
        A(f"""v_rcp_f32 v{LL}, v{LL}
v_rcp_f32 v{LL+1}, v{LL+1}
v_mul_f32 v{O0}, v{O0}, v{LL}
v_mul_f32 v{O0+1}, v{O0+1}, v{LL+1}""")
        A(cv(OP, O0)); A(cv(OP + 1, O0))
        A(f"ds_write_b64 v{XW}, {v(OP, 2)} offset:{OB + W * 512}")
        A(f"v_pk_mul_f32 {v(O1, 2)}, {v(O1, 2)}, {v(LL, 2)}")
        A(cv(OP + 2, O1)); A(cv(OP + 3, O1))
        A(f"ds_write_b64 v{XW}, {v(OP + 2, 2)} offset:{OB + (4 + W) * 512}", tag=tag)
    def truemax(A):
        t, t2 = Sm, Sm + 1
        A(f"""v_max3_f32 v{t}, v{Sm+2}, v{Sm+3}, v{S0}
v_max3_f32 v{t}, v{t}, v{S0+1}, v{S0+2}
v_max3_f32 v{t}, v{t}, v{S0+3}, v{S1}
v_max3_f32 v{t}, v{t}, v{S1+1}, v{S1+2}
v_max_f32 v{t}, v{t}, v{S1+3}
v_mov_b32 v{t2}, v{t}
v_permlane32_swap_b32 v{t}, v{t2}
v_max_f32 v{t}, v{t}, v{t2}
v_mov_b32 v{t2}, v{t}
v_permlane16_swap_b32 v{t}, v{t2}
v_max_f32 v{t}, v{t}, v{t2}""")
        vals = [Sm + 2, Sm + 3] + [S0 + i for i in range(4)] + [S1 + i for i in range(4)]
        for r in vals: A(f"v_sub_f32 v{r}, v{r}, v{t}")
        for r in vals: A(ex(r))
        A(cv(B2 + 4, Sm + 2)); A(cv(B2 + 7, Sm + 2))
        A(cv(PX, S0)); A(cv(PX + 1, S0 + 2)); A(cv(PX + 2, S1)); A(cv(PX + 3, S1 + 2))
        A(m16(LL, B2 + 4, B2 + 2, True)); A(m16(O0, B2 + 4, B2, True)); A(m16(O1, B2 + 6, B2, True))
        A(m16(LL, PX, B2 + 2, False)); A(m16(LL, PX + 2, B2 + 2, False))
        A(mf(O0, PX, B6, False)); A(mf(O1, PX, B6 + 4, False))
    SEL, RA, T1 = B2, B2 + 4, B3
    g2 = O.get("g2", [60, 200])[red - 1]
    G1 = [B0, B0 + 4, B1, B1 + 4]; G2 = [B7, B7 + 4, B6, B6 + 4]
    def reduce(A, regs):
        for i, r in enumerate(regs):
            A(f"v_mfma_f32_16x16x32_bf16 {v(RA, 4)}, {v(r, 4)}, {v(SEL, 4)}, {'0' if i == 0 else v(RA, 4)}")
            A(f"v_bitop3_b32 v{T1 + min(i, 1)}, v{r}, v{r + 2}, s{S_PHM} bitop3:0x7e")
            if 0 < i < len(regs) - 1: A(f"v_or_b32 v{T1}, v{T1}, v{T1+1}")
        A(f"""v_bitop3_b32 v{T1}, v{T1}, v{T1+1}, 1 bitop3:0xa8
v_cmp_ne_u32 vcc, 0, v{T1}
s_nop 3""")
    def finish(A):
        A(f"""v_permlane32_swap_b32 v{RA}, v{RA+2}
v_permlane32_swap_b32 v{RA+1}, v{RA+3}
v_pk_add_f32 {v(RA, 2)}, {v(RA, 2)}, {v(RA + 2, 2)}""")
        if red == 2:
            A(f"""v_mov_b64 {v(RA + 2, 2)}, {v(RA, 2)}
v_permlane16_swap_b32 v{RA}, v{RA+2}
v_permlane16_swap_b32 v{RA+1}, v{RA+3}
v_pk_add_f32 {v(RA, 2)}, {v(RA, 2)}, {v(RA + 2, 2)}""")
        A(cv(RA, RA))
        A(f"v_min_u32 v{RA}, -2, v{RA}")
    gexit = []
    if red:
        keep = (list(A.out), A.snap(), A.n_nop, A.n_ins)
        for regs in (G1, G2):
            A.force_wait(); gather(A, regs); A("s_nop 7"); gexit.append(A.snap())
        A.out[:] = keep[0]; A.restore(keep[1]); A.n_nop, A.n_ins = keep[2:]
    if O.get("stamp"):
        for i in range(NST): stamp(A, O["stamp"][i])
        for i in range(88, 100): A(f"s_mov_b32 s{i}, 0")
    sets = [c0, c1, b0, b1][:O.get("ns", 4)]
    lda = lambda r: f"buffer_load_dwordx4 {v(r, 4)}, v{L16}, {WS}, s{S_AGA} offen sc1"
    ldq = f"buffer_load_dword v{b1}, v{L4}, {WS}, s{S_AG4} offen sc1"
    wrq = f"ds_write_b32 v{L4}, v{b1} offset:{MEM + 4096 + W * 256}"
    A(mk4())
    def acheck(A, r):
        A(f"ds_write_b128 v{L16}, {v(r, 4)} offset:{MEM + W * 1024}", tag="aw")
        A(f"v_max3_u32 v{a0}, v{r}, v{r+1}, v{r+2}\nv_max_u32 v{a0}, v{a0}, v{r+3}\nv_cmp_eq_u32 vcc, -1, v{a0}")
    aexit = []
    keep = (list(A.out), A.snap(), A.n_nop, A.n_ins)
    for r in sets:
        A.force_wait(); A(lda(r)); A(f"ds_write_b128 v{L16}, {v(a0, 4)}", tag="aw"); A("s_nop 7"); aexit.append(A.snap())
    A.out[:] = keep[0]; A.restore(keep[1]); A.n_nop, A.n_ins = keep[2:]
    if not red: prep(A)
    A.skip = O.get("skip")

    def body(A):
        side.clear()
        A.raw(".p2align 4")
        A.label(f"L_step{u}")
        for i, r in enumerate(sets):
            A(lda(r))
            if red and i == len(sets) - 2: prep(A); delay(A, O.get("gap", 68) - 64)
            elif i < len(sets) - 1: delay(A, O.get("gap", 68))
        acheck(A, sets[0])
        A(f"s_cbranch_vccnz L_aretry{u}"); side.append(("a", A.snap()))
        A.label(f"L_aback{u}")
        A.join(*aexit)
        A(ldq)
        rb = O.get("rb", -1)
        if rb == -2: A(ld(c0, S_RMB))
        A.wait_lg("aw")
        stamp(A, "A"); A("s_barrier"); stamp(A, "A2")
        frag(A, 0, a0)
        if rb == -1: A(ld(c0, S_RMB))
        frag(A, 1, a1)
        order = P1
        fb = {0: a0, 1: a1, 2: b0, 3: a0, 4: a1, 5: b0, 6: b1, 7: a0, 8: c0, 9: a1}
        N = {i: [] for i in range(90)}; V = {i: [] for i in range(90)}
        L = lambda t, hi=False: (lambda: lds_tile(A, W, t, hi))
        for i in range(1, 10): N[PLS[i - 1]] += [L(PL[i], i >= 6)]
        V[24] += [f"v_add_u32 v{LB2}, 0x10000, v{LB2}"]
        N[7] += [lambda: frag(A, 2, b0)]
        N[9] += [lambda: frag(A, 3, a0)]
        N[18] += [lambda: frag(A, 4, a1)]
        def branch(kind):
            def f():
                A(f"s_cbranch_vccnz L_{kind}retry{u}"); side.append((kind, A.snap())); A.label(f"L_{kind}back{u}")
            return f
        N[10] += [lambda: A(wrq, tag="qw")]; V[10] += [f"v_cmp_eq_u32 vcc, -1, v{b1}"]
        N[14] += [branch("f")]; N[15] += [lambda: A.wait_lg("qw"), "s_barrier"]
        bp = O.get("bpos", 20)
        w_, c_ = wr(c0, MEM + 5120), chk(c0, c1 + 1)
        N[bp] += [w_[0]]; V[bp] += [c_[0]]
        N[bp + 1] += [lambda: A(w_[1], tag="bw")]; V[bp + 1] += [c_[1]]; V[bp + 2] += [c_[2]]
        N[bp + 4] += [branch("b")]
        N[bp + 5] += [lambda: A.wait_lg("bw"), "s_barrier", lambda: frag(A, 5, b0)]
        N[bp + 6] += [lambda: frag(A, 6, b1)]
        N[28] += [lambda: frag(A, 7, a0)]
        N[29] += [lambda: frag(A, 8, c0)]
        N[30] += [lambda: frag(A, 9, a1)]
        N[8] += [f"s_mov_b32 m0, s{S_KM0}", f"s_xor_b32 s{S_KM0}, s{S_KM0}, 8192"]
        kv = [f"buffer_load_dwordx4 v{L16}, {WS}, s{S_KV} offen sc1 lds",
              f"buffer_load_dwordx4 v{L16}, {WS}, s{S_KV} offen offset:1024 sc1 lds\ns_mov_b32 m0, {VB + W * 2048}",
              f"buffer_load_dwordx4 v{L16}, {WS}, s{S_V} offen sc1 lds", f"buffer_load_dwordx4 v{L16}, {WS}, s{S_V} offen offset:1024 sc1 lds"]
        for x, i in zip(kv, O.get("kvs", (bp + 6, 28, 31, 33))): N[i] += [x]
        imm = O.get("imm", 1)
        if not imm:
            N[10] += [f"ds_read_b64 {v(c1 + 2, 2)}, v{XW} offset:{VMS + W * 512}"]
            N[34] += [f"buffer_store_dwordx2 {v(c1 + 2, 2)}, v{XW}, {WS}, s{S_PUB2} offen offset:{W * 512} sc1"]
            N[35] += [f"ds_read_b64_tr_b16 {v(c1, 2)}, v{XR} offset:{XB + W * 512}", f"ds_read_b64_tr_b16 {v(c1 + 2, 2)}, v{XR} offset:{XB + (4 + W) * 512}"]
            N[40 + (W >> 1)] += [f"buffer_store_dwordx4 {v(c1, 4)}, v{L16}, {WS}, s{S_PUB} offen offset:{W * 1024} sc1"]
        if red:
            V[31] += [f"v_mov_b32 v{GA}, -1"]
            N[38] += [f"buffer_store_dword v{GA}, v{SP}, {WS}, s{S_EXZ} offen sc1"]
        if W == 2:
            N[19] += [f"s_sub_u32 s3, s{S_STEP}, {0 if imm else 1}\ns_max_i32 s3, s3, 0"]
            V[19] += [f"v_mov_b32 v{SP}, s3"]
            N[38] += [f"buffer_store_dword v{SP}, off, {WS}, s{S_FR} sc1"]
        if W == 3:
            V[19] += [f"v_bfe_u32 v{SP}, v{L16}, 2, 5"]
            N[38] += [f"buffer_load_dword v{SP}, v{SP}, {WS}, s{S_FKV} offen sc1"]
        N[1] += [f"s_mul_i32 s3, s{S_SLOT}, {AGS}\ns_add_u32 s{S_AGZ}, s{S_AGL}, s3\ns_lshl_b32 s30, s{S_SLOT}, 15"]
        N[2] += [f"s_add_u32 s{S_SLOT}, s{S_SLOT}, 1\ns_cmp_eq_u32 s{S_SLOT}, 3\ns_cselect_b32 s{S_SLOT}, 0, s{S_SLOT}"]
        N[3] += [f"s_mul_i32 s3, s{S_SLOT}, {AGS}\ns_add_u32 s{S_AGW}, s{S_AGL}, s3\ns_lshl_b32 s31, s{S_SLOT}, 15"]
        N[6] += [f"s_add_u32 s{S_EXW}, s{S_EXO}, s31\ns_add_u32 s31, s31, s{S_EXR}\ns_add_u32 s{S_AGA}, s{S_AGW}, {W * 1024}"]
        N[16] += [f"s_add_u32 s{S_AG4}, s{S_AGW}, {4096 + W * 256}"]
        N[13] += [f"s_add_u32 s{S_NEED}, s{S_STEP}, 3\ns_min_u32 s{S_NEED}, s{S_NEED}, 64"]
        N[36] += [f"s_add_u32 s{S_RMB}, s31, {W * 1024}\ns_add_u32 s{S_RM9}, s31, {4096 + W * 256}"]
        N[39] += [f"s_add_u32 s{S_KV}, s{S_KV}, {lay.QKV_S}\ns_add_u32 s{S_V}, s{S_V}, {lay.QKV_S}"]
        N[43] += [f"s_add_u32 s{S_PUB}, s{S_PUB}, {lay.KM_S}\ns_add_u32 s{S_PUB2}, s{S_PUB2}, {lay.KM_S}"]
        N[44] += [f"s_add_u32 s{S_EXZ}, s{S_EXO}, s30\ns_sub_u32 s3, s{S_KM0}, {W * 2048}"]
        N[45] += ["s_nop 1"]; N[49] += ["s_nop 1"]; N[50] += ["s_nop 0"]
        N[48] += [f"s_cmp_eq_u32 s{S_STEP}, 63"]
        k0, k1 = ACC["k"]; q0, q1 = ACC["q"]; v0_, v1_ = ACC["v"]
        ad = lambda r, i: f"v_add_f32 v{r + i}, v{r + i}, v{r + i + 2}"
        mu = lambda r, i: f"v_mul_f32 v{r + i}, s{S_CS}, v{r + i}"
        pv = [ad(k0, 0), ad(k0, 1), mu(k0, 0), mu(k0, 1), ad(k1, 0), ad(k1, 1), mu(k1, 0), mu(k1, 1), ad(q0, 0), ad(q0, 1), cv(c1 + 1, k0), cv(c1 + 3, k1)]
        for i, x in enumerate(pv): V[39 + i] += [x]
        V[49] += [cv(c1, q0)]
        N[50] += [f"ds_write_b64 v{XW}, {v(c1, 2)} offset:{XB + W * 512}"]
        V[51] += [ad(q1, 0), ad(q1, 1), cv(c1 + 2, q1), lambda: A(f"ds_write_b64 v{XW}, {v(c1 + 2, 2)} offset:{XB + (4 + W) * 512}", tag="xw")]
        V[52] += [f"v_add_u32 v{KR}, s3, v{L16}"]
        xb = O.get("xb", 55)
        N[xb] += [lambda: [A.wait_lg("xw"), stamp(A, "X"), A("s_barrier"), stamp(A, "X2"), xread(A, 0)]]
        N[xb + 1] += [lambda: [xread(A, 1)]]
        N[xb + 2] += [lambda: [xread(A, 2)]]
        N[xb + 3] += [lambda: [xread(A, 3)]]
        N[53] += [lambda: kfrag(A, 0, 0, d0), lambda: kfrag(A, 0, 1, d1)]
        N[54] += [lambda: kfrag(A, 0, 2, a0), lambda: kfrag(A, 0, 3, a1)]
        N[59] += [lambda: kfrag(A, 1, 0, b1)]
        N[60] += [lambda: kfrag(A, 1, 1, b0)]
        fast = O.get("fast", 1)
        V[61] += [ad(v0_, 0), ad(v0_, 1)]
        V[62] += [ad(v1_, 0), ad(v1_, 1)]
        V[63] += [cv(B2, v0_), cv(B2 + 1, v1_)]
        N[64] += [lambda: kfrag(A, 1, 2, d0)]
        V[64] += [f"v_mov_b64 {v(B2 + 2, 2)}, s[74:75]"]
        N[65] += [lambda: kfrag(A, 1, 3, d1)]
        V[65] += [f"v_mov_b32 v{B2 + 5}, 0"]
        if imm:
            N[60 + W] += [f"buffer_store_dwordx4 {v(B0 + 4 * W, 4)}, v{L16}, {WS}, s{S_PUB} offen offset:{W * 1024} sc1"]
            N[65] += [f"buffer_store_dwordx2 {v(B2, 2)}, v{XW}, {WS}, s{S_PUB2} offen offset:{W * 512} sc1"]
        else: N[69] += [f"ds_write_b64 v{XW}, {v(B2, 2)} offset:{VMS + W * 512}"]
        N[66] += [lambda: [A(f"s_cbranch_scc1 L_last{u}"), side.append(("l", A.snap()))]]
        V[69] += [f"v_mov_b32 v{B2 + 6}, 0"]
        if fast:
            V[67] += [ex(Sm + 3)]; V[66] += [ex(Sm + 2)]; V[68] += [cv(B2 + 4, Sm + 2), cv(B2 + 7, Sm + 2)]
            V[70] += [ex(S0)]; V[71] += [ex(S0 + 1)]; V[72] += [ex(S0 + 2)]; V[73] += [ex(S0 + 3)]
            N[72] += ["s_nop 0"]; N[73] += ["s_nop 0"]
            V[74] += [ex(S1), cv(PX, S0), cv(PX + 1, S0 + 2), ex(S1 + 1), ex(S1 + 2)]
            V[75] += [ex(S1 + 3), cv(PX + 2, S1), cv(PX + 3, S1 + 2), L(WL[0])]
            N[76] += [L(WL[1])]; N[77] += [L(WL[2])]
        seq = [f"v_smfmac_f32_16x16x64_bf16 {v(ACC[m][t], 4)}, {v(fb[ks], 4)}, {breg((m, ks, t))}, v{IDXR}" for m, ks, t in order]
        seq += [mf(Sm, B0 + 4 * ks, B0 + 4 * ks, ks == 0) for ks in range(4)]
        seq += [mf(S0, r, B0 + 4 * ks, ks == 0) for ks, r in enumerate((d0, d1, a0, a1))]
        seq += [mf(S1, r, B0 + 4 * ks, ks == 0) for ks, r in enumerate((b1, b0, d0, d1))]
        if fast:
            seq += [m16(LL, B2 + 4, B2 + 2, True), m16(O0, B2 + 4, B2, True), m16(O1, B2 + 6, B2, True), m16(LL, PX, B2 + 2, False),
                    m16(LL, PX + 2, B2 + 2, False), mf(O0, PX, B6, False), mf(O1, PX, B6 + 4, False)]
        def run(seq, N, V, pfx, tail=0):
            for i in range(len(seq) + tail):
                if i < len(seq): A(seq[i])
                for x in N[i]: x() if callable(x) else A(x)
                if V[i] and i + 1 < len(seq) and not (pfx == "p" and i + 1 in PLS and O.get("nohoist", 1)): A.prewait(seq[i + 1])
                for x in V[i]: x() if callable(x) else A(x)
                stamp(A, f"{pfx}{i}")
        run(seq, N, V, "p")
        if not fast:
            for t in WL[:3]: lds_tile(A, W, t)
            truemax(A)
        A(f"v_add_u32 v{LB2}, 0x10000, v{L16}")
        owrite(A, "ow")
        if fast:
            A(f"""v_subrev_u32 v{LL}, {67 << 23}, v{LL}
v_subrev_u32 v{LL+1}, {67 << 23}, v{LL+1}
v_max_u32 v{LL}, v{LL}, v{LL+1}
v_cmp_le_u32 vcc, s{S_RNG}, v{LL}""")
        zero(A, B4, 8); zero(A, c1, 4)
        if fast: branch("s")()
        lds_tile(A, W, WL[3])
        A.wait_lg("ow"); stamp(A, "O"); A("s_barrier"); stamp(A, "O2")
        OA = [B2, B2 + 4, B3, B3 + 4]
        for kk in (0, 1, 2, 3) if W < 2 else (2, 3, 0, 1):
            for hf in range(2): A(f"ds_read_b64_tr_b16 {v(OA[kk] + 2 * hf, 2)}, v{XR} offset:{OB + (4 * hf + kk) * 512}")
        acc = [b0, b1, c1]
        N = {i: [] for i in range(30)}; V = {i: [] for i in range(30)}
        N[2] += [L(WL[4])]; N[1] += ["s_nop 1"]
        rs = lambda g: (lambda: A(f"buffer_store_dwordx2 {v(acc[g], 2)}, v{RSA}, {WS}, s{S_RS + g} offen{M.st}", tag=f"rs{g}"))
        tg = lambda g: f"v_and_or_b32 v{acc[g]}, v{acc[g]}, -2, s{S_PH}"
        V[3] += [cv(c1, c1)]; V[4] += [cv(c1 + 1, c1 + 2), tg(2)]; N[5] += [rs(2), "s_nop 0"]
        N[6] += ["s_nop 1"]
        V[7] += [cv(b0, b0)]; V[8] += [cv(b0 + 1, b0 + 2), tg(0)]; N[9] += [rs(0)]
        V[9] += [cv(b1, b1), cv(b1 + 1, b1 + 2), tg(1), rs(1)]
        seq = [f"v_smfmac_f32_16x16x64_bf16 {v(acc[x >> 1], 4)}, {v(OA[2 * (x & 1 if x < 4 else W >> 1) + t], 4)}, {breg((m, x, t))}, v{IDXR}" for m, x, t in P4]
        run(seq, N, V, "w")
        stamp(A, "T0")
        trc = 0
        if O.get("stamp"):
            trc = 108
            A.force_wait("lgkmcnt(0)")
            A(f"s_cmp_ge_u32 s{S_STEP}, 4\ns_cselect_b32 s72, -1, 0")
            for i in range(NST - 1): A(f"s_sub_u32 s3, s{S_T + 2*i + 2}, s{S_T + 2*i}\ns_and_b32 s3, s3, s72\ns_add_u32 s{88 + i}, s{88 + i}, s3")
            A(f"s_cmp_eq_u32 s{S_STEP}, 4\ns_cmov_b32 s93, s{S_T}\ns_cmov_b32 s73, {TMO}\ns_cmov_b32 s101, 0\ns_cmp_eq_u32 s{S_STEP}, {O.get('snap', 30)}")
            for i in range(NST): A(f"s_cmov_b32 s{94 + i}, s{S_T + 2*i}")
        A(f"s_xor_b32 s{S_PH}, s{S_PH}, 1\ns_add_u32 s{S_STEP}, s{S_STEP}, 1")
        if red:
            gd = O.get("gd", [220, 140, 20])
            if red == 1:
                A(f"s_cmp_lt_u32 {IDX}, 16\ns_cbranch_scc1 L_glo{u}"); delay(A, gd[2]); A.label(f"L_glo{u}")
                delay(A, gd[0] - gd[2] - 20 - trc)
            else:
                A(f"v_and_b32 v{GA}, 0x3c0, v{L16}\nv_add_u32 v{GA}, v{GA}, v{L16}")
                delay(A, gd[1] - trc)
            gather(A, G1); stamp(A, "G")
            A(f"""v_and_b32 v{T1}, 16, v{L16}
v_lshlrev_b32 v{T1}, v{T1}, s{S_ONE}""")
            for j in range(4): A(f"v_cndmask_b32 v{SEL + j}, 0, v{T1}, s[{S_SEL+2*j}:{S_SEL+2*j+1}]")
            A(f"v_mov_b32 v{T1+5}, -1")
            if g2 is not None:
                delay(A, g2); gather(A, G2)
            reduce(A, G1)
            A(f"s_cbranch_vccnz L_gretry{u}"); side.append(("g", A.snap()))
            A.label(f"L_gback{u}")
            if gexit: A.join(*gexit)
            finish(A)
            A(f"buffer_store_dword v{RA}, v{SP}, {WS}, s{S_AGW} offen{M.st}")
            stamp(A, "T1")
            A("s_barrier")
            A(f"buffer_store_dword v{RA}, v{SP}, {WS}, s{S_EXW} offen sc1")
            A(f"buffer_store_dword v{T1+5}, v{SP}, {WS}, s{S_AGZ} offen{M.st}")
            A(f"s_not_b32 s{S_PHM}, s{S_PHM}")
        else:
            stamp(A, "G")
            A.wait_vm()
            stamp(A, "T1")
            if O.get("prof") and W == 1:
                A(("s_memtime" if O["prof"] == 1 else "s_memrealtime") + " s[72:73]\ns_mov_b32 m0, s%d" % S_STEP); A.wait_lg(); A(f"v_writelane_b32 v{SP}, s72, m0")
            prep(A)
            if W == 3:
                A(f"v_cmp_gt_u32 vcc, s{S_NEED}, v{SP}")
                branch("k")()
            A("s_barrier")
        A(mk4())
        delay(A, O.get("ad", [170, 162, 162])[red])
        A(f"s_branch L_step{u}")
        return A.snap()
    A.loop(body)
    A.skip = None
    def cnt(kind):
        if O.get("stamp"): A(f"s_add_u32 s101, s101, {1 << (8 * 'fabg'.index(kind))}")
    for kind, st in list(side):
        A.restore(st)
        if kind == "a":
            ex_ = []
            def al(A):
                ex_.clear()
                A.label(f"L_aretry{u}")
                for i in range(len(sets)):
                    r = sets[(i + 1) % len(sets)]
                    A(lda(sets[i])); cnt("a")
                    A(f"v_max3_u32 v{a0}, v{r}, v{r+1}, v{r+2}\nv_max_u32 v{a0}, v{a0}, v{r+3}\nv_cmp_eq_u32 vcc, -1, v{a0}")
                    A(f"s_cbranch_vccz L_aw{i}{u}"); ex_.append((i, r, A.snap()))
                A(f"s_add_u32 {TMO}, {TMO}, 1\ns_cmp_gt_u32 {TMO}, {TMO_MAX}\ns_cbranch_scc0 L_aretry{u}")
                st = A.snap(); A("s_branch " + M.fail)
                return st
            A.loop(al)
            for i, r, st in ex_:
                A.restore(st); A.label(f"L_aw{i}{u}")
                A(f"ds_write_b128 v{L16}, {v(r, 4)} offset:{MEM + W * 1024}\ns_branch L_aback{u}")
        elif kind == "f":
            A.label(f"L_fretry{u}"); A.force_wait("lgkmcnt(0)")
            A(ldq); cnt("f"); tmo(A, M.fail); A.wait_vm()
            A(wrq); A(f"v_cmp_eq_u32 vcc, -1, v{b1}")
            A.wait_all()
            A(f"s_cbranch_vccnz L_fretry{u}\ns_branch L_fback{u}")
        elif kind == "b":
            A.label(f"L_bretry{u}"); A.force_wait("lgkmcnt(0)")
            A(ld(c0, S_RMB)); cnt("b"); tmo(A, M.fail); A.wait_vm()
            for x in wr(c0, MEM + 5120) + chk(c0, c1 + 1): A(x)
            A.wait_all()
            A(f"s_cbranch_vccnz L_bretry{u}\ns_branch L_bback{u}")
        elif kind == "g":
            A.label(f"L_gretry{u}")
            if g2 is None: gather(A, G2); delay(A, 100)
            def gl(A):
                A.label(f"L_gloop{u}")
                for again, regs in ((G1, G2), (G2, G1)):
                    gather(A, again); cnt("g")
                    A(f"s_add_u32 {TMO}, {TMO}, 1")
                    reduce(A, regs)
                    A(f"s_cbranch_vccz L_gback{u}")
                A(f"s_cmp_gt_u32 {TMO}, {TMO_MAX}\ns_cbranch_scc0 L_gloop{u}")
                st = A.snap(); A("s_branch " + M.fail)
                return st
            A.loop(gl)
        elif kind == "k":
            A.label(f"L_kretry{u}"); tmo(A, M.fail)
            A(f"""v_bfe_u32 v{SP}, v{L16}, 2, 5
buffer_load_dword v{SP}, v{SP}, {WS}, s{S_FKV} offen sc1
v_cmp_gt_u32 vcc, s{S_NEED}, v{SP}
s_cbranch_vccnz L_kretry{u}
s_branch L_kback{u}""")
        elif kind == "s":
            A.label(f"L_sretry{u}"); A.force_wait("lgkmcnt(0)")
            A(f"s_sub_u32 s3, s{S_KM0}, {W * 2048}\nv_add_u32 v{KR}, s3, v{L16}")
            for ks in range(4): xread(A, ks)
            for ks in range(4): A(mf(Sm, B0 + 4 * ks, B0 + 4 * ks, ks == 0))
            for xt, d in ((0, S0), (1, S1)):
                for ks, r in enumerate((d0, d1, b0, b1)): kfrag(A, xt, ks, r)
                for ks, r in enumerate((d0, d1, b0, b1)): A(mf(d, r, B0 + 4 * ks, ks == 0))
            truemax(A)
            for t in WL[:3]: lds_tile(A, W, t)
            A(f"v_add_u32 v{LB2}, 0x10000, v{L16}")
            owrite(A)
            zero(A, B4, 8); zero(A, c1, 4)
            A.force_wait("lgkmcnt(0)")
            A(f"s_branch L_sback{u}")
        elif kind == "l":
            A.label(f"L_last{u}")
            if not O.get("imm", 1):
                A(f"buffer_store_dwordx4 {v(B0 + 4 * W, 4)}, v{L16}, {WS}, s{S_PUB} offen offset:{W * 1024} sc1")
                A(f"buffer_store_dwordx2 {v(B2, 2)}, v{XW}, {WS}, s{S_PUB2} offen offset:{W * 512} sc1")
            A.wait_all(); A("s_barrier")
            if W == 2:
                A(f"v_mov_b32 v{SP}, 64\nbuffer_store_dword v{SP}, off, {WS}, s{S_FR} sc1")
            ev(A, O, 4, 8)
            if O.get("prof") and W == 1 and not red:
                A(f"s_lshl_b32 s3, {TEAM}, 5\ns_add_u32 s3, s3, {IDX}\ns_lshl_b32 s3, s3, 8\ns_add_u32 s3, s3, {lay.DBGOUT + 0x40000}\nv_lshrrev_b32 v8, 2, v{L16}\nbuffer_store_dword v{SP}, v8, {WS}, s3 offen")
            if O.get("stamp"):
                A(f"s_lshl_b32 s100, {TEAM}, 5\ns_add_u32 s100, s100, {IDX}\ns_lshl_b32 s100, s100, 10\ns_add_u32 s100, s100, {lay.DBGOUT + W * 256}")
                A.force_wait("lgkmcnt(0)")
                A(f"s_sub_u32 s93, s{S_T}, s93\ns_sub_u32 s73, {TMO}, s73")
                for i in range(12): A(f"v_mov_b32 v{8 + i}, s{88 + i}")
                A("v_mov_b32 v20, s73\nv_mov_b32 v21, s101")
                for i in range(16):
                    A(f"s_memrealtime s[30:31]\ns_memtime s[74:75]"); A.wait_lg(); A(f"v_mov_b32 v{24 + 2*i}, s30\nv_mov_b32 v{25 + 2*i}, s74\ns_nop {i % 7}")
                for i in range(12): A(f"buffer_store_dwordx4 {v(8 + 4 * i, 4)}, off, {WS}, s100 offset:{16 * i}")
            A("s_endpgm")

def role(A, M, O):
    u = M.sfx
    prologue(A, M, O)
    st = A.snap()
    A(f"""s_cmp_eq_u32 {WAVE}, 2
s_cbranch_scc1 L_rw2{u}
s_cmp_eq_u32 {WAVE}, 3
s_cbranch_scc1 L_rw3{u}
s_cmp_eq_u32 {WAVE}, 0
s_cbranch_scc1 L_rw0{u}
s_cmp_lt_u32 {IDX}, 16
s_cbranch_scc1 L_rw1{u}""")
    for lbl, W, red in ((None, 1, 0), ("L_rw0", 0, 1), ("L_rw1", 1, 2), ("L_rw2", 2, 0), ("L_rw3", 3, 0)):
        if lbl: A.label(lbl + u)
        A.restore(st)
        step(A, M, W, red, O)
```

```python
from asmgen import *
import lay

WS = "s[4:7]"
SA, SB, SC, SD = "s[8:11]", "s[12:15]", "s[16:19]", "s[20:23]"
TEAM, IDX, WAVE, TMO = "s24", "s25", "s26", "s27"
DBG = "s[28:29]"
KA = 64
P_X, P_MEM0, P_WQ, P_WK, P_WV, P_WO, P_SEG, P_BX, P_WG, P_WU, P_WD, P_C, P_WM, P_OUT, P_DBG, P_WS = range(16)
SIZES = {P_X: 2621440, P_MEM0: 10240, P_WQ: 5242880, P_WK: 5242880, P_WV: 5242880, P_WO: 5242880,
         P_WG: 640 * 1728 * 2, P_WU: 640 * 1728 * 2, P_WD: 640 * 1728 * 2, P_C: 1280, P_WM: 640 * 3840 * 2, P_OUT: 2621440}
OOB = 0x7FFFFFF0
TMO_MAX = 0x40000

def srd(A, base, p):
    A(f"""s_mov_b32 s{base}, s{KA+2*p}
s_mov_b32 s{base+1}, s{KA+2*p+1}
s_mov_b32 s{base+2}, {SIZES[p]}
s_mov_b32 s{base+3}, 0x20000""")

def lane(A, r):
    A(f"v_mbcnt_lo_u32_b32 v{r}, -1, 0\nv_mbcnt_hi_u32_b32 v{r}, -1, v{r}")

class Mode:
    def __init__(self, safe):
        self.safe = safe
        self.st = " sc1" if safe else ""
        self.sfx = "_s" if safe else "_f"
        self.fail = "L_fail" + self.sfx

def tmo(A, fail):
    A(f"s_add_u32 {TMO}, {TMO}, 1\ns_cmp_gt_u32 {TMO}, {TMO_MAX}\ns_cbranch_scc1 {fail}")

S_CNT, S_ATT, S_BAD = "s76", "s77", "s78"
def arrive(A, M, uid, t0, tag=None):
    A.wait_vm(tag)
    A(f"""s_barrier
s_cmp_lg_u32 {WAVE}, 0
s_cbranch_scc1 L_arr{uid}""")
    st = A.snap()
    A(f"""s_mul_i32 s3, {TEAM}, 66
s_and_b32 s3, s3, 0xc8
s_add_u32 s3, s3, {S_CNT}
v_mov_b32 v{t0+2}, s3
s_lshl_b32 s3, 1, {IDX}
v_mov_b32 v{t0}, s3
s_add_u32 s3, {S_BAD}, 0x10000
v_mov_b32 v{t0+1}, s3
s_mov_b64 exec, 1
global_atomic_add_x2 v{t0+2}, {v(t0, 2)}, {DBG} sc1
s_mov_b64 exec, -1
L_arr{uid}:""")
    A.join(st)

def census(A, M, uid, t0, lds):
    A(f"v_mov_b32 v{t0+3}, {lds}")
    A.wait_all()
    A(f"s_cmp_lg_u32 {WAVE}, 0\ns_cbranch_scc1 L_cenw{uid}")
    lane(A, t0 + 2)
    A(f"v_and_b32 v{t0+2}, 7, v{t0+2}\nv_mul_u32_u24 v{t0+2}, 66, v{t0+2}\nv_and_b32 v{t0+2}, 0xc8, v{t0+2}\nv_add_u32 v{t0+2}, {S_CNT}, v{t0+2}")
    A(f"""L_cen{uid}:
global_load_dwordx2 {v(t0, 2)}, v{t0+2}, {DBG} sc1""")
    tmo(A, M.fail)
    A(f"""v_cmp_eq_u32 s[30:31], -1, v{t0}
v_cmp_eq_u32 vcc, 0x200000, v{t0+1}
s_and_b64 s[30:31], s[30:31], vcc
v_lshrrev_b32 v{t0+1}, 16, v{t0+1}""")
    for k in (4, 2, 1): A(f"v_add_u32_dpp v{t0+1}, v{t0+1}, v{t0+1} row_ror:{k} row_mask:0xf bank_mask:0xf")
    A(f"""v_cmp_lt_u32 vcc, 255, v{t0+1}
s_cbranch_vccnz L_cend{uid}
s_sleep 12
s_branch L_cen{uid}
L_cend{uid}:
v_mov_b32 v{t0}, s30
ds_write_b32 v{t0+3}, v{t0}""")
    A.wait_all()
    A(f"""L_cenw{uid}:
s_barrier
ds_read_b32 v{t0}, v{t0+3}
v_cmp_ne_u32 vcc, -1, v{t0}
s_cbranch_vccnz {M.fail if M.safe else "L_next"}""")

def vote_class(A, M, pid, t0):
    A(f"""s_and_b32 s46, {pid}, 3
s_lshl_b32 s46, s46, 15
s_bfe_u32 s3, {pid}, 0x40002
s_lshl_b32 s3, s3, 7
s_add_u32 s46, s46, s3
s_add_u32 s46, s46, {lay.R_EX + 5632}
s_mov_b32 s48, -1
s_mov_b32 s49, 0
s_mov_b32 s50, 0
s_mov_b64 exec, 1""")
    A.force_wait()
    A(f"""L_vote{M.sfx}:
s_and_b32 s47, s50, 3
s_lshl_b32 s3, s47, 13
s_add_u32 s3, s3, s46
s_memtime s[30:31]""")
    A.wait_lg()
    A(f"buffer_store_dword v{t0}, off, {WS}, s3 sc1"); A.wait_vm()
    A("s_memtime s[44:45]"); A.wait_lg()
    A(f"""s_sub_u32 s3, s44, s30
s_cmp_lt_u32 s3, s48
s_cselect_b32 s48, s3, s48
s_cselect_b32 s49, s47, s49
s_add_u32 s50, s50, 1
s_cmp_lt_u32 s50, 12
s_cbranch_scc1 L_vote{M.sfx}
s_mul_i32 s3, s49, 0x81
s_and_b32 s3, s3, 0x101
s_add_u32 s3, s3, 0x10000
v_mov_b32 v{t0}, s3
s_lshl_b32 s3, {S_ATT}, 6
s_add_u32 s3, s3, 56
v_mov_b32 v{t0+1}, s3
global_atomic_add v{t0+1}, v{t0}, {DBG} sc1
s_mov_b64 exec, -1""")
def census_eval(A, M, d, again, cls=None):
    A(f"""s_lshr_b32 s3, {S_CNT}, 2
s_lshl_b32 s80, 0x50005, s3
s_mov_b32 s81, s80
v_cmp_eq_u32 s[82:83], -1, v{d}
v_cmp_eq_u32 vcc, 0x200000, v{d}
s_lshr_b64 s[30:31], vcc, 1
s_and_b64 s[30:31], s[30:31], s[82:83]
s_and_b64 s[30:31], s[30:31], s[80:81]
s_cmp_eq_u64 s[30:31], s[80:81]
s_cbranch_scc1 L_ceok{again}
s_mov_b32 s31, 0""")
    for i in range(8): A(f"s_add_u32 s80, s3, {16 * (i >> 1) + 2 * (i & 1) + 1}\nv_readlane_b32 s30, v{d}, s80\ns_lshr_b32 s30, s30, 16\ns_add_u32 s31, s31, s30")
    A(f"""s_cmp_lt_u32 s31, 256
s_cbranch_scc1 {again}
s_branch {M.fail if M.safe else "L_next"}
L_ceok{again}:""")
    if cls is not None:
        A(f"s_mov_b32 s30, {cls * 8192}"); return
    A(f"""s_lshl_b32 s3, {S_ATT}, 4
s_add_u32 s3, s3, 14
v_readlane_b32 s3, v{d}, s3
s_cmp_lt_u32 s3, 0x400000
s_cbranch_scc1 {again}
s_and_b32 s31, s3, 0xff
s_cmp_ge_u32 s31, 32
s_cselect_b32 s30, 8192, 0
s_bfe_u32 s31, s3, 0x80008
s_cmp_ge_u32 s31, 32
s_cselect_b32 s31, 0, 16384
s_add_u32 s30, s30, s31""")

def ev(A, O, i, t):
    if O.get("hev"):
        slot = O["hev"].get((A.role, i))
        if slot is not None:
            A.force_wait("lgkmcnt(0)")
            A(f"s_memrealtime s[30:31]\nv_mov_b32 v{t}, s30\ns_and_b32 s3, {IDX}, 3\ns_add_u32 s3, s3, {WAVE}\ns_cmp_eq_u32 s3, 0\ns_cselect_b64 exec, 1, 0\ns_cbranch_execz L_hev{len(A.out)}")
            n = len(A.out)
            lbl = [x for x in A.out[-1:]][0].split()[-1]
            A(f"v_mov_b32 v{t+1}, {4 * slot}\nglobal_atomic_umax v{t+1}, v{t}, {DBG} sc1")
            A.label(lbl); A("s_mov_b64 exec, -1"); A.force_wait("vmcnt(0)")
        return
    if not O.get("ev"): return
    A.force_wait("lgkmcnt(0)")
    A(f"s_memrealtime s[30:31]\ns_lshl_b32 s3, {TEAM}, 5\ns_add_u32 s3, s3, {IDX}\ns_lshl_b32 s3, s3, 2\ns_add_u32 s3, s3, {WAVE}\ns_lshl_b32 s3, s3, 7\ns_add_u32 s3, s3, {lay.DBGOUT + 0x80000}")
    A(f"v_mov_b32 v{t}, s30\nbuffer_store_dword v{t}, off, {WS}, s3 offset:{4 * i}")
    A(f"s_memtime s[30:31]\nv_mov_b32 v{t}, s30\nbuffer_store_dword v{t}, off, {WS}, s3 offset:{4 * i + 32}")
```

```python
from common import *
import struct

IDXR, L16, LB2, XW, XR, RSA, GA, SP = range(8)
B0, B1, B2, B3, B4, B5, B6, B7 = (8 + 8 * i for i in range(8))
a0, a1, b0, b1, c0, c1, d0, d1 = B3, B3 + 4, B4, B4 + 4, B5, B5 + 4, B7, B7 + 4
STATIC0 = 72
MEM, XB, VMS, KB, VB, TILES = 0, 10240, 14336, 16384, 32768, 40960
OB = MEM + 5120
S_STEP, S_PH, S_PHM = 32, 33, 34
S_AGA, S_AG4, S_RMB, S_RM9 = 35, 36, 37, 38
S_AGW, S_AGZ, S_EXW, S_EXZ = 39, 40, 41, 42
S_RS = 43
S_GAT, S_GAT2 = 46, 47
S_KV, S_V, S_PUB, S_PUB2 = 48, 49, 50, 51
S_SLOT, S_OUTO, S_FKV, S_FR = 52, 53, 54, 55
S_CS, S_ONE, S_NEED, S_KM0 = 56, 57, 58, 59
S_AGL, S_EXO, S_EXR, S_RNG = 60, 61, 62, 63
S_SEL = 64
S_T = 76
ACC = {"k": (B0, B0 + 4), "q": (B1, B1 + 4), "v": (B2, B2 + 4)}
AGS, EXS = 5120, 32768

def f32bits(x): return struct.unpack("<I", struct.pack("<f", x))[0]

def p1_order():
    o = []
    for ks in range(5):
        if ks in (0, 2): o += [("k",ks,0),("q",ks,0),("q",ks,1),("v",ks,0),("v",ks,1),("k",ks,1)]
        else: o += [("k",ks,0),("k",ks,1),("q",ks,0),("q",ks,1),("v",ks,0),("v",ks,1)]
    o += [("k",5,0),("k",5,1),("k",6,0),("k",6,1),("k",7,0),("k",8,0),("k",9,0),("k",7,1),("k",8,1),("k",9,1)]
    o += [("q",ks,t) for t in range(2) for ks in range(5, 10)]
    for ks in (7, 9, 6, 5, 8): o += [("v",ks,0),("v",ks,1)]
    return o
P1 = p1_order()
P4 = [("o", x, t) for x in (4, 0, 1, 2, 3) for t in range(2)]
WL = [P4[i] for i in (0, 1, 2, 3, 9)]
PLS = (0, 5, 12, 17, 22, 27, 32, 37, 42, 47)
PL = [P1[i] for i in PLS]
LDS_PAIRS = [WL[0][:2], WL[2][:2], ("k", 0), ("k", 2)]
LORDER = WL[:4] + PL[:4] + [WL[4]] + PL[4:]
LAND = {t: B7 for t in PL}
LAND.update({WL[0]: B0, WL[1]: B1, WL[2]: B7, WL[3]: B6, WL[4]: B0})
SRC = {}
for i, t in enumerate(LORDER): SRC[t] = ("lds", i)
_n = 0
for m in "qkvo":
    for ks in range(5 if m == "o" else 10):
        for t in range(2):
            if (m, ks, t) not in SRC:
                SRC[(m, ks, t)] = ("reg", STATIC0 + 8 * _n); _n += 1
assert STATIC0 + 8 * _n == 512, _n
def breg(tile): return ur(SRC[tile][1] if SRC[tile][0] == "reg" else LAND[tile], 8)

def prologue(A, M, O):
    u = M.sfx
    GQ, GO, TQ, TO, TA, W16, LN, T = range(8)
    srd(A, 8, P_WQ); srd(A, 12, P_WK); srd(A, 16, P_WV); srd(A, 20, P_WO)
    lane(A, LN)
    A(f"""s_lshl_b32 s32, {WAVE}, 6
s_lshl_b32 s3, {IDX}, 8
s_add_u32 s3, s3, s32
s_mul_i32 s33, {TEAM}, {320 * 8192}
s_sub_u32 s34, {320 * 8192}, s33
s_lshl_b32 s35, {WAVE}, 10
v_lshrrev_b32 v{T}, 2, v{LN}
v_and_b32 v{TA}, 3, v{LN}
v_lshlrev_b32 v{GQ}, 13, v{T}
v_lshl_add_u32 v{GQ}, v{TA}, 4, v{GQ}
v_add_u32 v{GQ}, s3, v{GQ}
s_mul_i32 s3, {IDX}, 163840
s_mul_i32 s30, {TEAM}, 640
s_add_u32 s3, s3, s30
v_mul_u32_u24 v{GO}, 1280, v{T}
v_lshl_add_u32 v{GO}, v{TA}, 4, v{GO}
v_add_u32 v{GO}, s3, v{GO}
s_and_b32 s37, s32, 64
s_lshr_b32 s30, {WAVE}, 1
s_mul_i32 s30, s30, {64 * 1280}
s_add_u32 s37, s37, s30
s_add_u32 s37, s37, 512""")
    pairs = [(m, ks) for m in O.get("worder", "kqvo") for ks in range(5 if m == "o" else 10) if (m, ks) not in LDS_PAIRS]
    pairs = pairs[:-3] + LDS_PAIRS + pairs[-3:]
    NA = 7
    assert len(pairs) % NA == 0
    def dma(n):
        m, ks = pairs[n]
        for i in range(4):
            if m != "o": so = f"s_add_u32 s36, s{33 if ks < 5 else 34}, {(64 * (ks % 5) + 16 * i) * 8192}"
            elif ks < 4: so = f"s_add_u32 s36, s32, {(64 * (ks & 1) + 16 * i) * 1280 + (ks >> 1) * 256}"
            else: so = f"s_add_u32 s36, s37, {16 * i * 1280}"
            A(f"s_add_u32 m0, s35, {TILES + (n % NA) * 16384 + i * 4096}\n{so}")
            A(f"buffer_load_dwordx4 v{GO if m == 'o' else GQ}, {dict(q=SA, k=SB, v=SC, o=SD)[m]}, s36 offen{O.get('wnt', '')} lds", tag=f"p{n}")
    A(f"""v_bfe_u32 v8, v{LN}, 5, 1
v_bfe_u32 v9, v{LN}, 4, 1
v_bfe_u32 v10, v{LN}, 3, 1
v_bfe_u32 v11, v{LN}, 2, 1
s_min_u32 s41, {WAVE}, 1
s_lshr_b32 s38, {IDX}, s41
s_lshl_b32 s3, {WAVE}, 5
s_add_u32 s38, s38, s3
s_and_b32 s42, {IDX}, s41
s_mul_i32 s30, {TEAM}, {lay.R_RSS}
s_add_u32 s30, s30, {lay.R_RS}
s_lshl_b32 s{S_GAT}, s38, 12
s_add_u32 s{S_GAT}, s{S_GAT}, s30
s_lshl_b32 s3, s42, 6
s_add_u32 s{S_GAT}, s{S_GAT}, s3
s_add_u32 s{S_GAT2}, s{S_GAT}, 32768
s_lshr_b32 s39, s38, 2
s_lshl_b32 s{S_OUTO}, s39, 9
s_and_b32 s40, s38, 3
s_lshl_b32 s3, s40, 6
s_add_u32 s{S_OUTO}, s{S_OUTO}, s3
s_lshl_b32 s3, {WAVE}, 14
s_lshl_b32 s{S_FR}, {IDX}, 7
s_add_u32 s{S_RS}, s3, s{S_FR}
s_add_u32 s{S_RS}, s{S_RS}, s30
s_add_u32 s{S_RS+1}, s{S_RS}, 65536
s_add_u32 s{S_RS+2}, s{S_RS}, 131072
s_add_u32 s{S_FKV}, s{S_FR}, {lay.FLG_KV}
s_lshl_b32 s3, {TEAM}, 2
s_add_u32 s{S_FR}, s{S_FR}, s3
s_add_u32 s{S_FR}, s{S_FR}, {lay.FLG_R}
s_lshl_b32 s{S_AGL}, {TEAM}, 14
s_add_u32 s{S_AGL}, s{S_AGL}, {lay.R_AG}
s_mul_i32 s{S_EXO}, {TEAM}, {3 * EXS}
s_sub_u32 s{S_EXR}, {lay.R_EX + 3 * EXS}, s{S_EXO}
s_add_u32 s{S_EXO}, s{S_EXO}, {lay.R_EX}
v_lshrrev_b32 v12, 4, v{LN}
v_and_b32 v13, 15, v{LN}
v_lshlrev_b32 v14, 12, v12
v_lshl_add_u32 v14, v13, 3, v14
v_mov_b32 v16, 1
v_mov_b32 v17, 1
v_mov_b32 v18, 0""")
    for j in range(3): A(f"buffer_store_dwordx2 v[16:17], v14, {WS}, s{S_RS+j} offen{M.st}")
    A(f"""s_mov_b32 s96, s{KA+2*P_MEM0}
s_mov_b32 s97, s{KA+2*P_MEM0+1}
s_mov_b32 s98, 10240
s_mov_b32 s99, 0x20000
s_mul_i32 s40, s40, 2560
s_lshl_b32 s39, s39, 6
s_add_u32 s39, s39, s40
s_mul_i32 s3, {TEAM}, 640
s_add_u32 s101, s39, s3
v_and_b32 v15, 1, v{LN}
v_bfe_u32 v20, v{LN}, 1, 1
v_lshlrev_b32 v23, 8, v20
v_lshl_add_u32 v23, v11, 5, v23
v_lshl_add_u32 v23, v15, 4, v23
s_xor_b32 s3, s41, 1
v_and_b32 v25, s3, v12
v_add_u32 v25, s42, v25
v_lshl_add_u32 v25, v25, 1, v8
v_lshl_add_u32 v23, v25, 2, v23
v_add_u32 v23, s{S_OUTO}, v23
v_mov_b32 v24, -1
v_mul_u32_u24 v19, 1280, v15
v_lshl_add_u32 v19, v20, 5, v19
v_lshl_add_u32 v19, v25, 3, v19
v_lshl_add_u32 v19, v11, 1, v19
buffer_load_ushort v21, v19, s[96:99], s101 offen
buffer_load_ushort v22, v19, s[96:99], s101 offen offset:4""")
    dma(0)
    A(f"""v_lshl_or_b32 v21, v22, 16, v21
v_min_u32 v21, -2, v21
s_cmp_ge_u32 s38, 40
s_cbranch_scc1 L_rinit{u}""")
    st0 = A.snap()
    for sl in range(3):
        A(f"s_add_u32 s3, s{S_AGL}, {sl * AGS}\nbuffer_store_dword v{24 if sl else 21}, v23, {WS}, s3 offen{M.st}")
        for cl in range(4): A(f"s_add_u32 s3, s{S_EXO}, {sl * EXS + cl * 8192}\nbuffer_store_dword v{24 if sl else 21}, v23, {WS}, s3 offen sc1")
    A.label(f"L_rinit{u}"); A.join(st0)
    A(f"""v_lshlrev_b32 v19, 3, v{LN}
v_mov_b32 v20, {OOB}
s_cmp_eq_u32 {WAVE}, 3
s_cselect_b32 s3, 2, 0
v_cmp_gt_u32 vcc, s3, v{LN}
v_cndmask_b32 v19, v20, v19, vcc""")
    A(f"buffer_store_dword v18, v19, {WS}, s{S_FR} offen sc1", tag="init")
    DEP = O.get("wdep", 3)
    for n in range(1, DEP):
        A("s_barrier")
        dma(n)
    arrive(A, M, "r" + u, 16, "init")
    A(f"""v_lshlrev_b32 v{W16}, 4, v{LN}
v_add_u32 v{W16}, s35, v{W16}
v_lshlrev_b32 v{TA}, 3, v{TA}
v_add_u32 v{TA}, s35, v{TA}
v_lshl_add_u32 v{TQ}, v8, 12, v{TA}
v_lshl_add_u32 v{TQ}, v9, 9, v{TQ}
v_lshl_add_u32 v{TQ}, v11, 7, v{TQ}
v_lshl_add_u32 v{TQ}, v10, 6, v{TQ}
v_lshl_add_u32 v{TO}, v9, 12, v{TA}
v_lshl_add_u32 v{TO}, v10, 5, v{TO}
v_lshl_add_u32 v{TO}, v8, 8, v{TO}
v_lshl_add_u32 v{TO}, v11, 6, v{TO}""")
    def probe(tag):
        A(f"""s_mov_b32 m0, s35
v_lshlrev_b32 v{T}, 2, v{LN}
global_load_lds_dword v{T}, {DBG} sc1""", tag=tag)
    def kvwait(need, t):
        A(f"""v_and_b32 v{t}, 7, v{LN if need == 1 else 8}
v_lshlrev_b32 v{t}, 2, v{t}
L_rkv{need}{u}:
buffer_load_dword v{t+1}, v{t}, {WS}, s{S_FKV} offen sc1""")
        tmo(A, M.fail)
        A(f"""v_cmp_gt_u32 vcc, {need}, v{t+1}
s_cbranch_vccz L_rkvok{need}{u}
s_sleep 2
s_branch L_rkv{need}{u}
L_rkvok{need}{u}:""")
    def startup():
        A.wait_vm("pr")
        st = A.snap()
        A(f"s_branch L_rce{u}\nL_rca{u}:\ns_sleep 8")
        tmo(A, M.fail); probe(None); A.force_wait()
        A.label(f"L_rce{u}"); A.restore(st)
        A(f"v_lshlrev_b32 v{T}, 2, v{LN}\nv_add_u32 v{T}, s35, v{T}\nds_read_b32 v{T}, v{T}")
        census_eval(A, M, T, f"L_rca{u}", O.get("cls"))
        A(f"""s_add_u32 s{S_EXO}, s{S_EXO}, s30
s_add_u32 s{S_EXR}, s{S_EXR}, s30
s_mul_i32 s{S_KV}, {IDX}, {lay.QKV_H}
s_lshl_b32 s30, {WAVE}, 11
s_add_u32 s{S_KV}, s{S_KV}, s30
s_add_u32 s{S_KV}, s{S_KV}, {lay.QKV}
s_add_u32 s{S_V}, s{S_KV}, 8192
s_add_u32 s{S_KM0}, s30, {KB + 8192}
s_add_u32 m0, s35, 256
v_and_b32 v{T}, 7, v{LN}
v_lshlrev_b32 v{T}, 2, v{T}""")
        A(f"buffer_load_dword v{T}, {WS}, s{S_FKV} offen sc1 lds", tag="pk")
    def firstkv():
        A.wait_vm("pk")
        A(f"v_lshlrev_b32 v{T}, 2, v{LN}\nv_add_u32 v{T}, s35, v{T}\nds_read_b32 v{T}, v{T} offset:256\nv_cmp_gt_u32 s[84:85], 2, v{T}\nv_cmp_gt_u32 vcc, 1, v{T}\ns_cbranch_vccz L_rk1{u}")
        st = A.snap()
        kvwait(1, B0)
        A.label(f"L_rk1{u}"); A.join(st)
        A(f"""s_lshl_b32 s30, {WAVE}, 11
s_add_u32 m0, s30, {KB}
v_lshlrev_b32 v{T}, 4, v{LN}
buffer_load_dwordx4 v{T}, {WS}, s{S_KV} offen sc1 lds
buffer_load_dwordx4 v{T}, {WS}, s{S_KV} offen offset:1024 sc1 lds
s_add_u32 m0, s30, {VB}
s_add_u32 s{S_KV}, s{S_KV}, {lay.QKV_S}
buffer_load_dwordx4 v{T}, {WS}, s{S_V} offen sc1 lds
buffer_load_dwordx4 v{T}, {WS}, s{S_V} offen offset:1024 sc1 lds
s_add_u32 s{S_V}, s{S_V}, {lay.QKV_S}""")
    held = {}
    for n, (m, ks) in enumerate(pairs):
        A.wait_vm(f"p{n}")
        A(f"v_add_u32 v{TA}, {TILES + (n % NA) * 16384}, v{TO if m == 'o' else TQ}")
        dst = []
        for t in range(2):
            kind, w = SRC[(m, ks, t)]
            if kind == "reg": d = w
            elif 8 <= w < 14: d = B2 + 8 * (w - 8); held[w] = d
            else: d = B0 + 8 * t
            dst.append(d)
            for qd in range(4):
                off = (qd >> 1) * 512 + (qd & 1) * 128 + 8192 * t if m == "o" else (qd >> 1) * 8192 + (qd & 1) * 256 + 32 * t
                A(f"ds_read_b64_tr_b16 {ur(d + 2 * qd, 2)}, v{TA} offset:{off}")
        A.wait_lg()
        if O.get("wbar", 1) and n + DEP < len(pairs): A("s_barrier")
        if n + DEP < len(pairs): dma(n + DEP)
        if n + DEP == len(pairs) - 6 and O.get("lpf", 0):
            A(f"""s_getpc_b64 s[30:31]
L_rpc{u}:
s_lshl_b32 s3, {WAVE}, 13
v_lshl_add_u32 v{T}, v{LN}, 7, s3
v_min_u32 v{T}, L_role_p{u}-L_rpc{u}-4, v{T}
s_add_u32 m0, s35, 512
global_load_lds_dword v{T}, s[30:31]""")
        for t in range(2):
            kind, w = SRC[(m, ks, t)]
            if kind == "lds" and w not in held:
                A(f"v_add_u32 v{T}, {TILES + w * 8192}, v{W16}")
                for hf in range(2): A(f"ds_write_b128 v{T}, {v(dst[t] + 4 * hf, 4)} offset:{4096 * hf}")
        k0 = len(pairs) - O.get("kvat", 2)
        if n == k0 - 2 * DEP - 2: probe("pr")
        if n == k0 - DEP - 1: startup()
        if n == k0: firstkv()
    for w, d in held.items():
        A(f"v_add_u32 v{T}, {TILES + w * 8192}, v{W16}")
        for hf in range(2): A(f"ds_write_b128 v{T}, {v(d + 4 * hf, 4)} offset:{4096 * hf}")
    A.wait_lg()
    ev(A, O, 2, 8)
    A(f"""v_mov_b32 v8, v{LN}
v_lshrrev_b32 v9, 4, v8
v_and_b32 v10, 15, v8
v_lshlrev_b32 v{L16}, 4, v8
v_add_u32 v{LB2}, 0x10000, v{L16}
v_lshrrev_b32 v11, 5, v8
v_lshlrev_b32 v11, 6, v11
v_lshlrev_b32 v12, 3, v10
v_xor_b32 v11, v11, v12
v_lshl_add_u32 v{XW}, v9, 7, v11
v_lshrrev_b32 v11, 2, v8
v_lshlrev_b32 v11, 3, v11
v_bfe_u32 v13, v8, 1, 1
v_lshlrev_b32 v14, 6, v13
v_xor_b32 v11, v11, v14
v_and_b32 v14, 3, v8
v_lshl_add_u32 v{XR}, v14, 7, v11
v_lshl_add_u32 v{RSA}, v9, 12, v12
v_lshrrev_b32 v{GA}, 2, v8
v_lshlrev_b32 v{GA}, 7, v{GA}
v_lshl_add_u32 v{GA}, v14, 4, v{GA}
v_and_b32 v15, 1, v8
v_mul_u32_u24 v{IDXR}, 0xaaaa, v13
v_add_u32 v{IDXR}, 0x4444, v{IDXR}
v_bfe_u32 v11, v8, 2, 1
v_lshlrev_b32 v{SP}, 8, v13
v_lshl_add_u32 v{SP}, v11, 5, v{SP}
v_lshl_add_u32 v{SP}, v15, 4, v{SP}
s_xor_b32 s3, s41, 1
v_and_b32 v25, s3, v9
v_add_u32 v25, s42, v25
v_lshrrev_b32 v26, 5, v8
v_lshl_add_u32 v25, v25, 1, v26
v_lshl_add_u32 v{SP}, v25, 2, v{SP}
v_add_u32 v{SP}, s{S_OUTO}, v{SP}
""")
    for j in range(4):
        mk = sum(3 << (8 * b + 2 * j) for b in range(4))
        A(f"s_mov_b32 s{S_SEL+2*j}, {mk}\ns_mov_b32 s{S_SEL+2*j+1}, {mk}")
    A(f"""s_mov_b32 s{S_CS}, {f32bits(lay.C_SCALE)}
s_mov_b32 s{S_ONE}, 0x3f80
s_mov_b32 s74, 0x3f803f80
s_mov_b32 s75, 0x3f803f80
s_mov_b32 s{S_RNG}, {120 << 23}
s_mov_b32 s{S_STEP}, 0
s_mov_b32 s{S_PH}, 0
s_mov_b32 s{S_PHM}, 0
s_mov_b32 s{S_SLOT}, 0
s_mul_i32 s{S_PUB}, {IDX}, {lay.KM_H}
s_add_u32 s{S_PUB}, s{S_PUB}, {lay.KMVM - lay.KM_S}
s_add_u32 s{S_PUB2}, s{S_PUB}, 4096
s_cmp_eq_u32 {TEAM}, 0
s_cselect_b32 s30, 0, 0x40000000
s_cselect_b32 s31, 0x40000000, 0
s_add_u32 s{S_PUB}, s{S_PUB}, s30
s_add_u32 s{S_PUB2}, s{S_PUB2}, s31
""")
    A(f"""s_lshl_b32 s3, {WAVE}, 10
s_add_u32 s{S_AGA}, s{S_AGL}, s3
s_add_u32 s{S_RMB}, s{S_EXR}, s3
s_lshr_b32 s3, s3, 2
s_add_u32 s3, s3, 4096
s_add_u32 s{S_AG4}, s{S_AGL}, s3
s_add_u32 s{S_RM9}, s{S_EXR}, s3
s_add_u32 s{S_EXZ}, s{S_EXO}, {2 * EXS}""")
    A(f"s_cmp_eq_u64 s[84:85], 0\ns_cbranch_scc1 L_rk2{u}")
    kvwait(2, B1)
    A.label(f"L_rk2{u}")
    ev(A, O, 3, 8)
    A.force_wait()

def lds_tile(A, W, tile, hi=False):
    w = SRC[tile][1]; d = LAND[tile]
    for hf in range(2):
        o = TILES + w * 8192 + hf * 4096 + W * 1024
        base = L16 if o < 65536 else LB2
        assert o < 65536 or (o >> 16) == (2 if hi else 1), (tile, o, hi)
        A(f"ds_read_b128 {v(d + 4 * hf, 4)}, v{base} offset:{o & 0xffff}")
def zero(A, r, n):
    for i in range(0, n, 2): A(f"v_mov_b64 {v(r + i, 2)}, 0")
def delay(A, cyc):
    d = cyc // 4
    while d > 0: A(f"s_nop {min(d, 16) - 1}"); d -= 16

class Stamps:
    def __init__(self, names): self.names = names or []
    def __call__(self, A, name):
        if name in self.names:
            i = self.names.index(name); A.raw(f"s_memtime s[{S_T + 2 * i}:{S_T + 2 * i + 1}]")

def step(A, M, W, red, O):
    u = f"{W}{red}{M.sfx}"
    stamp = Stamps(O.get("stamp"))
    NST = 6
    side = []
    L4 = GA
    mk4 = lambda t=L4: f"v_lshrrev_b32 v{t}, 2, v{L16}"
    ld = lambda r, so, t=L4: f"buffer_load_dwordx4 {v(r, 4)}, v{L16}, {WS}, s{so} offen sc1\nbuffer_load_dword v{r + 4}, v{t}, {WS}, s{so + 1} offen sc1"
    wr = lambda r, base, t=L4: [f"ds_write_b128 v{L16}, {v(r, 4)} offset:{base + W * 1024}", f"ds_write_b32 v{t}, v{r + 4} offset:{base + 4096 + W * 256}"]
    chk = lambda r, t: [f"v_max3_u32 v{t}, v{r}, v{r+1}, v{r+2}", f"v_max3_u32 v{t}, v{t}, v{r+3}, v{r+4}", f"v_cmp_eq_u32 vcc, -1, v{t}"]
    def gather(A, regs):
        for i in range(4):
            so, off = (S_GAT, 1024 * i) if red == 1 else (S_GAT2 if i >> 1 else S_GAT, 2048 * (i & 1))
            A(f"buffer_load_dwordx4 {v(regs[i], 4)}, v{L16 if red == 1 else GA}, {WS}, s{so} offen offset:{off} sc1")
    def frag(A, j, r): A(f"ds_read_b128 {v(r, 4)}, v{L16} offset:{MEM + j * 1024}")
    def xread(A, ks):
        for hf in range(2): A(f"ds_read_b64_tr_b16 {v(B0 + 4 * ks + 2 * hf, 2)}, v{XR} offset:{XB + (4 * hf + ks) * 512}")
    KR = LB2
    def kfrag(A, xt, ks, r): A(f"ds_read_b128 {v(r, 4)}, v{KR} offset:{(xt * 4 + ks) * 1024}")
    def prep(A):
        for hf in range(2): A(f"ds_read_b128 {v(B6 + 4 * hf, 4)}, v{L16} offset:{VB + (2 * W + hf) * 1024}")
        lds_tile(A, W, PL[0])
        zero(A, B0, 24)
    cv = lambda d, r: f"v_cvt_pk_bf16_f32 v{d}, v{r}, v{r + 1}"
    mf = lambda d, x, y, first: f"v_mfma_f32_16x16x32_bf16 {v(d, 4)}, {v(x, 4)}, {v(y, 4)}, {'0' if first else v(d, 4)}"
    m16 = lambda d, x, y, first: f"v_mfma_f32_16x16x16_bf16 {v(d, 4)}, {v(x, 2)}, {v(y, 2)}, {'0' if first else v(d, 4)}"
    ex = lambda r: f"v_exp_f32 v{r}, v{r}"
    Sm, S0, S1, PX, LL, O0, O1, OP = c1, c0, a0, a1, c1, b1, b0, c0
    def owrite(A, tag=None):
        A(f"""v_rcp_f32 v{LL}, v{LL}
v_rcp_f32 v{LL+1}, v{LL+1}
v_mul_f32 v{O0}, v{O0}, v{LL}
v_mul_f32 v{O0+1}, v{O0+1}, v{LL+1}""")
        A(cv(OP, O0)); A(cv(OP + 1, O0))
        A(f"ds_write_b64 v{XW}, {v(OP, 2)} offset:{OB + W * 512}")
        A(f"v_pk_mul_f32 {v(O1, 2)}, {v(O1, 2)}, {v(LL, 2)}")
        A(cv(OP + 2, O1)); A(cv(OP + 3, O1))
        A(f"ds_write_b64 v{XW}, {v(OP + 2, 2)} offset:{OB + (4 + W) * 512}", tag=tag)
    def truemax(A):
        t, t2 = Sm, Sm + 1
        A(f"""v_max3_f32 v{t}, v{Sm+2}, v{Sm+3}, v{S0}
v_max3_f32 v{t}, v{t}, v{S0+1}, v{S0+2}
v_max3_f32 v{t}, v{t}, v{S0+3}, v{S1}
v_max3_f32 v{t}, v{t}, v{S1+1}, v{S1+2}
v_max_f32 v{t}, v{t}, v{S1+3}
v_mov_b32 v{t2}, v{t}
v_permlane32_swap_b32 v{t}, v{t2}
v_max_f32 v{t}, v{t}, v{t2}
v_mov_b32 v{t2}, v{t}
v_permlane16_swap_b32 v{t}, v{t2}
v_max_f32 v{t}, v{t}, v{t2}""")
        vals = [Sm + 2, Sm + 3] + [S0 + i for i in range(4)] + [S1 + i for i in range(4)]
        for r in vals: A(f"v_sub_f32 v{r}, v{r}, v{t}")
        for r in vals: A(ex(r))
        A(cv(B2 + 4, Sm + 2)); A(cv(B2 + 7, Sm + 2))
        A(cv(PX, S0)); A(cv(PX + 1, S0 + 2)); A(cv(PX + 2, S1)); A(cv(PX + 3, S1 + 2))
        A(m16(LL, B2 + 4, B2 + 2, True)); A(m16(O0, B2 + 4, B2, True)); A(m16(O1, B2 + 6, B2, True))
        A(m16(LL, PX, B2 + 2, False)); A(m16(LL, PX + 2, B2 + 2, False))
        A(mf(O0, PX, B6, False)); A(mf(O1, PX, B6 + 4, False))
    SEL, RA, T1 = B2, B2 + 4, B3
    g2 = O.get("g2", [60, 200])[red - 1]
    G1 = [B0, B0 + 4, B1, B1 + 4]; G2 = [B7, B7 + 4, B6, B6 + 4]
    def reduce(A, regs):
        for i, r in enumerate(regs):
            A(f"v_mfma_f32_16x16x32_bf16 {v(RA, 4)}, {v(r, 4)}, {v(SEL, 4)}, {'0' if i == 0 else v(RA, 4)}")
            A(f"v_bitop3_b32 v{T1 + min(i, 1)}, v{r}, v{r + 2}, s{S_PHM} bitop3:0x7e")
            if 0 < i < len(regs) - 1: A(f"v_or_b32 v{T1}, v{T1}, v{T1+1}")
        A(f"""v_bitop3_b32 v{T1}, v{T1}, v{T1+1}, 1 bitop3:0xa8
v_cmp_ne_u32 vcc, 0, v{T1}
s_nop 3""")
    def finish(A):
        A(f"""v_permlane32_swap_b32 v{RA}, v{RA+2}
v_permlane32_swap_b32 v{RA+1}, v{RA+3}
v_pk_add_f32 {v(RA, 2)}, {v(RA, 2)}, {v(RA + 2, 2)}""")
        if red == 2:
            A(f"""v_mov_b64 {v(RA + 2, 2)}, {v(RA, 2)}
v_permlane16_swap_b32 v{RA}, v{RA+2}
v_permlane16_swap_b32 v{RA+1}, v{RA+3}
v_pk_add_f32 {v(RA, 2)}, {v(RA, 2)}, {v(RA + 2, 2)}""")
        A(cv(RA, RA))
        A(f"v_min_u32 v{RA}, -2, v{RA}")
    gexit = []
    if red:
        keep = (list(A.out), A.snap(), A.n_nop, A.n_ins)
        for regs in (G1, G2):
            A.force_wait(); gather(A, regs); A("s_nop 7"); gexit.append(A.snap())
        A.out[:] = keep[0]; A.restore(keep[1]); A.n_nop, A.n_ins = keep[2:]
    if O.get("stamp"):
        for i in range(NST): stamp(A, O["stamp"][i])
        for i in range(88, 100): A(f"s_mov_b32 s{i}, 0")
    sets = [c0, c1, b0, b1][:O.get("ns", 4)]
    lda = lambda r: f"buffer_load_dwordx4 {v(r, 4)}, v{L16}, {WS}, s{S_AGA} offen sc1"
    ldq = f"buffer_load_dword v{b1}, v{L4}, {WS}, s{S_AG4} offen sc1"
    wrq = f"ds_write_b32 v{L4}, v{b1} offset:{MEM + 4096 + W * 256}"
    A(mk4())
    def acheck(A, r):
        A(f"ds_write_b128 v{L16}, {v(r, 4)} offset:{MEM + W * 1024}", tag="aw")
        A(f"v_max3_u32 v{a0}, v{r}, v{r+1}, v{r+2}\nv_max_u32 v{a0}, v{a0}, v{r+3}\nv_cmp_eq_u32 vcc, -1, v{a0}")
    aexit = []
    keep = (list(A.out), A.snap(), A.n_nop, A.n_ins)
    for r in sets:
        A.force_wait(); A(lda(r)); A(f"ds_write_b128 v{L16}, {v(a0, 4)}", tag="aw"); A("s_nop 7"); aexit.append(A.snap())
    A.out[:] = keep[0]; A.restore(keep[1]); A.n_nop, A.n_ins = keep[2:]
    if not red: prep(A)
    A.skip = O.get("skip")

    def body(A):
        side.clear()
        A.raw(".p2align 4")
        A.label(f"L_step{u}")
        for i, r in enumerate(sets):
            A(lda(r))
            if red and i == len(sets) - 2: prep(A); delay(A, O.get("gap", 68) - 64)
            elif i < len(sets) - 1: delay(A, O.get("gap", 68))
        acheck(A, sets[0])
        A(f"s_cbranch_vccnz L_aretry{u}"); side.append(("a", A.snap()))
        A.label(f"L_aback{u}")
        A.join(*aexit)
        A(ldq)
        rb = O.get("rb", -1)
        if rb == -2: A(ld(c0, S_RMB))
        A.wait_lg("aw")
        stamp(A, "A"); A("s_barrier"); stamp(A, "A2")
        frag(A, 0, a0)
        if rb == -1: A(ld(c0, S_RMB))
        frag(A, 1, a1)
        order = P1
        fb = {0: a0, 1: a1, 2: b0, 3: a0, 4: a1, 5: b0, 6: b1, 7: a0, 8: c0, 9: a1}
        N = {i: [] for i in range(90)}; V = {i: [] for i in range(90)}
        L = lambda t, hi=False: (lambda: lds_tile(A, W, t, hi))
        for i in range(1, 10): N[PLS[i - 1]] += [L(PL[i], i >= 6)]
        V[24] += [f"v_add_u32 v{LB2}, 0x10000, v{LB2}"]
        N[7] += [lambda: frag(A, 2, b0)]
        N[9] += [lambda: frag(A, 3, a0)]
        N[18] += [lambda: frag(A, 4, a1)]
        def branch(kind):
            def f():
                A(f"s_cbranch_vccnz L_{kind}retry{u}"); side.append((kind, A.snap())); A.label(f"L_{kind}back{u}")
            return f
        N[10] += [lambda: A(wrq, tag="qw")]; V[10] += [f"v_cmp_eq_u32 vcc, -1, v{b1}"]
        N[14] += [branch("f")]; N[15] += [lambda: A.wait_lg("qw"), "s_barrier"]
        bp = O.get("bpos", 20)
        w_, c_ = wr(c0, MEM + 5120), chk(c0, c1 + 1)
        N[bp] += [w_[0]]; V[bp] += [c_[0]]
        N[bp + 1] += [lambda: A(w_[1], tag="bw")]; V[bp + 1] += [c_[1]]; V[bp + 2] += [c_[2]]
        N[bp + 4] += [branch("b")]
        N[bp + 5] += [lambda: A.wait_lg("bw"), "s_barrier", lambda: frag(A, 5, b0)]
        N[bp + 6] += [lambda: frag(A, 6, b1)]
        N[28] += [lambda: frag(A, 7, a0)]
        N[29] += [lambda: frag(A, 8, c0)]
        N[30] += [lambda: frag(A, 9, a1)]
        N[8] += [f"s_mov_b32 m0, s{S_KM0}", f"s_xor_b32 s{S_KM0}, s{S_KM0}, 8192"]
        kv = [f"buffer_load_dwordx4 v{L16}, {WS}, s{S_KV} offen sc1 lds",
              f"buffer_load_dwordx4 v{L16}, {WS}, s{S_KV} offen offset:1024 sc1 lds\ns_mov_b32 m0, {VB + W * 2048}",
              f"buffer_load_dwordx4 v{L16}, {WS}, s{S_V} offen sc1 lds", f"buffer_load_dwordx4 v{L16}, {WS}, s{S_V} offen offset:1024 sc1 lds"]
        for x, i in zip(kv, O.get("kvs", (bp + 6, 28, 31, 33))): N[i] += [x]
        imm = O.get("imm", 1)
        if not imm:
            N[10] += [f"ds_read_b64 {v(c1 + 2, 2)}, v{XW} offset:{VMS + W * 512}"]
            N[34] += [f"buffer_store_dwordx2 {v(c1 + 2, 2)}, v{XW}, {WS}, s{S_PUB2} offen offset:{W * 512} sc1"]
            N[35] += [f"ds_read_b64_tr_b16 {v(c1, 2)}, v{XR} offset:{XB + W * 512}", f"ds_read_b64_tr_b16 {v(c1 + 2, 2)}, v{XR} offset:{XB + (4 + W) * 512}"]
            N[40 + (W >> 1)] += [f"buffer_store_dwordx4 {v(c1, 4)}, v{L16}, {WS}, s{S_PUB} offen offset:{W * 1024} sc1"]
        if red:
            V[31] += [f"v_mov_b32 v{GA}, -1"]
            N[38] += [f"buffer_store_dword v{GA}, v{SP}, {WS}, s{S_EXZ} offen sc1"]
        if W == 2:
            N[19] += [f"s_sub_u32 s3, s{S_STEP}, {0 if imm else 1}\ns_max_i32 s3, s3, 0"]
            V[19] += [f"v_mov_b32 v{SP}, s3"]
            N[38] += [f"buffer_store_dword v{SP}, off, {WS}, s{S_FR} sc1"]
        if W == 3:
            V[19] += [f"v_bfe_u32 v{SP}, v{L16}, 2, 5"]
            N[38] += [f"buffer_load_dword v{SP}, v{SP}, {WS}, s{S_FKV} offen sc1"]
        N[1] += [f"s_mul_i32 s3, s{S_SLOT}, {AGS}\ns_add_u32 s{S_AGZ}, s{S_AGL}, s3\ns_lshl_b32 s30, s{S_SLOT}, 15"]
        N[2] += [f"s_add_u32 s{S_SLOT}, s{S_SLOT}, 1\ns_cmp_eq_u32 s{S_SLOT}, 3\ns_cselect_b32 s{S_SLOT}, 0, s{S_SLOT}"]
        N[3] += [f"s_mul_i32 s3, s{S_SLOT}, {AGS}\ns_add_u32 s{S_AGW}, s{S_AGL}, s3\ns_lshl_b32 s31, s{S_SLOT}, 15"]
        N[6] += [f"s_add_u32 s{S_EXW}, s{S_EXO}, s31\ns_add_u32 s31, s31, s{S_EXR}\ns_add_u32 s{S_AGA}, s{S_AGW}, {W * 1024}"]
        N[16] += [f"s_add_u32 s{S_AG4}, s{S_AGW}, {4096 + W * 256}"]
        N[13] += [f"s_add_u32 s{S_NEED}, s{S_STEP}, 3\ns_min_u32 s{S_NEED}, s{S_NEED}, 64"]
        N[36] += [f"s_add_u32 s{S_RMB}, s31, {W * 1024}\ns_add_u32 s{S_RM9}, s31, {4096 + W * 256}"]
        N[39] += [f"s_add_u32 s{S_KV}, s{S_KV}, {lay.QKV_S}\ns_add_u32 s{S_V}, s{S_V}, {lay.QKV_S}"]
        N[43] += [f"s_add_u32 s{S_PUB}, s{S_PUB}, {lay.KM_S}\ns_add_u32 s{S_PUB2}, s{S_PUB2}, {lay.KM_S}"]
        N[44] += [f"s_add_u32 s{S_EXZ}, s{S_EXO}, s30\ns_sub_u32 s3, s{S_KM0}, {W * 2048}"]
        N[45] += ["s_nop 1"]; N[49] += ["s_nop 1"]; N[50] += ["s_nop 0"]
        N[48] += [f"s_cmp_eq_u32 s{S_STEP}, 63"]
        k0, k1 = ACC["k"]; q0, q1 = ACC["q"]; v0_, v1_ = ACC["v"]
        ad = lambda r, i: f"v_add_f32 v{r + i}, v{r + i}, v{r + i + 2}"
        mu = lambda r, i: f"v_mul_f32 v{r + i}, s{S_CS}, v{r + i}"
        pv = [ad(k0, 0), ad(k0, 1), mu(k0, 0), mu(k0, 1), ad(k1, 0), ad(k1, 1), mu(k1, 0), mu(k1, 1), ad(q0, 0), ad(q0, 1), cv(c1 + 1, k0), cv(c1 + 3, k1)]
        for i, x in enumerate(pv): V[39 + i] += [x]
        V[49] += [cv(c1, q0)]
        N[50] += [f"ds_write_b64 v{XW}, {v(c1, 2)} offset:{XB + W * 512}"]
        V[51] += [ad(q1, 0), ad(q1, 1), cv(c1 + 2, q1), lambda: A(f"ds_write_b64 v{XW}, {v(c1 + 2, 2)} offset:{XB + (4 + W) * 512}", tag="xw")]
        V[52] += [f"v_add_u32 v{KR}, s3, v{L16}"]
        xb = O.get("xb", 55)
        N[xb] += [lambda: [A.wait_lg("xw"), stamp(A, "X"), A("s_barrier"), stamp(A, "X2"), xread(A, 0)]]
        N[xb + 1] += [lambda: [xread(A, 1)]]
        N[xb + 2] += [lambda: [xread(A, 2)]]
        N[xb + 3] += [lambda: [xread(A, 3)]]
        N[53] += [lambda: kfrag(A, 0, 0, d0), lambda: kfrag(A, 0, 1, d1)]
        N[54] += [lambda: kfrag(A, 0, 2, a0), lambda: kfrag(A, 0, 3, a1)]
        N[59] += [lambda: kfrag(A, 1, 0, b1)]
        N[60] += [lambda: kfrag(A, 1, 1, b0)]
        fast = O.get("fast", 1)
        V[61] += [ad(v0_, 0), ad(v0_, 1)]
        V[62] += [ad(v1_, 0), ad(v1_, 1)]
        V[63] += [cv(B2, v0_), cv(B2 + 1, v1_)]
        N[64] += [lambda: kfrag(A, 1, 2, d0)]
        V[64] += [f"v_mov_b64 {v(B2 + 2, 2)}, s[74:75]"]
        N[65] += [lambda: kfrag(A, 1, 3, d1)]
        V[65] += [f"v_mov_b32 v{B2 + 5}, 0"]
        if imm:
            N[60 + W] += [f"buffer_store_dwordx4 {v(B0 + 4 * W, 4)}, v{L16}, {WS}, s{S_PUB} offen offset:{W * 1024} sc1"]
            N[65] += [f"buffer_store_dwordx2 {v(B2, 2)}, v{XW}, {WS}, s{S_PUB2} offen offset:{W * 512} sc1"]
        else: N[69] += [f"ds_write_b64 v{XW}, {v(B2, 2)} offset:{VMS + W * 512}"]
        N[66] += [lambda: [A(f"s_cbranch_scc1 L_last{u}"), side.append(("l", A.snap()))]]
        V[69] += [f"v_mov_b32 v{B2 + 6}, 0"]
        if fast:
            V[67] += [ex(Sm + 3)]; V[66] += [ex(Sm + 2)]; V[68] += [cv(B2 + 4, Sm + 2), cv(B2 + 7, Sm + 2)]
            V[70] += [ex(S0)]; V[71] += [ex(S0 + 1)]; V[72] += [ex(S0 + 2)]; V[73] += [ex(S0 + 3)]
            N[72] += ["s_nop 0"]; N[73] += ["s_nop 0"]
            V[74] += [ex(S1), cv(PX, S0), cv(PX + 1, S0 + 2), ex(S1 + 1), ex(S1 + 2)]
            V[75] += [ex(S1 + 3), cv(PX + 2, S1), cv(PX + 3, S1 + 2), L(WL[0])]
            N[76] += [L(WL[1])]; N[77] += [L(WL[2])]
        seq = [f"v_smfmac_f32_16x16x64_bf16 {v(ACC[m][t], 4)}, {v(fb[ks], 4)}, {breg((m, ks, t))}, v{IDXR}" for m, ks, t in order]
        seq += [mf(Sm, B0 + 4 * ks, B0 + 4 * ks, ks == 0) for ks in range(4)]
        seq += [mf(S0, r, B0 + 4 * ks, ks == 0) for ks, r in enumerate((d0, d1, a0, a1))]
        seq += [mf(S1, r, B0 + 4 * ks, ks == 0) for ks, r in enumerate((b1, b0, d0, d1))]
        if fast:
            seq += [m16(LL, B2 + 4, B2 + 2, True), m16(O0, B2 + 4, B2, True), m16(O1, B2 + 6, B2, True), m16(LL, PX, B2 + 2, False),
                    m16(LL, PX + 2, B2 + 2, False), mf(O0, PX, B6, False), mf(O1, PX, B6 + 4, False)]
        def run(seq, N, V, pfx, tail=0):
            for i in range(len(seq) + tail):
                if i < len(seq): A(seq[i])
                for x in N[i]: x() if callable(x) else A(x)
                if V[i] and i + 1 < len(seq) and not (pfx == "p" and i + 1 in PLS and O.get("nohoist", 1)): A.prewait(seq[i + 1])
                for x in V[i]: x() if callable(x) else A(x)
                stamp(A, f"{pfx}{i}")
        run(seq, N, V, "p")
        if not fast:
            for t in WL[:3]: lds_tile(A, W, t)
            truemax(A)
        A(f"v_add_u32 v{LB2}, 0x10000, v{L16}")
        owrite(A, "ow")
        if fast:
            A(f"""v_subrev_u32 v{LL}, {67 << 23}, v{LL}
v_subrev_u32 v{LL+1}, {67 << 23}, v{LL+1}
v_max_u32 v{LL}, v{LL}, v{LL+1}
v_cmp_le_u32 vcc, s{S_RNG}, v{LL}""")
        zero(A, B4, 8); zero(A, c1, 4)
        if fast: branch("s")()
        lds_tile(A, W, WL[3])
        A.wait_lg("ow"); stamp(A, "O"); A("s_barrier"); stamp(A, "O2")
        OA = [B2, B2 + 4, B3, B3 + 4]
        for kk in (0, 1, 2, 3) if W < 2 else (2, 3, 0, 1):
            for hf in range(2): A(f"ds_read_b64_tr_b16 {v(OA[kk] + 2 * hf, 2)}, v{XR} offset:{OB + (4 * hf + kk) * 512}")
        acc = [b0, b1, c1]
        N = {i: [] for i in range(30)}; V = {i: [] for i in range(30)}
        N[2] += [L(WL[4])]; N[1] += ["s_nop 1"]
        rs = lambda g: (lambda: A(f"buffer_store_dwordx2 {v(acc[g], 2)}, v{RSA}, {WS}, s{S_RS + g} offen{M.st}", tag=f"rs{g}"))
        tg = lambda g: f"v_and_or_b32 v{acc[g]}, v{acc[g]}, -2, s{S_PH}"
        V[3] += [cv(c1, c1)]; V[4] += [cv(c1 + 1, c1 + 2), tg(2)]; N[5] += [rs(2), "s_nop 0"]
        N[6] += ["s_nop 1"]
        V[7] += [cv(b0, b0)]; V[8] += [cv(b0 + 1, b0 + 2), tg(0)]; N[9] += [rs(0)]
        V[9] += [cv(b1, b1), cv(b1 + 1, b1 + 2), tg(1), rs(1)]
        seq = [f"v_smfmac_f32_16x16x64_bf16 {v(acc[x >> 1], 4)}, {v(OA[2 * (x & 1 if x < 4 else W >> 1) + t], 4)}, {breg((m, x, t))}, v{IDXR}" for m, x, t in P4]
        run(seq, N, V, "w")
        stamp(A, "T0")
        trc = 0
        if O.get("stamp"):
            trc = 108
            A.force_wait("lgkmcnt(0)")
            A(f"s_cmp_ge_u32 s{S_STEP}, 4\ns_cselect_b32 s72, -1, 0")
            for i in range(NST - 1): A(f"s_sub_u32 s3, s{S_T + 2*i + 2}, s{S_T + 2*i}\ns_and_b32 s3, s3, s72\ns_add_u32 s{88 + i}, s{88 + i}, s3")
            A(f"s_cmp_eq_u32 s{S_STEP}, 4\ns_cmov_b32 s93, s{S_T}\ns_cmov_b32 s73, {TMO}\ns_cmov_b32 s101, 0\ns_cmp_eq_u32 s{S_STEP}, {O.get('snap', 30)}")
            for i in range(NST): A(f"s_cmov_b32 s{94 + i}, s{S_T + 2*i}")
        A(f"s_xor_b32 s{S_PH}, s{S_PH}, 1\ns_add_u32 s{S_STEP}, s{S_STEP}, 1")
        if red:
            gd = O.get("gd", [220, 140, 20])
            if red == 1:
                A(f"s_cmp_lt_u32 {IDX}, 16\ns_cbranch_scc1 L_glo{u}"); delay(A, gd[2]); A.label(f"L_glo{u}")
                delay(A, gd[0] - gd[2] - 20 - trc)
            else:
                A(f"v_and_b32 v{GA}, 0x3c0, v{L16}\nv_add_u32 v{GA}, v{GA}, v{L16}")
                delay(A, gd[1] - trc)
            gather(A, G1); stamp(A, "G")
            A(f"""v_and_b32 v{T1}, 16, v{L16}
v_lshlrev_b32 v{T1}, v{T1}, s{S_ONE}""")
            for j in range(4): A(f"v_cndmask_b32 v{SEL + j}, 0, v{T1}, s[{S_SEL+2*j}:{S_SEL+2*j+1}]")
            A(f"v_mov_b32 v{T1+5}, -1")
            if g2 is not None:
                delay(A, g2); gather(A, G2)
            reduce(A, G1)
            A(f"s_cbranch_vccnz L_gretry{u}"); side.append(("g", A.snap()))
            A.label(f"L_gback{u}")
            if gexit: A.join(*gexit)
            finish(A)
            A(f"buffer_store_dword v{RA}, v{SP}, {WS}, s{S_AGW} offen{M.st}")
            stamp(A, "T1")
            A("s_barrier")
            A(f"buffer_store_dword v{RA}, v{SP}, {WS}, s{S_EXW} offen sc1")
            A(f"buffer_store_dword v{T1+5}, v{SP}, {WS}, s{S_AGZ} offen{M.st}")
            A(f"s_not_b32 s{S_PHM}, s{S_PHM}")
        else:
            stamp(A, "G")
            A.wait_vm()
            stamp(A, "T1")
            if O.get("prof") and W == 1:
                A(("s_memtime" if O["prof"] == 1 else "s_memrealtime") + " s[72:73]\ns_mov_b32 m0, s%d" % S_STEP); A.wait_lg(); A(f"v_writelane_b32 v{SP}, s72, m0")
            prep(A)
            if W == 3:
                A(f"v_cmp_gt_u32 vcc, s{S_NEED}, v{SP}")
                branch("k")()
            A("s_barrier")
        A(mk4())
        delay(A, O.get("ad", [170, 162, 162])[red])
        A(f"s_branch L_step{u}")
        return A.snap()
    A.loop(body)
    A.skip = None
    def cnt(kind):
        if O.get("stamp"): A(f"s_add_u32 s101, s101, {1 << (8 * 'fabg'.index(kind))}")
    for kind, st in list(side):
        A.restore(st)
        if kind == "a":
            ex_ = []
            def al(A):
                ex_.clear()
                A.label(f"L_aretry{u}")
                for i in range(len(sets)):
                    r = sets[(i + 1) % len(sets)]
                    A(lda(sets[i])); cnt("a")
                    A(f"v_max3_u32 v{a0}, v{r}, v{r+1}, v{r+2}\nv_max_u32 v{a0}, v{a0}, v{r+3}\nv_cmp_eq_u32 vcc, -1, v{a0}")
                    A(f"s_cbranch_vccz L_aw{i}{u}"); ex_.append((i, r, A.snap()))
                A(f"s_add_u32 {TMO}, {TMO}, 1\ns_cmp_gt_u32 {TMO}, {TMO_MAX}\ns_cbranch_scc0 L_aretry{u}")
                st = A.snap(); A("s_branch " + M.fail)
                return st
            A.loop(al)
            for i, r, st in ex_:
                A.restore(st); A.label(f"L_aw{i}{u}")
                A(f"ds_write_b128 v{L16}, {v(r, 4)} offset:{MEM + W * 1024}\ns_branch L_aback{u}")
        elif kind == "f":
            A.label(f"L_fretry{u}"); A.force_wait("lgkmcnt(0)")
            A(ldq); cnt("f"); tmo(A, M.fail); A.wait_vm()
            A(wrq); A(f"v_cmp_eq_u32 vcc, -1, v{b1}")
            A.wait_all()
            A(f"s_cbranch_vccnz L_fretry{u}\ns_branch L_fback{u}")
        elif kind == "b":
            A.label(f"L_bretry{u}"); A.force_wait("lgkmcnt(0)")
            A(ld(c0, S_RMB)); cnt("b"); tmo(A, M.fail); A.wait_vm()
            for x in wr(c0, MEM + 5120) + chk(c0, c1 + 1): A(x)
            A.wait_all()
            A(f"s_cbranch_vccnz L_bretry{u}\ns_branch L_bback{u}")
        elif kind == "g":
            A.label(f"L_gretry{u}")
            if g2 is None: gather(A, G2); delay(A, 100)
            def gl(A):
                A.label(f"L_gloop{u}")
                for again, regs in ((G1, G2), (G2, G1)):
                    gather(A, again); cnt("g")
                    A(f"s_add_u32 {TMO}, {TMO}, 1")
                    reduce(A, regs)
                    A(f"s_cbranch_vccz L_gback{u}")
                A(f"s_cmp_gt_u32 {TMO}, {TMO_MAX}\ns_cbranch_scc0 L_gloop{u}")
                st = A.snap(); A("s_branch " + M.fail)
                return st
            A.loop(gl)
        elif kind == "k":
            A.label(f"L_kretry{u}"); tmo(A, M.fail)
            A(f"""v_bfe_u32 v{SP}, v{L16}, 2, 5
buffer_load_dword v{SP}, v{SP}, {WS}, s{S_FKV} offen sc1
v_cmp_gt_u32 vcc, s{S_NEED}, v{SP}
s_cbranch_vccnz L_kretry{u}
s_branch L_kback{u}""")
        elif kind == "s":
            A.label(f"L_sretry{u}"); A.force_wait("lgkmcnt(0)")
            A(f"s_sub_u32 s3, s{S_KM0}, {W * 2048}\nv_add_u32 v{KR}, s3, v{L16}")
            for ks in range(4): xread(A, ks)
            for ks in range(4): A(mf(Sm, B0 + 4 * ks, B0 + 4 * ks, ks == 0))
            for xt, d in ((0, S0), (1, S1)):
                for ks, r in enumerate((d0, d1, b0, b1)): kfrag(A, xt, ks, r)
                for ks, r in enumerate((d0, d1, b0, b1)): A(mf(d, r, B0 + 4 * ks, ks == 0))
            truemax(A)
            for t in WL[:3]: lds_tile(A, W, t)
            A(f"v_add_u32 v{LB2}, 0x10000, v{L16}")
            owrite(A)
            zero(A, B4, 8); zero(A, c1, 4)
            A.force_wait("lgkmcnt(0)")
            A(f"s_branch L_sback{u}")
        elif kind == "l":
            A.label(f"L_last{u}")
            if not O.get("imm", 1):
                A(f"buffer_store_dwordx4 {v(B0 + 4 * W, 4)}, v{L16}, {WS}, s{S_PUB} offen offset:{W * 1024} sc1")
                A(f"buffer_store_dwordx2 {v(B2, 2)}, v{XW}, {WS}, s{S_PUB2} offen offset:{W * 512} sc1")
            A.wait_all(); A("s_barrier")
            if W == 2:
                A(f"v_mov_b32 v{SP}, 64\nbuffer_store_dword v{SP}, off, {WS}, s{S_FR} sc1")
            ev(A, O, 4, 8)
            if O.get("prof") and W == 1 and not red:
                A(f"s_lshl_b32 s3, {TEAM}, 5\ns_add_u32 s3, s3, {IDX}\ns_lshl_b32 s3, s3, 8\ns_add_u32 s3, s3, {lay.DBGOUT + 0x40000}\nv_lshrrev_b32 v8, 2, v{L16}\nbuffer_store_dword v{SP}, v8, {WS}, s3 offen")
            if O.get("stamp"):
                A(f"s_lshl_b32 s100, {TEAM}, 5\ns_add_u32 s100, s100, {IDX}\ns_lshl_b32 s100, s100, 10\ns_add_u32 s100, s100, {lay.DBGOUT + W * 256}")
                A.force_wait("lgkmcnt(0)")
                A(f"s_sub_u32 s93, s{S_T}, s93\ns_sub_u32 s73, {TMO}, s73")
                for i in range(12): A(f"v_mov_b32 v{8 + i}, s{88 + i}")
                A("v_mov_b32 v20, s73\nv_mov_b32 v21, s101")
                for i in range(16):
                    A(f"s_memrealtime s[30:31]\ns_memtime s[74:75]"); A.wait_lg(); A(f"v_mov_b32 v{24 + 2*i}, s30\nv_mov_b32 v{25 + 2*i}, s74\ns_nop {i % 7}")
                for i in range(12): A(f"buffer_store_dwordx4 {v(8 + 4 * i, 4)}, off, {WS}, s100 offset:{16 * i}")
            A("s_endpgm")

def role(A, M, O):
    u = M.sfx
    prologue(A, M, O)
    st = A.snap()
    A(f"""s_cmp_eq_u32 {WAVE}, 2
s_cbranch_scc1 L_rw2{u}
s_cmp_eq_u32 {WAVE}, 3
s_cbranch_scc1 L_rw3{u}
s_cmp_eq_u32 {WAVE}, 0
s_cbranch_scc1 L_rw0{u}
s_cmp_lt_u32 {IDX}, 16
s_cbranch_scc1 L_rw1{u}""")
    for lbl, W, red in ((None, 1, 0), ("L_rw0", 0, 1), ("L_rw1", 1, 2), ("L_rw2", 2, 0), ("L_rw3", 3, 0)):
        if lbl: A.label(lbl + u)
        A.restore(st)
        step(A, M, W, red, O)
```

```python
import sys
sys.path.insert(0, "tools")
from common import *
import importlib
NAME = "adaLN_cond__memory_aug_recurrent_mem_tr__glu_gated_reglu__prompt"
HEAD = open("cdna_kernels/%s.s.ref" % NAME).read().split("; Override launch")[0]

def generate(O):
    import role_r
    roles = O.get("roles", "rkp")
    A = Asm()
    att0 = O.get("attempt", 0)
    A(f"""s_cmp_ge_u32 s2, 256
s_cbranch_scc1 L_exit
{"s_memrealtime s[100:101]" if O.get("ev") else ""}
v_lshrrev_b32 v1, 6, v0
v_readfirstlane_b32 {WAVE}, v1
s_mov_b32 {TMO}, 0
s_mov_b32 s3, {att0}
L_start:
s_load_dwordx16 s[64:79], s[0:1], 0
s_load_dwordx16 s[80:95], s[0:1], 64
s_getreg_b32 s30, hwreg(HW_REG_XCC_ID)
s_mul_i32 s31, s3, {lay.REGION}
s_mov_b32 s28, s{KA+2*P_DBG}
s_mov_b32 s29, s{KA+2*P_DBG+1}
s_add_u32 s4, s{KA+2*P_WS}, s31
s_addc_u32 s5, s{KA+2*P_WS+1}, 0
s_mov_b32 s6, {lay.SPAN}
s_mov_b32 s7, 0x20000
s_mov_b32 {S_ATT}, s3
s_and_b32 {S_BAD}, s30, 8
s_and_b32 s30, s30, 7
s_lshl_b32 s30, s30, 2
s_lshr_b32 {TEAM}, {O.get("map", 0x54321706)}, s30
s_and_b32 {TEAM}, {TEAM}, 7
s_lshr_b32 {IDX}, s2, 3
s_mov_b32 {S_CNT}, 0
s_cmp_lg_u32 s3, 0
s_cbranch_scc1 L_again""")
    st0 = A.snap()
    for M in (Mode(False), Mode(True)):
        u = M.sfx
        if M.safe:
            A("L_exit:\ns_endpgm\nL_next:")
            A.force_wait()
            A(f"""s_mov_b64 exec, -1
s_barrier
s_add_u32 s3, {S_ATT}, 1
s_branch L_start
L_again:
s_cmp_eq_u32 s3, 1
s_cbranch_scc0 L_safe
s_mov_b32 {S_CNT}, 16
s_cmp_lg_u32 {WAVE}, 0
s_cbranch_scc1 L_notick
s_mul_i32 s30, {TEAM}, 65
s_and_b32 s30, s30, 0xc4
s_add_u32 s30, s30, 48
v_mov_b32 v1, s30
v_mov_b32 v2, 1
v_mov_b32 v3, 0
s_mov_b64 exec, 1
global_atomic_add v2, v1, v2, {DBG} sc0 sc1
ds_write_b32 v3, v2
s_mov_b64 exec, -1""")
            A.wait_all()
            A(f"""L_notick:
s_barrier
v_mov_b32 v3, 0
ds_read_b32 v2, v3
v_readfirstlane_b32 {IDX}, v2
s_barrier
s_and_b32 {IDX}, {IDX}, 31""")
            A("s_branch L_roles_f")
            A.label("L_safe")
            if not O.get("safe", True):
                A("s_branch L_fail_f"); break
            A(f"s_lshr_b32 {TEAM}, s2, 5\ns_and_b32 {IDX}, s2, 31\ns_mov_b32 {S_CNT}, 32\ns_mov_b32 {S_BAD}, 0")
        A.label(f"L_roles{u}")
        if O.get("ev"):
            ev(A, O, 1, 1); A(f"v_mov_b32 v1, s100\nbuffer_store_dword v1, off, {WS}, s3"); st0 = A.snap()
        A(f"""s_cmp_ge_u32 {TEAM}, 4
s_cbranch_scc1 L_role_p{u}
s_cmp_ge_u32 {TEAM}, 2
s_cbranch_scc1 L_role_k{u}""")
        order = (("r", "role_r"), ("p", "role_p"), ("k", "role_k"))
        for n_, (r, mod) in enumerate(order):
            A.label(f"L_role_{r}{u}"); A.restore(st0); A.role = r
            if O.get("hev"): ev(A, O, 1, 2)
            if O.get("cpf", 0) and r in roles:
                end = f"L_role_{order[n_ + 1][0]}{u}" if n_ < 2 else M.fail
                lane(A, 255)
                A(f"""s_getpc_b64 s[44:45]
L_pc{r}{u}:
s_lshl_b32 s3, {WAVE}, 13
v_lshl_add_u32 v255, v255, 7, s3
v_add_u32 v254, 0x8000, v255
v_min_u32 v255, {end}-L_pc{r}{u}-4, v255
v_min_u32 v254, {end}-L_pc{r}{u}-4, v254
global_load_dword v255, v255, s[44:45]""")
                if r == "r": A("global_load_dword v254, v254, s[44:45]")
            if r in roles: importlib.import_module(mod).role(A, M, O)
            else:
                arrive(A, M, r + u, 8); A("s_endpgm")
        A.label(M.fail)
        A.restore(st0)
        A(f"""s_mov_b64 exec, 1
v_mov_b32 v1, 252
v_mov_b32 v2, 1
global_atomic_add v1, v2, {DBG} sc1
s_endpgm""")
    return f"""{HEAD}; @launch grid=(256,1,1) block=(256,1,1) lds=163840
.amdgcn_target "amdgcn-amd-amdhsa--gfx950"
.text
.globl {NAME}_kernel
.p2align 8
.type {NAME}_kernel,@function
{NAME}_kernel:
{A.text()}.section .rodata,"a"
.p2align 6
.amdhsa_kernel {NAME}_kernel
  .amdhsa_next_free_vgpr 512
  .amdhsa_next_free_sgpr 102
  .amdhsa_accum_offset 256
  .amdhsa_group_segment_fixed_size 0
  .amdhsa_kernarg_size 128
  .amdhsa_user_sgpr_count 2
  .amdhsa_user_sgpr_kernarg_segment_ptr 1
  .amdhsa_system_sgpr_workgroup_id_x 1
  .amdhsa_float_denorm_mode_32 3
.end_amdhsa_kernel
"""
if __name__ == "__main__":
    O = eval(sys.argv[2]) if len(sys.argv) > 2 else {}
    open(sys.argv[1], "w").write(generate(O))
```

```python
from asmgen import *
import lay

WS = "s[4:7]"
SA, SB, SC, SD = "s[8:11]", "s[12:15]", "s[16:19]", "s[20:23]"
TEAM, IDX, WAVE, TMO = "s24", "s25", "s26", "s27"
DBG = "s[28:29]"
KA = 64
P_X, P_MEM0, P_WQ, P_WK, P_WV, P_WO, P_SEG, P_BX, P_WG, P_WU, P_WD, P_C, P_WM, P_OUT, P_DBG, P_WS = range(16)
SIZES = {P_X: 2621440, P_MEM0: 10240, P_WQ: 5242880, P_WK: 5242880, P_WV: 5242880, P_WO: 5242880,
         P_WG: 640 * 1728 * 2, P_WU: 640 * 1728 * 2, P_WD: 640 * 1728 * 2, P_C: 1280, P_WM: 640 * 3840 * 2, P_OUT: 2621440}
OOB = 0x7FFFFFF0
TMO_MAX = 0x40000

def srd(A, base, p):
    A(f"""s_mov_b32 s{base}, s{KA+2*p}
s_mov_b32 s{base+1}, s{KA+2*p+1}
s_mov_b32 s{base+2}, {SIZES[p]}
s_mov_b32 s{base+3}, 0x20000""")

def lane(A, r):
    A(f"v_mbcnt_lo_u32_b32 v{r}, -1, 0\nv_mbcnt_hi_u32_b32 v{r}, -1, v{r}")

class Mode:
    def __init__(self, safe):
        self.safe = safe
        self.st = " sc1" if safe else ""
        self.sfx = "_s" if safe else "_f"
        self.fail = "L_fail" + self.sfx

def tmo(A, fail):
    A(f"s_add_u32 {TMO}, {TMO}, 1\ns_cmp_gt_u32 {TMO}, {TMO_MAX}\ns_cbranch_scc1 {fail}")

S_CNT, S_ATT, S_BAD = "s76", "s77", "s78"
def arrive(A, M, uid, t0, tag=None):
    A.wait_vm(tag)
    A(f"""s_barrier
s_cmp_lg_u32 {WAVE}, 0
s_cbranch_scc1 L_arr{uid}""")
    st = A.snap()
    A(f"""s_mul_i32 s3, {TEAM}, 66
s_and_b32 s3, s3, 0xc8
s_add_u32 s3, s3, {S_CNT}
v_mov_b32 v{t0+2}, s3
s_lshl_b32 s3, 1, {IDX}
v_mov_b32 v{t0}, s3
s_add_u32 s3, {S_BAD}, 0x10000
v_mov_b32 v{t0+1}, s3
s_mov_b64 exec, 1
global_atomic_add_x2 v{t0+2}, {v(t0, 2)}, {DBG} sc1
s_mov_b64 exec, -1
L_arr{uid}:""")
    A.join(st)

def census(A, M, uid, t0, lds):
    A(f"v_mov_b32 v{t0+3}, {lds}")
    A.wait_all()
    A(f"s_cmp_lg_u32 {WAVE}, 0\ns_cbranch_scc1 L_cenw{uid}")
    lane(A, t0 + 2)
    A(f"v_and_b32 v{t0+2}, 7, v{t0+2}\nv_mul_u32_u24 v{t0+2}, 66, v{t0+2}\nv_and_b32 v{t0+2}, 0xc8, v{t0+2}\nv_add_u32 v{t0+2}, {S_CNT}, v{t0+2}")
    A(f"""L_cen{uid}:
global_load_dwordx2 {v(t0, 2)}, v{t0+2}, {DBG} sc1""")
    tmo(A, M.fail)
    A(f"""v_cmp_eq_u32 s[30:31], -1, v{t0}
v_cmp_eq_u32 vcc, 0x200000, v{t0+1}
s_and_b64 s[30:31], s[30:31], vcc
v_lshrrev_b32 v{t0+1}, 16, v{t0+1}""")
    for k in (4, 2, 1): A(f"v_add_u32_dpp v{t0+1}, v{t0+1}, v{t0+1} row_ror:{k} row_mask:0xf bank_mask:0xf")
    A(f"""v_cmp_lt_u32 vcc, 255, v{t0+1}
s_cbranch_vccnz L_cend{uid}
s_sleep 12
s_branch L_cen{uid}
L_cend{uid}:
v_mov_b32 v{t0}, s30
ds_write_b32 v{t0+3}, v{t0}""")
    A.wait_all()
    A(f"""L_cenw{uid}:
s_barrier
ds_read_b32 v{t0}, v{t0+3}
v_cmp_ne_u32 vcc, -1, v{t0}
s_cbranch_vccnz {M.fail if M.safe else "L_next"}""")

def vote_class(A, M, pid, t0):
    A(f"""s_and_b32 s46, {pid}, 3
s_lshl_b32 s46, s46, 15
s_bfe_u32 s3, {pid}, 0x40002
s_lshl_b32 s3, s3, 7
s_add_u32 s46, s46, s3
s_add_u32 s46, s46, {lay.R_EX + 5632}
s_mov_b32 s48, -1
s_mov_b32 s49, 0
s_mov_b32 s50, 0
s_mov_b64 exec, 1""")
    A.force_wait()
    A(f"""L_vote{M.sfx}:
s_and_b32 s47, s50, 3
s_lshl_b32 s3, s47, 13
s_add_u32 s3, s3, s46
s_memtime s[30:31]""")
    A.wait_lg()
    A(f"buffer_store_dword v{t0}, off, {WS}, s3 sc1"); A.wait_vm()
    A("s_memtime s[44:45]"); A.wait_lg()
    A(f"""s_sub_u32 s3, s44, s30
s_cmp_lt_u32 s3, s48
s_cselect_b32 s48, s3, s48
s_cselect_b32 s49, s47, s49
s_add_u32 s50, s50, 1
s_cmp_lt_u32 s50, 12
s_cbranch_scc1 L_vote{M.sfx}
s_mul_i32 s3, s49, 0x81
s_and_b32 s3, s3, 0x101
s_add_u32 s3, s3, 0x10000
v_mov_b32 v{t0}, s3
s_lshl_b32 s3, {S_ATT}, 6
s_add_u32 s3, s3, 56
v_mov_b32 v{t0+1}, s3
global_atomic_add v{t0+1}, v{t0}, {DBG} sc1
s_mov_b64 exec, -1""")
def census_eval(A, M, d, again, cls=None):
    A(f"""s_lshr_b32 s3, {S_CNT}, 2
s_lshl_b32 s80, 0x50005, s3
s_mov_b32 s81, s80
v_cmp_eq_u32 s[82:83], -1, v{d}
v_cmp_eq_u32 vcc, 0x200000, v{d}
s_lshr_b64 s[30:31], vcc, 1
s_and_b64 s[30:31], s[30:31], s[82:83]
s_and_b64 s[30:31], s[30:31], s[80:81]
s_cmp_eq_u64 s[30:31], s[80:81]
s_cbranch_scc1 L_ceok{again}
s_mov_b32 s31, 0""")
    for i in range(8): A(f"s_add_u32 s80, s3, {16 * (i >> 1) + 2 * (i & 1) + 1}\nv_readlane_b32 s30, v{d}, s80\ns_lshr_b32 s30, s30, 16\ns_add_u32 s31, s31, s30")
    A(f"""s_cmp_lt_u32 s31, 256
s_cbranch_scc1 {again}
s_branch {M.fail if M.safe else "L_next"}
L_ceok{again}:""")
    class_eval(A, d, again, cls, S_ATT)
def class_eval(A, d, again, cls, att):
    if cls is not None:
        A(f"s_mov_b32 s30, {cls * 8192}"); return
    A(f"""s_lshl_b32 s3, {att}, 4
s_add_u32 s3, s3, 14
v_readlane_b32 s3, v{d}, s3
s_cmp_lt_u32 s3, 0x400000
s_cbranch_scc1 {again}
s_and_b32 s31, s3, 0xff
s_cmp_ge_u32 s31, 32
s_cselect_b32 s30, 8192, 0
s_bfe_u32 s31, s3, 0x80008
s_cmp_ge_u32 s31, 32
s_cselect_b32 s31, 0, 16384
s_add_u32 s30, s30, s31""")

def near(A, O, x):
    if O.get("near", 1): A(f"s_lshr_b32 s3, s{x}, 8\ns_xor_b32 s3, s3, s30\ns_and_b32 s3, s3, 8192\ns_add_u32 s{x}, s{x}, s3")

def ev(A, O, i, t):
    if O.get("hev"):
        slot = O["hev"].get((A.role, i))
        if slot is not None:
            A.force_wait("lgkmcnt(0)")
            A(f"s_memrealtime s[30:31]\nv_mov_b32 v{t}, s30\ns_and_b32 s3, {IDX}, 3\ns_add_u32 s3, s3, {WAVE}\ns_cmp_eq_u32 s3, 0\ns_cselect_b64 exec, 1, 0\ns_cbranch_execz L_hev{len(A.out)}")
            n = len(A.out)
            lbl = [x for x in A.out[-1:]][0].split()[-1]
            A(f"v_mov_b32 v{t+1}, {4 * slot}\nglobal_atomic_umax v{t+1}, v{t}, {DBG} sc1")
            A.label(lbl); A("s_mov_b64 exec, -1"); A.force_wait("vmcnt(0)")
        return
    if not O.get("ev"): return
    A.force_wait("lgkmcnt(0)")
    A(f"s_memrealtime s[30:31]\ns_lshl_b32 s3, {TEAM}, 5\ns_add_u32 s3, s3, {IDX}\ns_lshl_b32 s3, s3, 2\ns_add_u32 s3, s3, {WAVE}\ns_lshl_b32 s3, s3, 7\ns_add_u32 s3, s3, {lay.DBGOUT + 0x80000}")
    A(f"v_mov_b32 v{t}, s30\nbuffer_store_dword v{t}, off, {WS}, s3 offset:{4 * i}")
    A(f"s_memtime s[30:31]\nv_mov_b32 v{t}, s30\nbuffer_store_dword v{t}, off, {WS}, s3 offset:{4 * i + 32}")
```

```python
MB = 1 << 20
WS_BYTES = 256 * MB
REGION = 2 * MB
SPAN = 128 * MB
FLG_KV   = 0x0000
FLG_R    = 0x80000
FLG_MOD  = 0x2000
FLG_H    = 0x2400
FLG_T    = 0x3000
MOD      = 0x8000
R_AG     = 0x10000
R_MK     = 0xC000
R_EX     = 0x40000
R_RS     = 0x100000
R_RSS    = 0x40000
H        = 0x600000
KM_H, KM_S = 64 * 16384, 16384
KMVM     = 0x1000000
T_BASE   = 0x900000
T_STRIDE = 0x180000
T_RS1, T_AG, T_RS2 = 0, 0x150000, 0x180000
QKV_H, QKV_S = 64 * 32768, 32768
QKV      = 0x3000000
C_SCALE = (128 ** -0.5) * 1.4426950408889634
DBGOUT   = 0x7400000
```

```python
from common import *
import struct

IDXR, L16, LB2, XW, XR, RSA, GA, SP = range(8)
B0, B1, B2, B3, B4, B5, B6, B7 = (8 + 8 * i for i in range(8))
a0, a1, b0, b1, c0, c1, d0, d1 = B3, B3 + 4, B4, B4 + 4, B5, B5 + 4, B7, B7 + 4
STATIC0 = 72
MEM, XB, VMS, KB, VB, TILES = 0, 10240, 14336, 16384, 32768, 40960
OB = MEM + 5120
S_STEP, S_PH, S_PHM = 32, 33, 34
S_AGA, S_AG4, S_RMB, S_RM9 = 35, 36, 37, 38
S_AGW, S_AGZ, S_EXW, S_EXZ = 39, 40, 41, 42
S_RS = 43
S_GAT, S_GAT2 = 46, 47
S_KV, S_V, S_PUB, S_PUB2 = 48, 49, 50, 51
S_SLOT, S_OUTO, S_FKV, S_FR = 52, 53, 54, 55
S_CS, S_ONE, S_NEED, S_KM0 = 56, 57, 58, 59
S_AGL, S_EXO, S_EXR, S_RNG = 60, 61, 62, 63
S_SEL = 64
S_DONE = 100
S_MK, S_MK2, S_XM = 8, 9, 10
S_T = 76
ACC = {"k": (B0, B0 + 4), "q": (B1, B1 + 4), "v": (B2, B2 + 4)}
AGS, EXS = 5120, 32768

def f32bits(x): return struct.unpack("<I", struct.pack("<f", x))[0]

def p1_order():
    o = []
    for ks in range(5):
        if ks in (0, 2): o += [("k",ks,0),("q",ks,0),("q",ks,1),("v",ks,0),("v",ks,1),("k",ks,1)]
        else: o += [("k",ks,0),("k",ks,1),("q",ks,0),("q",ks,1),("v",ks,0),("v",ks,1)]
    o += [("k",5,0),("k",5,1),("k",6,0),("k",6,1),("k",7,0),("k",8,0),("k",9,0),("k",7,1),("k",8,1),("k",9,1)]
    o += [("q",ks,t) for t in range(2) for ks in range(5, 10)]
    for ks in (7, 9, 6, 5, 8): o += [("v",ks,0),("v",ks,1)]
    return o
P1 = p1_order()
import os
G2LAST = int(os.environ.get("G2LAST", "0"))
P4 = [("o", x, t) for x in ((0, 1, 2, 3, 4) if G2LAST else (4, 0, 1, 2, 3)) for t in range(2)]
WL = [P4[i] for i in (2, 3, 8, 9, 0)]
PLS = (0, 5, 12, 17, 22, 27, 32, 37, 42, 47)
PL = [P1[i] for i in PLS]
LDS_PAIRS = [WL[0][:2], WL[2][:2], ("k", 0), ("k", 2)]
LORDER = WL[:4] + PL[:4] + [WL[4]] + PL[4:]
LAND = {t: B7 for t in PL}
LAND.update({WL[0]: B1, WL[1]: B7, WL[2]: B6, WL[3]: B0, WL[4]: B0})
SRC = {}
for i, t in enumerate(LORDER): SRC[t] = ("lds", i)
_n = 0
for m in "qkvo":
    for ks in range(5 if m == "o" else 10):
        for t in range(2):
            if (m, ks, t) not in SRC:
                SRC[(m, ks, t)] = ("reg", STATIC0 + 8 * _n); _n += 1
assert STATIC0 + 8 * _n == 512, _n
def breg(tile): return ur(SRC[tile][1] if SRC[tile][0] == "reg" else LAND[tile], 8)

def prologue(A, M, O):
    u = M.sfx
    GQ, GO, TQ, TO, TA, W16, LN, T = range(8)
    srd(A, 8, P_WQ); srd(A, 12, P_WK); srd(A, 16, P_WV); srd(A, 20, P_WO)
    lane(A, LN)
    A(f"""s_lshl_b32 s32, {WAVE}, 6
s_lshl_b32 s3, {IDX}, 8
s_add_u32 s3, s3, s32
s_mul_i32 s33, {TEAM}, {320 * 8192}
s_sub_u32 s34, {320 * 8192}, s33
s_lshl_b32 s35, {WAVE}, 10
v_lshrrev_b32 v{T}, 2, v{LN}
v_and_b32 v{TA}, 3, v{LN}
v_lshlrev_b32 v{GQ}, 13, v{T}
v_lshl_add_u32 v{GQ}, v{TA}, 4, v{GQ}
v_add_u32 v{GQ}, s3, v{GQ}
s_mul_i32 s3, {IDX}, 163840
s_mul_i32 s30, {TEAM}, 640
s_add_u32 s3, s3, s30
v_mul_u32_u24 v{GO}, 1280, v{T}
v_lshl_add_u32 v{GO}, v{TA}, 4, v{GO}
v_add_u32 v{GO}, s3, v{GO}
s_and_b32 s37, s32, 64
s_lshr_b32 s30, {WAVE}, 1
s_mul_i32 s30, s30, {64 * 1280}
s_add_u32 s37, s37, s30
s_add_u32 s37, s37, 512""")
    pairs = [(m, ks) for m in O.get("worder", "kqvo") for ks in range(5 if m == "o" else 10) if (m, ks) not in LDS_PAIRS]
    pairs = pairs[:-3] + LDS_PAIRS + pairs[-3:]
    NA = 7
    assert len(pairs) % NA == 0
    def dma(n):
        m, ks = pairs[n]
        for i in range(4):
            if m != "o": so = f"s_add_u32 s36, s{33 if ks < 5 else 34}, {(64 * (ks % 5) + 16 * i) * 8192}"
            elif ks < 4: so = f"s_add_u32 s36, s32, {(64 * (ks & 1) + 16 * i) * 1280 + (ks >> 1) * 256}"
            else: so = f"s_add_u32 s36, s37, {16 * i * 1280}"
            A(f"s_add_u32 m0, s35, {TILES + (n % NA) * 16384 + i * 4096}\n{so}")
            A(f"buffer_load_dwordx4 v{GO if m == 'o' else GQ}, {dict(q=SA, k=SB, v=SC, o=SD)[m]}, s36 offen{O.get('wnt', '')} lds", tag=f"p{n}")
    A(f"""v_bfe_u32 v8, v{LN}, 5, 1
v_bfe_u32 v9, v{LN}, 4, 1
v_bfe_u32 v10, v{LN}, 3, 1
v_bfe_u32 v11, v{LN}, 2, 1
s_min_u32 s41, {WAVE}, 1
s_lshr_b32 s38, {IDX}, s41
s_lshl_b32 s3, {WAVE}, 5
s_add_u32 s38, s38, s3
s_and_b32 s42, {IDX}, s41
s_mul_i32 s30, {TEAM}, {lay.R_RSS}
s_add_u32 s30, s30, {lay.R_RS}
s_lshl_b32 s{S_GAT}, s38, 12
s_add_u32 s{S_GAT}, s{S_GAT}, s30
s_lshl_b32 s3, s42, 6
s_add_u32 s{S_GAT}, s{S_GAT}, s3
s_add_u32 s{S_GAT2}, s{S_GAT}, 32768
s_lshr_b32 s39, s38, 2
s_lshl_b32 s{S_OUTO}, s39, 9
s_and_b32 s40, s38, 3
s_lshl_b32 s3, s40, 6
s_add_u32 s{S_OUTO}, s{S_OUTO}, s3
s_lshl_b32 s3, {WAVE}, 14
s_lshl_b32 s{S_FR}, {IDX}, 7
s_add_u32 s{S_RS}, s3, s{S_FR}
s_add_u32 s{S_RS}, s{S_RS}, s30
s_add_u32 s{S_RS+1}, s{S_RS}, 65536
s_add_u32 s{S_RS+2}, s{S_RS}, 131072
s_add_u32 s{S_FKV}, s{S_FR}, {lay.FLG_KV}
s_lshl_b32 s3, {TEAM}, 2
s_add_u32 s{S_FR}, s{S_FR}, s3
s_add_u32 s{S_FR}, s{S_FR}, {lay.FLG_R}
s_lshl_b32 s{S_AGL}, {TEAM}, 15
s_add_u32 s{S_AGL}, s{S_AGL}, {lay.R_AG}
s_mul_i32 s{S_EXO}, {TEAM}, {4 * EXS}
s_sub_u32 s{S_EXR}, {lay.R_EX + 4 * EXS}, s{S_EXO}
s_add_u32 s{S_EXO}, s{S_EXO}, {lay.R_EX}
v_lshrrev_b32 v12, 4, v{LN}
v_and_b32 v13, 15, v{LN}
v_lshlrev_b32 v14, 12, v12
v_lshl_add_u32 v14, v13, 3, v14
v_mov_b32 v16, 1
v_mov_b32 v17, 1
v_mov_b32 v18, 0""")
    for j in range(3): A(f"buffer_store_dwordx2 v[16:17], v14, {WS}, s{S_RS+j} offen{M.st}")
    A(f"""s_mov_b32 s96, s{KA+2*P_MEM0}
s_mov_b32 s97, s{KA+2*P_MEM0+1}
s_mov_b32 s98, 10240
s_mov_b32 s99, 0x20000
s_mul_i32 s40, s40, 2560
s_lshl_b32 s39, s39, 6
s_add_u32 s39, s39, s40
s_mul_i32 s3, {TEAM}, 640
s_add_u32 s101, s39, s3
v_and_b32 v15, 1, v{LN}
v_bfe_u32 v20, v{LN}, 1, 1
v_lshlrev_b32 v23, 8, v20
v_lshl_add_u32 v23, v11, 5, v23
v_lshl_add_u32 v23, v15, 4, v23
s_xor_b32 s3, s41, 1
v_and_b32 v25, s3, v12
v_add_u32 v25, s42, v25
v_lshl_add_u32 v25, v25, 1, v8
v_lshl_add_u32 v23, v25, 2, v23
v_add_u32 v23, s{S_OUTO}, v23
v_mov_b32 v24, -1
v_mul_u32_u24 v19, 1280, v15
v_lshl_add_u32 v19, v20, 5, v19
v_lshl_add_u32 v19, v25, 3, v19
v_lshl_add_u32 v19, v11, 1, v19
buffer_load_ushort v21, v19, s[96:99], s101 offen
buffer_load_ushort v22, v19, s[96:99], s101 offen offset:4""")
    dma(0)
    A(f"""v_lshl_or_b32 v21, v22, 16, v21
v_min_u32 v21, -2, v21
s_cmp_ge_u32 s38, 40
s_cbranch_scc1 L_rinit{u}""")
    st0 = A.snap()
    for sl in range(4):
        A(f"s_add_u32 s3, s{S_AGL}, {sl * AGS}\nbuffer_store_dword v{24 if sl else 21}, v23, {WS}, s3 offen{M.st}")
        for cl in range(4): A(f"s_add_u32 s3, s{S_EXO}, {sl * EXS + cl * 8192}\nbuffer_store_dword v{24 if sl else 21}, v23, {WS}, s3 offen sc1")
    A.label(f"L_rinit{u}"); A.join(st0)
    A(f"""v_lshlrev_b32 v19, 13, v{LN}
v_mov_b32 v20, {OOB}
s_cmp_eq_u32 {WAVE}, 3
s_cselect_b32 s3, 4, 0
v_cmp_gt_u32 vcc, s3, v{LN}
v_cndmask_b32 v19, v20, v19, vcc""")
    A(f"buffer_store_dword v18, v19, {WS}, s{S_FR} offen sc1")
    A(f"""v_and_b32 v19, 7, v{LN}
v_lshlrev_b32 v19, 7, v19
s_lshl_b32 s3, {TEAM}, 10
s_lshl_b32 s30, {IDX}, 2
s_add_u32 s3, s3, s30
s_add_u32 s3, s3, {lay.R_MK}""")
    A(f"buffer_store_dword v18, v19, {WS}, s3 offen{M.st}", tag="init")
    DEP = O.get("wdep", 3)
    for n in range(1, DEP):
        A("s_barrier")
        dma(n)
    arrive(A, M, "r" + u, 16, "init")
    A(f"""v_lshlrev_b32 v{W16}, 4, v{LN}
v_add_u32 v{W16}, s35, v{W16}
v_lshlrev_b32 v{TA}, 3, v{TA}
v_add_u32 v{TA}, s35, v{TA}
v_lshl_add_u32 v{TQ}, v8, 12, v{TA}
v_lshl_add_u32 v{TQ}, v9, 9, v{TQ}
v_lshl_add_u32 v{TQ}, v11, 7, v{TQ}
v_lshl_add_u32 v{TQ}, v10, 6, v{TQ}
v_lshl_add_u32 v{TO}, v9, 12, v{TA}
v_lshl_add_u32 v{TO}, v10, 5, v{TO}
v_lshl_add_u32 v{TO}, v8, 8, v{TO}
v_lshl_add_u32 v{TO}, v11, 6, v{TO}""")
    def probe(tag):
        A(f"""s_mov_b32 m0, s35
v_lshlrev_b32 v{T}, 2, v{LN}
global_load_lds_dword v{T}, {DBG} sc1""", tag=tag)
    def kvwait(need, t):
        A(f"""v_and_b32 v{t}, 7, v{LN if need == 1 else 8}
v_lshlrev_b32 v{t}, 2, v{t}
L_rkv{need}{u}:
buffer_load_dword v{t+1}, v{t}, {WS}, s{S_FKV} offen sc1""")
        tmo(A, M.fail)
        A(f"""v_cmp_gt_u32 vcc, {need}, v{t+1}
s_cbranch_vccz L_rkvok{need}{u}
s_sleep 2
s_branch L_rkv{need}{u}
L_rkvok{need}{u}:""")
    def startup():
        A.wait_vm("pr")
        st = A.snap()
        A(f"s_branch L_rce{u}\nL_rca{u}:\ns_sleep 8")
        tmo(A, M.fail); probe(None); A.force_wait()
        A.label(f"L_rce{u}"); A.restore(st)
        A(f"v_lshlrev_b32 v{T}, 2, v{LN}\nv_add_u32 v{T}, s35, v{T}\nds_read_b32 v{T}, v{T}")
        census_eval(A, M, T, f"L_rca{u}", O.get("cls"))
        A(f"""s_add_u32 s{S_EXO}, s{S_EXO}, s30
s_add_u32 s{S_EXR}, s{S_EXR}, s30
s_add_u32 s{S_FR}, s{S_FR}, s30
s_mul_i32 s{S_KV}, {IDX}, {lay.QKV_H}
s_add_u32 s{S_KV}, s{S_KV}, {lay.QKV}
s_mul_i32 s{S_PUB}, {IDX}, {lay.KM_H}
s_add_u32 s{S_PUB}, s{S_PUB}, {lay.KMVM}""")
        near(A, O, S_KV); near(A, O, S_PUB)
        A(f"""s_lshl_b32 s30, {WAVE}, 11
s_add_u32 s{S_KV}, s{S_KV}, s30
s_add_u32 s{S_V}, s{S_KV}, 16384
s_add_u32 s{S_KM0}, s30, {KB + 8192}
s_add_u32 m0, s35, 256
v_and_b32 v{T}, 7, v{LN}
v_lshlrev_b32 v{T}, 2, v{T}""")
        A(f"buffer_load_dword v{T}, {WS}, s{S_FKV} offen sc1 lds", tag="pk")
    def firstkv():
        A.wait_vm("pk")
        A(f"v_lshlrev_b32 v{T}, 2, v{LN}\nv_add_u32 v{T}, s35, v{T}\nds_read_b32 v{T}, v{T} offset:256\nv_cmp_gt_u32 s[84:85], 2, v{T}\nv_cmp_gt_u32 vcc, 1, v{T}\ns_cbranch_vccz L_rk1{u}")
        st = A.snap()
        kvwait(1, B0)
        A.label(f"L_rk1{u}"); A.join(st)
        A(f"""s_lshl_b32 s30, {WAVE}, 11
s_add_u32 m0, s30, {KB}
v_lshlrev_b32 v{T}, 4, v{LN}
buffer_load_dwordx4 v{T}, {WS}, s{S_KV} offen sc1 lds
buffer_load_dwordx4 v{T}, {WS}, s{S_KV} offen offset:1024 sc1 lds
s_add_u32 m0, s30, {VB}
s_add_u32 s{S_KV}, s{S_KV}, {lay.QKV_S}
buffer_load_dwordx4 v{T}, {WS}, s{S_V} offen sc1 lds
buffer_load_dwordx4 v{T}, {WS}, s{S_V} offen offset:1024 sc1 lds
s_add_u32 s{S_V}, s{S_V}, {lay.QKV_S}""")
    held = {}
    for n, (m, ks) in enumerate(pairs):
        A.wait_vm(f"p{n}")
        A(f"v_add_u32 v{TA}, {TILES + (n % NA) * 16384}, v{TO if m == 'o' else TQ}")
        dst = []
        for t in range(2):
            kind, w = SRC[(m, ks, t)]
            if kind == "reg": d = w
            elif 8 <= w < 14: d = B2 + 8 * (w - 8); held[w] = d
            else: d = B0 + 8 * t
            dst.append(d)
            for qd in range(4):
                off = (qd >> 1) * 512 + (qd & 1) * 128 + 8192 * t if m == "o" else (qd >> 1) * 8192 + (qd & 1) * 256 + 32 * t
                A(f"ds_read_b64_tr_b16 {ur(d + 2 * qd, 2)}, v{TA} offset:{off}")
        A.wait_lg()
        if O.get("wbar", 1) and n + DEP < len(pairs): A("s_barrier")
        if n + DEP < len(pairs): dma(n + DEP)
        if n + DEP == len(pairs) - 6 and O.get("lpf", 0):
            A(f"""s_getpc_b64 s[30:31]
L_rpc{u}:
s_lshl_b32 s3, {WAVE}, 13
v_lshl_add_u32 v{T}, v{LN}, 7, s3
v_min_u32 v{T}, L_role_p{u}-L_rpc{u}-4, v{T}
s_add_u32 m0, s35, 512
global_load_lds_dword v{T}, s[30:31]""")
        for t in range(2):
            kind, w = SRC[(m, ks, t)]
            if kind == "lds" and w not in held:
                A(f"v_add_u32 v{T}, {TILES + w * 8192}, v{W16}")
                for hf in range(2): A(f"ds_write_b128 v{T}, {v(dst[t] + 4 * hf, 4)} offset:{4096 * hf}")
        k0 = len(pairs) - O.get("kvat", 2)
        if n == k0 - 2 * DEP - 2: probe("pr")
        if n == k0 - DEP - 1: startup()
        if n == k0: firstkv()
    for w, d in held.items():
        A(f"v_add_u32 v{T}, {TILES + w * 8192}, v{W16}")
        for hf in range(2): A(f"ds_write_b128 v{T}, {v(d + 4 * hf, 4)} offset:{4096 * hf}")
    A.wait_lg()
    ev(A, O, 2, 8)
    A(f"""v_mov_b32 v8, v{LN}
v_lshrrev_b32 v9, 4, v8
v_and_b32 v10, 15, v8
v_lshlrev_b32 v{L16}, 4, v8
v_add_u32 v{LB2}, 0x10000, v{L16}
v_lshrrev_b32 v11, 5, v8
v_lshlrev_b32 v11, 6, v11
v_lshlrev_b32 v12, 3, v10
v_xor_b32 v11, v11, v12
v_lshl_add_u32 v{XW}, v9, 7, v11
v_lshrrev_b32 v11, 2, v8
v_lshlrev_b32 v11, 3, v11
v_bfe_u32 v13, v8, 1, 1
v_lshlrev_b32 v14, 6, v13
v_xor_b32 v11, v11, v14
v_and_b32 v14, 3, v8
v_lshl_add_u32 v{XR}, v14, 7, v11
v_lshl_add_u32 v{RSA}, v9, 12, v12
v_lshrrev_b32 v{GA}, 2, v8
v_lshlrev_b32 v{GA}, 7, v{GA}
v_lshl_add_u32 v{GA}, v14, 4, v{GA}
v_and_b32 v15, 1, v8
v_mul_u32_u24 v{IDXR}, 0xaaaa, v13
v_add_u32 v{IDXR}, 0x4444, v{IDXR}
v_bfe_u32 v11, v8, 2, 1
v_lshlrev_b32 v{SP}, 8, v13
v_lshl_add_u32 v{SP}, v11, 5, v{SP}
v_lshl_add_u32 v{SP}, v15, 4, v{SP}
s_xor_b32 s3, s41, 1
v_and_b32 v25, s3, v9
v_add_u32 v25, s42, v25
v_lshrrev_b32 v26, 5, v8
v_lshl_add_u32 v25, v25, 1, v26
v_lshl_add_u32 v{SP}, v25, 2, v{SP}
v_add_u32 v{SP}, s{S_OUTO}, v{SP}
""")
    for j in range(4):
        mk = sum(3 << (8 * b + 2 * j) for b in range(4))
        A(f"s_mov_b32 s{S_SEL+2*j}, {mk}\ns_mov_b32 s{S_SEL+2*j+1}, {mk}")
    A(f"""s_mov_b32 s{S_CS}, {f32bits(lay.C_SCALE)}
s_mov_b32 s{S_ONE}, 0x3f80
s_mov_b32 s74, 0x3f803f80
s_mov_b32 s75, 0x3f803f80
s_mov_b32 s{S_RNG}, {120 << 23}
s_mov_b32 s{S_STEP}, 0
s_mov_b32 s{S_PH}, 0
s_mov_b32 s{S_PHM}, 0
s_mov_b32 s{S_SLOT}, 0
s_mov_b32 s{S_DONE}, 0
s_sub_u32 s{S_PUB}, s{S_PUB}, {lay.KM_S}
s_add_u32 s{S_PUB2}, s{S_PUB}, 4096
s_cmp_eq_u32 {TEAM}, 0
s_cselect_b32 s30, 0, 0x40000000
s_cselect_b32 s31, 0x40000000, 0
s_add_u32 s{S_PUB}, s{S_PUB}, s30
s_add_u32 s{S_PUB2}, s{S_PUB2}, s31
""")
    A(f"""s_lshl_b32 s3, {WAVE}, 10
s_add_u32 s{S_AGA}, s{S_AGL}, s3
s_add_u32 s{S_RMB}, s{S_EXR}, s3
s_lshr_b32 s3, s3, 2
s_add_u32 s3, s3, 4096
s_add_u32 s{S_AG4}, s{S_AGL}, s3
s_add_u32 s{S_RM9}, s{S_EXR}, s3
s_and_b32 s3, {IDX}, 7
s_lshl_b32 s3, s3, 7
s_lshl_b32 s30, {IDX}, 2
s_cmp_eq_u32 {WAVE}, 2
s_cselect_b32 s3, s30, s3
s_lshl_b32 s{S_MK}, {TEAM}, 10
s_add_u32 s{S_MK}, s{S_MK}, s3
s_add_u32 s{S_MK}, s{S_MK}, {lay.R_MK}
s_mov_b32 s{S_OUTO}, s{S_MK}
s_mov_b32 s{S_MK2}, 0x40000000
s_cmp_eq_u32 {WAVE}, 0
s_cselect_b32 s{S_XM}, s{S_EXO}, s{S_EXR}
s_add_u32 s{S_XM}, s{S_XM}, 5376
s_cmp_eq_u32 {IDX}, 31
s_cselect_b32 s{S_XM}, s{S_XM}, 0x40000000""")
    A(f"s_cmp_eq_u64 s[84:85], 0\ns_cbranch_scc1 L_rk2{u}")
    kvwait(2, B1)
    A.label(f"L_rk2{u}")
    ev(A, O, 3, 8)
    A.force_wait()

def lds_tile(A, W, tile, hi=False, halves=(0, 1)):
    w = SRC[tile][1]; d = LAND[tile]
    for hf in halves:
        o = TILES + w * 8192 + hf * 4096 + W * 1024
        base = L16 if o < 65536 else LB2
        assert o < 65536 or (o >> 16) == (2 if hi else 1), (tile, o, hi)
        A(f"ds_read_b128 {v(d + 4 * hf, 4)}, v{base} offset:{o & 0xffff}")
def zero(A, r, n):
    for i in range(0, n, 2): A(f"v_mov_b64 {v(r + i, 2)}, 0")
def delay(A, cyc):
    d = cyc // 4
    while d > 0: A(f"s_nop {min(d, 16) - 1}"); d -= 16

class Stamps:
    def __init__(self, names): self.names = names or []
    def __call__(self, A, name):
        if name in self.names:
            i = self.names.index(name); A.raw(f"s_memtime s[{S_T + 2 * i}:{S_T + 2 * i + 1}]")

def step(A, M, W, red, O):
    u = f"{W}{red}{M.sfx}"
    stamp = Stamps(O.get("stamp"))
    NST = 6
    side = []
    L4 = GA
    mk4 = lambda t=L4: f"v_lshrrev_b32 v{t}, 2, v{L16}"
    ld = lambda r, so, t=L4: f"buffer_load_dwordx4 {v(r, 4)}, v{L16}, {WS}, s{so} offen sc1\nbuffer_load_dword v{r + 4}, v{t}, {WS}, s{so + 1} offen sc1"
    wr = lambda r, base, t=L4: [f"ds_write_b128 v{L16}, {v(r, 4)} offset:{base + W * 1024}", f"ds_write_b32 v{t}, v{r + 4} offset:{base + 4096 + W * 256}"]
    chk = lambda r, t: [f"v_max3_u32 v{t}, v{r}, v{r+1}, v{r+2}", f"v_max3_u32 v{t}, v{t}, v{r+3}, v{r+4}", f"v_cmp_eq_u32 vcc, -1, v{t}"]
    def gather(A, regs):
        for i in range(4):
            so, off = (S_GAT, 1024 * i) if red == 1 else (S_GAT2 if i >> 1 else S_GAT, 2048 * (i & 1))
            A(f"buffer_load_dwordx4 {v(regs[i], 4)}, v{L16 if red == 1 else GA}, {WS}, s{so} offen offset:{off} sc1")
    def frag(A, j, r): A(f"ds_read_b128 {v(r, 4)}, v{L16} offset:{MEM + j * 1024}")
    def xread(A, ks):
        for hf in range(2): A(f"ds_read_b64_tr_b16 {v(B0 + 4 * ks + 2 * hf, 2)}, v{XR} offset:{XB + (4 * hf + ks) * 512}")
    KR = GA
    def kfrag(A, xt, ks, r): A(f"ds_read_b128 {v(r, 4)}, v{KR} offset:{(xt * 4 + ks) * 1024}")
    def prep(A):
        for hf in range(2): A(f"ds_read_b128 {v(B6 + 4 * hf, 4)}, v{L16} offset:{VB + (2 * W + hf) * 1024}")
        lds_tile(A, W, PL[0])
        zero(A, B0, 24)
    cv = lambda d, r: f"v_cvt_pk_bf16_f32 v{d}, v{r}, v{r + 1}"
    mf = lambda d, x, y, first: f"v_mfma_f32_16x16x32_bf16 {v(d, 4)}, {v(x, 4)}, {v(y, 4)}, {'0' if first else v(d, 4)}"
    m16 = lambda d, x, y, first: f"v_mfma_f32_16x16x16_bf16 {v(d, 4)}, {v(x, 2)}, {v(y, 2)}, {'0' if first else v(d, 4)}"
    ex = lambda r: f"v_exp_f32 v{r}, v{r}"
    Sm, S0, S1, PX, LL, O0, O1, OP = c1, c0, a0, a1, c1, b1, b0, c0
    def owrite(A, tag=None):
        A(f"""v_rcp_f32 v{LL}, v{LL}
v_rcp_f32 v{LL+1}, v{LL+1}
v_subrev_u32 v{LL+2}, {67 << 23}, v{LL}
v_mul_f32 v{O0}, v{O0}, v{LL}
v_mul_f32 v{O0+1}, v{O0+1}, v{LL+1}""")
        A(cv(OP, O0)); A(cv(OP + 1, O0))
        A(f"ds_write_b64 v{XW}, {v(OP, 2)} offset:{OB + W * 512}")
        A(f"v_pk_mul_f32 {v(O1, 2)}, {v(O1, 2)}, {v(LL, 2)}")
        A(cv(OP + 2, O1)); A(cv(OP + 3, O1))
        A(f"ds_write_b64 v{XW}, {v(OP + 2, 2)} offset:{OB + (4 + W) * 512}", tag=tag)
    def truemax(A):
        t, t2 = Sm, Sm + 1
        A(f"""v_max3_f32 v{t}, v{Sm+2}, v{Sm+3}, v{S0}
v_max3_f32 v{t}, v{t}, v{S0+1}, v{S0+2}
v_max3_f32 v{t}, v{t}, v{S0+3}, v{S1}
v_max3_f32 v{t}, v{t}, v{S1+1}, v{S1+2}
v_max_f32 v{t}, v{t}, v{S1+3}
v_mov_b32 v{t2}, v{t}
v_permlane32_swap_b32 v{t}, v{t2}
v_max_f32 v{t}, v{t}, v{t2}
v_mov_b32 v{t2}, v{t}
v_permlane16_swap_b32 v{t}, v{t2}
v_max_f32 v{t}, v{t}, v{t2}""")
        vals = [Sm + 2, Sm + 3] + [S0 + i for i in range(4)] + [S1 + i for i in range(4)]
        for r in vals: A(f"v_sub_f32 v{r}, v{r}, v{t}")
        for r in vals: A(ex(r))
        A(cv(B2 + 4, Sm + 2)); A(cv(B2 + 7, Sm + 2))
        A(cv(PX, S0)); A(cv(PX + 1, S0 + 2)); A(cv(PX + 2, S1)); A(cv(PX + 3, S1 + 2))
        A(m16(LL, B2 + 4, B2 + 2, True)); A(m16(O0, B2 + 4, B2, True)); A(m16(O1, B2 + 6, B2, True))
        A(m16(LL, PX, B2 + 2, False)); A(m16(LL, PX + 2, B2 + 2, False))
        A(mf(O0, PX, B6, False)); A(mf(O1, PX, B6 + 4, False))
    mkprep = {2: [f"v_and_b32 v{GA}, 0x70, v{L16}", f"v_lshlrev_b32 v{GA}, 3, v{GA}", f"v_mov_b32 v{SP}, s{S_STEP}"],
              0: [f"v_bfe_u32 v{GA}, v{L16}, 2, 7"]}.get(W, []) if O.get("mk", 1) else []
    SEL, RA, T1 = B2, B2 + 4, B3
    g2 = O.get("g2", [60, None])[red - 1]
    G1 = [B0, B0 + 4, B1, B1 + 4]; G2 = [B7, B7 + 4, B6, B6 + 4]
    def reduce(A, regs):
        for i, r in enumerate(regs):
            A(f"v_mfma_f32_16x16x32_bf16 {v(RA, 4)}, {v(r, 4)}, {v(SEL, 4)}, {'0' if i == 0 else v(RA, 4)}")
            A(f"v_bitop3_b32 v{T1 + min(i, 1)}, v{r}, v{r + 2}, s{S_PHM} bitop3:0x7e")
            if 0 < i < len(regs) - 1: A(f"v_or_b32 v{T1}, v{T1}, v{T1+1}")
        A(f"""v_bitop3_b32 v{T1}, v{T1}, v{T1+1}, 1 bitop3:0xa8
v_cmp_ne_u32 vcc, 0, v{T1}
s_nop 3""")
    def finish(A):
        A(f"""v_permlane32_swap_b32 v{RA}, v{RA+2}
v_permlane32_swap_b32 v{RA+1}, v{RA+3}
v_pk_add_f32 {v(RA, 2)}, {v(RA, 2)}, {v(RA + 2, 2)}""")
        if red == 2:
            A(f"""v_mov_b64 {v(RA + 2, 2)}, {v(RA, 2)}
v_permlane16_swap_b32 v{RA}, v{RA+2}
v_permlane16_swap_b32 v{RA+1}, v{RA+3}
v_pk_add_f32 {v(RA, 2)}, {v(RA, 2)}, {v(RA + 2, 2)}""")
        A(cv(RA, RA))
        A(f"v_min_u32 v{RA}, -2, v{RA}")
    gexit = []
    if red:
        keep = (list(A.out), A.snap(), A.n_nop, A.n_ins)
        for regs in (G1, G2):
            A.force_wait(); gather(A, regs); A("s_nop 7"); gexit.append(A.snap())
        A.out[:] = keep[0]; A.restore(keep[1]); A.n_nop, A.n_ins = keep[2:]
    if O.get("stamp"):
        for i in range(NST): stamp(A, O["stamp"][i])
        for i in range(88, 100): A(f"s_mov_b32 s{i}, 0")
    sets = [c0, c1, b1, b0][:O.get("ns", 4)]
    lda = lambda r: f"buffer_load_dwordx4 {v(r, 4)}, v{L16}, {WS}, s{S_AGA} offen sc1"
    ldq = f"buffer_load_dword v{b1}, v{L4}, {WS}, s{S_AG4} offen sc1"
    wrq = f"ds_write_b32 v{L4}, v{b1} offset:{MEM + 4096 + W * 256}"
    dm4 = lambda so, lds: f"s_mov_b32 m0, {lds + W * 1024}\nbuffer_load_dwordx4 v{L16}, {WS}, s{so} offen sc1 lds"
    dm1 = lambda so, lds: f"s_mov_b32 m0, {lds + 4096 + W * 256}\nbuffer_load_dword v{L4}, {WS}, s{so} offen sc1 lds"
    dA, dB = O.get("dA", 0), O.get("dB", 0)
    A(mk4())
    def acheck(A, r):
        A(f"ds_write_b128 v{L16}, {v(r, 4)} offset:{MEM + W * 1024}", tag="aw")
        A(f"v_max3_u32 v{a0}, v{r}, v{r+1}, v{r+2}\nv_max_u32 v{a0}, v{a0}, v{r+3}\nv_cmp_eq_u32 vcc, -1, v{a0}")
    aexit = []
    keep = (list(A.out), A.snap(), A.n_nop, A.n_ins)
    for r in sets:
        A.force_wait(); A(lda(r)); A(f"ds_write_b128 v{L16}, {v(a0, 4)}", tag="aw"); A("s_nop 7"); aexit.append(A.snap())
    A.out[:] = keep[0]; A.restore(keep[1]); A.n_nop, A.n_ins = keep[2:]
    if not red: prep(A)
    if W == 2: A(f"v_mov_b32 v{SP}, 0")
    A(f"s_mov_b32 s{S_EXW}, 0x40000000")
    A.skip = O.get("skip")

    def body(A):
        side.clear()
        A.raw(".p2align 6")
        for _ in range(O.get("shift", 0)): A.raw("s_nop 0")
        A.label(f"L_step{u}")
        for i, r in enumerate(sets):
            A(lda(r))
            if dA and i == 0:
                delay(A, O.get("dgap", 12)); A(dm4(S_AGA, MEM), tag="ad")
            if red and i == O.get("exat", -1):
                delay(A, 16); A(f"buffer_store_dword v{RA}, v{SP}, {WS}, s{S_EXW} offen sc1")
            if red and i == len(sets) - 2: prep(A); delay(A, O.get("gap", 68) - 64)
            elif i < len(sets) - 1: delay(A, O.get("gap", 68))
        if dA:
            r = sets[0]
            A(f"v_max3_u32 v{a0}, v{r}, v{r+1}, v{r+2}\nv_max_u32 v{a0}, v{a0}, v{r+3}\nv_cmp_eq_u32 vcc, -1, v{a0}")
            A.wait_vm("ad")
        else: acheck(A, sets[0])
        A(f"s_cbranch_vccnz L_aretry{u}"); side.append(("a", A.snap()))
        A.label(f"L_aback{u}")
        A.join(*aexit)
        if not dA: A(ldq)
        rb = O.get("rb", -1)
        if rb == -2: A(ld(c0, S_RMB))
        A.wait_lg("aw")
        stamp(A, "A"); A("s_barrier"); stamp(A, "A2")
        frag(A, 0, a0)
        if dA: A(ldq)
        if dB == 1: A(dm1(S_AG4, MEM), tag="qd")
        if rb == -1: A(ld(c0, S_AGA if O.get("fakerem") else S_RMB))
        frag(A, 1, a1)
        order = P1
        fb = {0: a0, 1: a1, 2: b0, 3: a0, 4: a1, 5: b0, 6: b1, 7: a0, 8: c0, 9: a1}
        N = {i: [] for i in range(90)}; V = {i: [] for i in range(90)}
        L = lambda t, hi=False: (lambda: lds_tile(A, W, t, hi))
        if rb >= 0: N[rb] += [ld(c0, S_RMB)]
        for i in range(1, 10): N[PLS[i - 1]] += [L(PL[i], i >= 6)]
        V[24] += [f"v_add_u32 v{LB2}, 0x10000, v{LB2}"]; V[52] += [f"v_add_u32 v{LB2}, 0x10000, v{L16}"]
        N[7] += [lambda: frag(A, 2, b0)]
        N[9] += [lambda: frag(A, 3, a0)]
        N[18] += [lambda: frag(A, 4, a1)]
        def branch(kind):
            def f():
                A(f"s_cbranch_vccnz L_{kind}retry{u}"); side.append((kind, A.snap())); A.label(f"L_{kind}back{u}")
            return f
        fp = O.get("fp", 13 if dA else 10)
        if dB: N[O.get("db", 2)] += [dm4(S_RMB, MEM + 5120)]; N[O.get("db", 2) + 1] += [lambda: A(dm1(S_RM9, MEM + 5120), tag="bd")]
        if dB == 1:
            V[fp] += [f"v_cmp_eq_u32 vcc, -1, v{b1}"]
            N[fp + 2] += [branch("f"), lambda: A.wait_vm("qd"), "s_barrier"]
        else:
            N[fp] += [lambda: A(wrq, tag="qw")]; V[fp] += [f"v_cmp_eq_u32 vcc, -1, v{b1}"]
            N[fp + 2] += [branch("f")]; N[min(fp + 5, 16)] += [lambda: A.wait_lg("qw"), "s_barrier"]
        bp = O.get("bpos", 20)
        w_, c_ = wr(c0, MEM + 5120), chk(c0, c1 + 1)
        if dB:
            bq = O.get("bq", 23)
            V[bq] += c_
            N[25] += [branch("b"), lambda: A.wait_vm("bd"), "s_barrier", lambda: frag(A, 5, b0)]
        else:
            N[bp] += [w_[0]]; V[bp] += [c_[0]]
            N[bp + 1] += [lambda: A(w_[1], tag="bw")]; V[bp + 1] += [c_[1]]; V[bp + 2] += [c_[2]]
            N[bp + 4] += [branch("b")]
            N[bp + 5] += [lambda: A.wait_lg("bw"), "s_barrier", lambda: frag(A, 5, b0)]
        N[bp + 6] += [lambda: frag(A, 6, b1)]
        N[28] += [lambda: frag(A, 7, a0)]
        N[29] += [lambda: frag(A, 8, c0)]
        N[30] += [lambda: frag(A, 9, a1)]
        N[21] += [f"s_mov_b32 m0, s{S_KM0}", f"s_xor_b32 s{S_KM0}, s{S_KM0}, 8192"]
        kv = [f"buffer_load_dwordx4 v{L16}, {WS}, s{S_KV} offen sc1 lds",
              f"buffer_load_dwordx4 v{L16}, {WS}, s{S_KV} offen offset:1024 sc1 lds\ns_mov_b32 m0, {VB + W * 2048}",
              f"buffer_load_dwordx4 v{L16}, {WS}, s{S_V} offen sc1 lds", f"buffer_load_dwordx4 v{L16}, {WS}, s{S_V} offen offset:1024 sc1 lds"]
        for x, i in zip(kv, O.get("kvs", (bp + 6, 28, 31, 33))): N[i] += [lambda x=x: A(x, tag="kv")]
        if red and O.get("cs", 38) >= 0:
            V[31] += [f"v_mov_b32 v{c1 + 2}, -1"]
            N[O.get("cs", 38)] += [f"buffer_store_dword v{c1 + 2}, v{SP}, {WS}, s{S_EXZ} offen sc1"]
        if W == 2 and O.get("fs", 11) >= 0:
            N[O.get("fs", 11)] += [f"buffer_store_dword v{SP}, off, {WS}, s{S_FR} sc1"]
        if W == 3:
            V[18] += [f"v_bfe_u32 v{SP}, v{L16}, 2, 5"]
            N[38] += [f"buffer_load_dword v{SP}, v{SP}, {WS}, s{S_FKV} offen sc1"]
        N[1] += [f"s_mul_i32 s3, s{S_SLOT}, {AGS}\ns_add_u32 s{S_AGZ}, s{S_AGL}, s3\ns_add_u32 s{S_SLOT}, s{S_SLOT}, 1"]
        N[6] += [f"s_and_b32 s{S_SLOT}, s{S_SLOT}, 3\ns_xor_b32 s30, s{S_SLOT}, 2\ns_lshl_b32 s30, s30, 15"]
        N[8] += [f"s_mul_i32 s3, s{S_SLOT}, {AGS}\ns_add_u32 s{S_AGW}, s{S_AGL}, s3\ns_lshl_b32 s31, s{S_SLOT}, 15"]
        N[14] += [f"s_add_u32 s{S_EXW}, s{S_EXO}, s31\ns_add_u32 s31, s31, s{S_EXR}\ns_add_u32 s{S_AGA}, s{S_AGW}, {W * 1024}"]
        N[19] += [f"s_add_u32 s{S_AG4}, s{S_AGW}, {4096 + W * 256}"]
        N[20] += [f"s_add_u32 s{S_NEED}, s{S_STEP}, 3\ns_min_u32 s{S_NEED}, s{S_NEED}, 64"]
        N[36] += [f"s_add_u32 s{S_RMB}, s31, {W * 1024}\ns_add_u32 s{S_RM9}, s31, {4096 + W * 256}"]
        N[39] += [f"s_add_u32 s{S_KV}, s{S_KV}, {lay.QKV_S}\ns_add_u32 s{S_V}, s{S_V}, {lay.QKV_S}"]
        N[43] += [f"s_add_u32 s{S_PUB}, s{S_PUB}, {lay.KM_S}\ns_add_u32 s{S_PUB2}, s{S_PUB2}, {lay.KM_S}"]
        N[9] += [f"s_add_u32 s{S_EXZ}, s{S_EXO}, s30"]; N[44] += ["s_nop 1"]; N[38] += [f"s_sub_u32 s3, s{S_KM0}, {W * 2048}"]
        N[45] += ["s_nop 1"]; N[49] += ["s_nop 1"]; N[50] += ["s_nop 0"]
        N[48] += [f"s_cmp_eq_u32 s{S_STEP}, 63"]
        k0, k1 = ACC["k"]; q0, q1 = ACC["q"]; v0_, v1_ = ACC["v"]
        ad = lambda r, i: f"v_add_f32 v{r + i}, v{r + i}, v{r + i + 2}"
        mu = lambda r, i: f"v_mul_f32 v{r + i}, s{S_CS}, v{r + i}"
        pv = [ad(k0, 0), ad(k0, 1), mu(k0, 0), mu(k0, 1), ad(k1, 0), ad(k1, 1), mu(k1, 0), mu(k1, 1), ad(q0, 0), ad(q0, 1), cv(c1 + 1, k0), cv(c1 + 3, k1)]
        for i, x in enumerate(pv): V[39 + i] += [x]
        V[49] += [cv(c1, q0)]
        N[50] += [f"ds_write_b64 v{XW}, {v(c1, 2)} offset:{XB + W * 512}"]
        V[O.get("xq", 50)] += [ad(q1, 0), ad(q1, 1), cv(c1 + 2, q1), lambda: A(f"ds_write_b64 v{XW}, {v(c1 + 2, 2)} offset:{XB + (4 + W) * 512}", tag="xw")]
        V[38] += [f"v_add_u32 v{KR}, s3, v{L16}"]
        xb = O.get("xb", 54)
        N[xb] += [lambda: [A.wait_lg("xw"), stamp(A, "X"), A("s_barrier"), stamp(A, "X2"), xread(A, 0)]]
        N[xb + 1] += [lambda: [xread(A, 1)]]
        N[xb + 2] += [lambda: [xread(A, 2)]]
        N[xb + 3] += [lambda: [xread(A, 3)]]
        for (xt, ks, r), i in zip(((0, 0, d0), (0, 1, d1), (0, 2, a0), (0, 3, a1), (1, 0, b1), (1, 1, b0)), O.get("kfs", (47, 48, 52, 58, 58, 59))):
            N[i] += [lambda xt=xt, ks=ks, r=r: kfrag(A, xt, ks, r)]
        fast = O.get("fast", 1)
        V[61] += [ad(v0_, 0), ad(v0_, 1)]
        V[62] += [ad(v1_, 0), ad(v1_, 1)]
        V[63] += [cv(B2, v0_), cv(B2 + 1, v1_)]
        N[64] += [lambda: kfrag(A, 1, 2, d0)]
        V[64] += [f"v_mov_b64 {v(B2 + 2, 2)}, s[74:75]"]
        N[65] += [lambda: kfrag(A, 1, 3, d1)]
        V[65] += [f"v_mov_b32 v{B2 + 5}, 0"]
        N[60 + W] += [f"buffer_store_dwordx4 {v(B0 + 4 * W, 4)}, v{L16}, {WS}, s{S_PUB} offen offset:{W * 1024} sc1"]
        N[65] += [f"buffer_store_dwordx2 {v(B2, 2)}, v{XW}, {WS}, s{S_PUB2} offen offset:{W * 512} sc1"]
        N[66] += [lambda: [A(f"s_cbranch_scc1 L_last{u}"), side.append(("l", A.snap()))]]
        V[69] += [f"v_mov_b32 v{B2 + 6}, 0"]
        if fast:
            V[67] += [ex(Sm + 3)]; V[66] += [ex(Sm + 2)]; V[68] += [cv(B2 + 4, Sm + 2), cv(B2 + 7, Sm + 2)]
            V[70] += [ex(S0)]; V[71] += [ex(S0 + 1)]; V[72] += [ex(S0 + 2)]; V[73] += [ex(S0 + 3)]
            N[72] += [lambda: lds_tile(A, W, WL[4], False, (0,))]; N[73] += [lambda: lds_tile(A, W, WL[4], False, (1,))]
            V[74] += [ex(S1), cv(PX, S0), cv(PX + 1, S0 + 2), ex(S1 + 1), ex(S1 + 2)]
            V[75] += [ex(S1 + 3), cv(PX + 2, S1), cv(PX + 3, S1 + 2)]
            if O.get("wpre", 0): N[76] += ["s_nop 2"]; N[77] += ["s_nop 2"]
            else: N[76] += [L(WL[0])]; N[77] += [L(WL[1])]
        seq = [f"v_smfmac_f32_16x16x64_bf16 {v(ACC[m][t], 4)}, {v(fb[ks], 4)}, {breg((m, ks, t))}, v{IDXR}" for m, ks, t in order]
        seq += [mf(Sm, B0 + 4 * ks, B0 + 4 * ks, ks == 0) for ks in range(4)]
        seq += [mf(S0, r, B0 + 4 * ks, ks == 0) for ks, r in enumerate((d0, d1, a0, a1))]
        seq += [mf(S1, r, B0 + 4 * ks, ks == 0) for ks, r in enumerate((b1, b0, d0, d1))]
        if fast:
            seq += [m16(LL, B2 + 4, B2 + 2, True), m16(O0, B2 + 4, B2, True), m16(O1, B2 + 6, B2, True), m16(LL, PX, B2 + 2, False),
                    m16(LL, PX + 2, B2 + 2, False), mf(O0, PX, B6, False), mf(O1, PX, B6 + 4, False)]
        def run(seq, N, V, pfx, tail=0):
            for i in range(len(seq) + tail):
                if i < len(seq): A(seq[i]); stamp(A, f"{pfx.upper()}{i}")
                for x in N[i]: x() if callable(x) else A(x)
                if V[i] and i + 1 < len(seq) and not (pfx == "p" and i + 1 in PLS and O.get("nohoist", 1)): A.prewait(seq[i + 1])
                for x in V[i]: x() if callable(x) else A(x)
                stamp(A, f"{pfx}{i}")
        mk = O.get("mk", 1)
        N[71] += [f"s_add_u32 s{S_STEP}, s{S_STEP}, 1"]
        for i, x in enumerate(mkprep): V[(69, 76, 77)[i] if fast else 71] += [x]
        run(seq, N, V, "p")
        if not fast:
            lds_tile(A, W, WL[4])
            truemax(A)
        owrite(A, "ow")
        if O.get("wpre", 0) or not fast: lds_tile(A, W, WL[0]); lds_tile(A, W, WL[1])
        if fast:
            A(f"""v_subrev_u32 v{LL+1}, {67 << 23}, v{LL+1}
v_max_u32 v{LL}, v{LL+2}, v{LL+1}
v_cmp_le_u32 vcc, s{S_RNG}, v{LL}""")
        zero(A, c1, 4)
        zb = O.get("zb", 1)
        if zb < 2: zero(A, b0, 4)
        if zb < 1: zero(A, b1, 4)
        if fast: branch("s")()
        if mk and W == 2: A("s_mov_b64 exec, 0xff")
        A.wait_lg("ow"); stamp(A, "O"); A("s_barrier"); stamp(A, "O2")
        if O.get("diagw"):
            A.wait_vm("kv"); stamp(A, "D1"); A.wait_vm(); stamp(A, "D2")
        if mk and W == 2: A(f"buffer_store_dword v{SP}, v{GA}, {WS}, s{S_MK} offen{M.st}\ns_mov_b64 exec, -1")
        OA = [B2, B2 + 4, B3, B3 + 4]
        oo = (0, 1, 2, 3) if W < 2 or G2LAST else (2, 3, 0, 1)
        def oread(kk):
            for hf in range(2): A(f"ds_read_b64_tr_b16 {v(OA[kk] + 2 * hf, 2)}, v{XR} offset:{OB + (4 * hf + kk) * 512}")
        npre = O.get("npre", 3)
        for kk in oo[:npre]: oread(kk)
        acc = [b0, b1, c1]
        N = {i: [] for i in range(30)}; V = {i: [] for i in range(30)}
        for i, kk in enumerate(oo[npre:]): N[i] += [lambda kk=kk: oread(kk)]
        N[2] += [L(WL[2])]; N[3] += [L(WL[3])]
        if zb == 2: V[0] += [f"v_mov_b64 {v(b0, 2)}, 0", f"v_mov_b64 {v(b0 + 2, 2)}, 0"]
        if zb >= 1: V[zb - 1] += [f"v_mov_b64 {v(b1, 2)}, 0"]; V[zb] += [f"v_mov_b64 {v(b1 + 2, 2)}, 0"]
        rs = lambda g: (lambda: A(f"buffer_store_dwordx2 {v(acc[g], 2)}, v{RSA}, {WS}, s{S_RS + g} offen{M.st}", tag=f"rs{g}"))
        tg = lambda g: f"v_and_or_b32 v{acc[g]}, v{acc[g]}, -2, s{S_PH}"
        if G2LAST:
            N[1] = []; N[3] += ["s_nop 2"]; N[4] += ["s_nop 2"]
            V[5] += [cv(b0, b0)]; V[6] += [cv(b0 + 1, b0 + 2), tg(0)]; N[7] += [rs(0), "s_nop 0"]
            N[8] += ["s_nop 1"]
            V[9] += [cv(b1, b1), cv(b1 + 1, b1 + 2), tg(1), rs(1), cv(c1, c1), cv(c1 + 1, c1 + 2), tg(2), rs(2)]
        else:
            V[3] += [cv(c1, c1)]; V[4] += [cv(c1 + 1, c1 + 2), tg(2)]; N[5] += [rs(2), "s_nop 0"]
            N[6] += ["s_nop 1"]
            V[7] += [cv(b0, b0)]; V[8] += [cv(b0 + 1, b0 + 2), tg(0)]; N[9] += [rs(0)]
            V[9] += [cv(b1, b1), cv(b1 + 1, b1 + 2), tg(1), rs(1)]
        seq = [f"v_smfmac_f32_16x16x64_bf16 {v(acc[x >> 1], 4)}, {v(OA[2 * (x & 1 if x < 4 else W >> 1) + t], 4)}, {breg((m, x, t))}, v{IDXR}" for m, x, t in P4]
        mp = lambda i: f"buffer_load_dword v{B1 + i}, v{GA}, {WS}, s{S_MK} offen sc1"
        nmk = 0
        if mk and W == 2 and O.get("pace", 0): N[O.get("pd", 6)] = [f"s_mov_b64 exec, 0xff\nbuffer_store_dword v{SP}, v{GA}, {WS}, s{S_MK2} offen{M.st}\ns_mov_b64 exec, -1"]
        if mk and W == 0:
            for i in O.get("mslots", (4, 6, 8)): N[i] = [mp(nmk)] + N[i]; nmk += 1
            N[9] += [mp(nmk)]; nmk += 1
        run(seq, N, V, "w")
        stamp(A, "T0")
        trc = 0
        A(f"s_xor_b32 s{S_PH}, s{S_PH}, 1")
        if mk and W == 0:
            NM = O.get("nm", 6)
            for i in range(nmk, NM):
                A(mp(i))
                if i < NM - 1: delay(A, 28)
            mex0, mex = [], []
            def mpass(A, ex):
                for i in range(NM):
                    A(f"v_cmp_gt_u32 vcc, s{S_STEP}, v{B1 + i}"); A(mp(i))
                    A(f"s_cbranch_vccz L_mok{u}"); ex.append(A.snap())
            mpass(A, mex0)
            def ml(A):
                mex.clear(); A.label(f"L_mk{u}")
                mpass(A, mex)
                A(f"s_add_u32 {TMO}, {TMO}, 1\ns_cmp_gt_u32 {TMO}, {TMO_MAX}\ns_cbranch_scc0 L_mk{u}")
                st = A.snap(); A("s_branch " + M.fail)
                return st
            A.loop(ml)
            A.label(f"L_mok{u}"); A.restore(merge(*(mex0 + mex)))
        if mk: A("s_barrier")
        if red:
            gd = O.get("gd", [80, 0, 20] if mk else [220, 140, 20])
            if red == 1:
                A(f"s_cmp_lt_u32 {IDX}, 16\ns_cbranch_scc1 L_glo{u}"); delay(A, gd[2]); A.label(f"L_glo{u}")
                delay(A, gd[0] - gd[2] - 20 - trc)
            else:
                A(f"v_and_b32 v{GA}, 0x3c0, v{L16}\nv_add_u32 v{GA}, v{GA}, v{L16}")
                delay(A, gd[1] - trc)
            gather(A, G1); stamp(A, "G")
            A(f"""v_and_b32 v{T1}, 16, v{L16}
v_lshlrev_b32 v{T1}, v{T1}, s{S_ONE}""")
            for j in range(4): A(f"v_cndmask_b32 v{SEL + j}, 0, v{T1}, s[{S_SEL+2*j}:{S_SEL+2*j+1}]")
            A(f"v_mov_b32 v{T1+5}, -1\nv_mov_b32 v{T1+6}, s{S_STEP}")
            if g2 is not None:
                delay(A, g2); gather(A, G2)
            reduce(A, G1)
            A(f"s_cbranch_vccnz L_gretry{u}"); side.append(("g", A.snap()))
            A.label(f"L_gback{u}")
            if gexit: A.join(*gexit)
            finish(A)
            A(f"buffer_store_dword v{RA}, v{SP}, {WS}, s{S_AGW} offen{M.st}")
            stamp(A, "T1")
            A("s_barrier")
            if O.get("exat", -1) < 0: A(f"buffer_store_dword v{RA}, v{SP}, {WS}, s{S_EXW} offen sc1")
            if O.get("cs", 38) < 0: A(f"buffer_store_dword v{T1+5}, v{SP}, {WS}, s{S_EXZ} offen sc1")
            A(f"buffer_store_dword v{T1+5}, v{SP}, {WS}, s{S_AGZ} offen{M.st}")
            A(f"s_not_b32 s{S_PHM}, s{S_PHM}")
        else:
            stamp(A, "G")
            A.wait_vm()
            stamp(A, "T1")
            if O.get("prof") and W == 1:
                A(("s_memtime" if O["prof"] == 1 else "s_memrealtime") + " s[72:73]\ns_mov_b32 m0, s%d" % S_STEP); A.wait_lg(); A(f"v_writelane_b32 v{SP}, s72, m0")
            prep(A)
            if W == 3:
                A(f"v_cmp_gt_u32 vcc, s{S_NEED}, v{SP}")
                branch("k")()
            if W == 2: A(f"v_mov_b32 v{SP}, s{S_STEP}")
            A("s_barrier")
            if W == 2 and O.get("fs", 11) < 0: A(f"buffer_store_dword v{SP}, off, {WS}, s{S_FR} sc1")
        A(mk4())
        if O.get("stamp"):
            trc = 108
            A.force_wait("lgkmcnt(0)")
            A(f"s_cmp_ge_u32 s{S_STEP}, 5\ns_cselect_b32 s72, -1, 0")
            for i in range(NST - 1): A(f"s_sub_u32 s3, s{S_T + 2*i + 2}, s{S_T + 2*i}\ns_and_b32 s3, s3, s72\ns_add_u32 s{88 + i}, s{88 + i}, s3")
            A(f"s_cmp_eq_u32 s{S_STEP}, 5\ns_cmov_b32 s93, s{S_T}\ns_cmov_b32 s73, {TMO}\ns_cmov_b32 s101, 0\ns_cmp_eq_u32 s{S_STEP}, {O.get('snap', 30)}")
            for i in range(NST): A(f"s_cmov_b32 s{94 + i}, s{S_T + 2*i}")
        delay(A, O.get("ad", [170, 162, 162])[red] - trc)
        A(f"s_branch L_step{u}")
        return A.snap()
    A.loop(body)
    A.skip = None
    def cnt(kind):
        if O.get("stamp"): A(f"s_add_u32 s101, s101, {1 << (8 * 'fabg'.index(kind))}")
    for kind, st in list(side):
        A.restore(st)
        if kind == "a":
            ex_ = []
            def al(A):
                ex_.clear()
                A.label(f"L_aretry{u}")
                for i in range(len(sets)):
                    r = sets[(i + 1) % len(sets)]
                    A(lda(sets[i])); cnt("a")
                    A(f"v_max3_u32 v{a0}, v{r}, v{r+1}, v{r+2}\nv_max_u32 v{a0}, v{a0}, v{r+3}\nv_cmp_eq_u32 vcc, -1, v{a0}")
                    A(f"s_cbranch_vccz L_aw{i}{u}"); ex_.append((i, r, A.snap()))
                A(f"s_add_u32 {TMO}, {TMO}, 1\ns_cmp_gt_u32 {TMO}, {TMO_MAX}\ns_cbranch_scc0 L_aretry{u}")
                st = A.snap(); A("s_branch " + M.fail)
                return st
            A.loop(al)
            for i, r, st in ex_:
                A.restore(st); A.label(f"L_aw{i}{u}")
                A(f"ds_write_b128 v{L16}, {v(r, 4)} offset:{MEM + W * 1024}\ns_branch L_aback{u}")
        elif kind == "f":
            A.label(f"L_fretry{u}"); A.force_wait("lgkmcnt(0)")
            A(ldq); cnt("f"); tmo(A, M.fail); A.wait_vm()
            A(wrq); A(f"v_cmp_eq_u32 vcc, -1, v{b1}")
            A.wait_all()
            A(f"s_cbranch_vccnz L_fretry{u}\ns_branch L_fback{u}")
        elif kind == "b":
            A.label(f"L_bretry{u}"); A.force_wait("lgkmcnt(0)")
            A(ld(c0, S_RMB)); cnt("b"); tmo(A, M.fail); A.wait_vm()
            for x in wr(c0, MEM + 5120) + chk(c0, c1 + 1): A(x)
            A.wait_all()
            A(f"s_cbranch_vccnz L_bretry{u}\ns_branch L_bback{u}")
        elif kind == "g":
            A.label(f"L_gretry{u}")
            if g2 is None: gather(A, G2); delay(A, 100)
            def gl(A):
                A.label(f"L_gloop{u}")
                for again, regs in ((G1, G2), (G2, G1)):
                    gather(A, again); cnt("g")
                    A(f"s_add_u32 {TMO}, {TMO}, 1")
                    reduce(A, regs)
                    A(f"s_cbranch_vccz L_gback{u}")
                A(f"s_cmp_gt_u32 {TMO}, {TMO_MAX}\ns_cbranch_scc0 L_gloop{u}")
                st = A.snap(); A("s_branch " + M.fail)
                return st
            A.loop(gl)
        elif kind == "k":
            A.label(f"L_kretry{u}"); tmo(A, M.fail)
            A(f"""v_bfe_u32 v{SP}, v{L16}, 2, 5
buffer_load_dword v{SP}, v{SP}, {WS}, s{S_FKV} offen sc1
v_cmp_gt_u32 vcc, s{S_NEED}, v{SP}
s_cbranch_vccnz L_kretry{u}
s_branch L_kback{u}""")
        elif kind == "s":
            A.label(f"L_sretry{u}"); A.force_wait("lgkmcnt(0)")
            A(f"s_sub_u32 s3, s{S_KM0}, {W * 2048}\nv_add_u32 v{KR}, s3, v{L16}")
            for ks in range(4): xread(A, ks)
            for ks in range(4): A(mf(Sm, B0 + 4 * ks, B0 + 4 * ks, ks == 0))
            for xt, d in ((0, S0), (1, S1)):
                for ks, r in enumerate((d0, d1, b0, b1)): kfrag(A, xt, ks, r)
                for ks, r in enumerate((d0, d1, b0, b1)): A(mf(d, r, B0 + 4 * ks, ks == 0))
            truemax(A)
            for t in (WL[4], WL[0], WL[1]): lds_tile(A, W, t)
            for x in mkprep: A(x)
            owrite(A)
            zero(A, B4, 8); zero(A, c1, 4)
            A.force_wait("lgkmcnt(0)")
            A(f"s_branch L_sback{u}")
        elif kind == "l":
            A.label(f"L_last{u}")
            A.wait_all(); A("s_barrier")
            if W == 2:
                A(f"v_mov_b32 v{SP}, 64\nbuffer_store_dword v{SP}, off, {WS}, s{S_FR} sc1")
            ev(A, O, 4, 8)
            if O.get("prof") and W == 1 and not red:
                A(f"s_lshl_b32 s3, {TEAM}, 5\ns_add_u32 s3, s3, {IDX}\ns_lshl_b32 s3, s3, 8\ns_add_u32 s3, s3, {lay.DBGOUT + 0x40000}\nv_lshrrev_b32 v8, 2, v{L16}\nbuffer_store_dword v{SP}, v8, {WS}, s3 offen")
            if O.get("stamp"):
                A(f"s_lshl_b32 s100, {TEAM}, 5\ns_add_u32 s100, s100, {IDX}\ns_lshl_b32 s100, s100, 10\ns_add_u32 s100, s100, {lay.DBGOUT + W * 256}")
                A.force_wait("lgkmcnt(0)")
                A(f"s_sub_u32 s93, s{S_T}, s93\ns_sub_u32 s73, {TMO}, s73")
                for i in range(12): A(f"v_mov_b32 v{8 + i}, s{88 + i}")
                A("v_mov_b32 v20, s73\nv_mov_b32 v21, s101")
                for i in range(16):
                    A(f"s_memrealtime s[30:31]\ns_memtime s[74:75]"); A.wait_lg(); A(f"v_mov_b32 v{24 + 2*i}, s30\nv_mov_b32 v{25 + 2*i}, s74\ns_nop {i % 7}")
                for i in range(12): A(f"buffer_store_dwordx4 {v(8 + 4 * i, 4)}, off, {WS}, s100 offset:{16 * i}")
            A("s_endpgm")

def role(A, M, O):
    u = M.sfx
    prologue(A, M, O)
    st = A.snap()
    A(f"""s_cmp_eq_u32 {WAVE}, 2
s_cbranch_scc1 L_rw2{u}
s_cmp_eq_u32 {WAVE}, 3
s_cbranch_scc1 L_rw3{u}
s_cmp_eq_u32 {WAVE}, 0
s_cbranch_scc1 L_rw0{u}
s_cmp_lt_u32 {IDX}, 16
s_cbranch_scc1 L_rw1{u}""")
    for lbl, W, red in ((None, 1, 0), ("L_rw0", 0, 1), ("L_rw1", 1, 2), ("L_rw2", 2, 0), ("L_rw3", 3, 0)):
        if lbl: A.label(lbl + u)
        A.restore(st)
        step(A, M, W, red, O)
```

```python
from asmgen import *
import lay

WS = "s[4:7]"
SA, SB, SC, SD = "s[8:11]", "s[12:15]", "s[16:19]", "s[20:23]"
TEAM, IDX, WAVE, TMO = "s24", "s25", "s26", "s27"
DBG = "s[28:29]"
KA = 64
P_X, P_MEM0, P_WQ, P_WK, P_WV, P_WO, P_SEG, P_BX, P_WG, P_WU, P_WD, P_C, P_WM, P_OUT, P_DBG, P_WS = range(16)
SIZES = {P_X: 2621440, P_MEM0: 10240, P_WQ: 5242880, P_WK: 5242880, P_WV: 5242880, P_WO: 5242880,
         P_WG: 640 * 1728 * 2, P_WU: 640 * 1728 * 2, P_WD: 640 * 1728 * 2, P_C: 1280, P_WM: 640 * 3840 * 2, P_OUT: 2621440}
OOB = 0x7FFFFFF0
TMO_MAX = 0x40000

def srd(A, base, p):
    A(f"""s_mov_b32 s{base}, s{KA+2*p}
s_mov_b32 s{base+1}, s{KA+2*p+1}
s_mov_b32 s{base+2}, {SIZES[p]}
s_mov_b32 s{base+3}, 0x20000""")

def lane(A, r):
    A(f"v_mbcnt_lo_u32_b32 v{r}, -1, 0\nv_mbcnt_hi_u32_b32 v{r}, -1, v{r}")

class Mode:
    def __init__(self, safe):
        self.safe = safe
        self.st = " sc1" if safe else ""
        self.sfx = "_s" if safe else "_f"
        self.fail = "L_fail" + self.sfx

def tmo(A, fail):
    A(f"s_add_u32 {TMO}, {TMO}, 1\ns_cmp_gt_u32 {TMO}, {TMO_MAX}\ns_cbranch_scc1 {fail}")

S_CNT, S_ATT, S_BAD = "s76", "s77", "s78"
def arrive(A, M, uid, t0, tag=None):
    if tag:
        A.wait_vm(tag); A("s_barrier")
    A(f"s_cmp_lg_u32 {WAVE}, 0\ns_cbranch_scc1 L_arr{uid}")
    st = A.snap()
    A(f"""s_mul_i32 s3, {TEAM}, 66
s_and_b32 s3, s3, 0xc8
s_add_u32 s3, s3, {S_CNT}
v_mov_b32 v{t0+2}, s3
s_lshl_b32 s3, 1, {IDX}
v_mov_b32 v{t0}, s3
s_add_u32 s3, {S_BAD}, 0x10000
v_mov_b32 v{t0+1}, s3
s_mov_b64 exec, 1
global_atomic_add_x2 v{t0+2}, {v(t0, 2)}, {DBG} sc1
s_mov_b64 exec, -1
L_arr{uid}:""")
    A.join(st)

def census(A, M, uid, t0, lds):
    A(f"v_mov_b32 v{t0+3}, {lds}")
    A.wait_all()
    A(f"s_cmp_lg_u32 {WAVE}, 0\ns_cbranch_scc1 L_cenw{uid}")
    lane(A, t0 + 2)
    A(f"v_and_b32 v{t0+2}, 7, v{t0+2}\nv_mul_u32_u24 v{t0+2}, 66, v{t0+2}\nv_and_b32 v{t0+2}, 0xc8, v{t0+2}\nv_add_u32 v{t0+2}, {S_CNT}, v{t0+2}")
    A(f"""L_cen{uid}:
global_load_dwordx2 {v(t0, 2)}, v{t0+2}, {DBG} sc1""")
    tmo(A, M.fail)
    A(f"""v_cmp_eq_u32 s[30:31], -1, v{t0}
v_cmp_eq_u32 vcc, 0x200000, v{t0+1}
s_and_b64 s[30:31], s[30:31], vcc
v_lshrrev_b32 v{t0+1}, 16, v{t0+1}""")
    for k in (4, 2, 1): A(f"v_add_u32_dpp v{t0+1}, v{t0+1}, v{t0+1} row_ror:{k} row_mask:0xf bank_mask:0xf")
    A(f"""v_cmp_lt_u32 vcc, 255, v{t0+1}
s_cbranch_vccnz L_cend{uid}
s_sleep 12
s_branch L_cen{uid}
L_cend{uid}:
v_mov_b32 v{t0}, s30
ds_write_b32 v{t0+3}, v{t0}""")
    A.wait_all()
    A(f"""L_cenw{uid}:
s_barrier
ds_read_b32 v{t0}, v{t0+3}
v_cmp_ne_u32 vcc, -1, v{t0}
s_cbranch_vccnz {M.fail if M.safe else "L_next"}""")

def vote_class(A, M, pid, t0):
    A(f"""s_and_b32 s46, {pid}, 3
s_lshl_b32 s46, s46, 15
s_bfe_u32 s3, {pid}, 0x40002
s_lshl_b32 s3, s3, 7
s_add_u32 s46, s46, s3
s_add_u32 s46, s46, {lay.R_EX + 5632}
s_mov_b32 s48, -1
s_mov_b32 s49, 0
s_mov_b32 s50, 0
s_mov_b64 exec, 1""")
    A.force_wait()
    A(f"""L_vote{M.sfx}:
s_and_b32 s47, s50, 3
s_lshl_b32 s3, s47, 13
s_add_u32 s3, s3, s46
s_memtime s[30:31]""")
    A.wait_lg()
    A(f"buffer_store_dword v{t0}, off, {WS}, s3 sc1"); A.wait_vm()
    A("s_memtime s[44:45]"); A.wait_lg()
    A(f"""s_sub_u32 s3, s44, s30
s_cmp_lt_u32 s3, s48
s_cselect_b32 s48, s3, s48
s_cselect_b32 s49, s47, s49
s_add_u32 s50, s50, 1
s_cmp_lt_u32 s50, 12
s_cbranch_scc1 L_vote{M.sfx}
s_mul_i32 s3, s49, 0x81
s_and_b32 s3, s3, 0x101
s_add_u32 s3, s3, 0x10000
v_mov_b32 v{t0}, s3
s_lshl_b32 s3, {S_ATT}, 6
s_add_u32 s3, s3, 56
v_mov_b32 v{t0+1}, s3
global_atomic_add v{t0+1}, v{t0}, {DBG} sc1
s_mov_b64 exec, -1""")
def census_eval(A, M, d, again, cls=None):
    A(f"""s_lshr_b32 s3, {S_CNT}, 2
s_lshl_b32 s80, 0x50005, s3
s_mov_b32 s81, s80
v_cmp_eq_u32 s[82:83], -1, v{d}
v_cmp_eq_u32 vcc, 0x200000, v{d}
s_lshr_b64 s[30:31], vcc, 1
s_and_b64 s[30:31], s[30:31], s[82:83]
s_and_b64 s[30:31], s[30:31], s[80:81]
s_cmp_eq_u64 s[30:31], s[80:81]
s_cbranch_scc1 L_ceok{again}
s_mov_b32 s31, 0""")
    for i in range(8): A(f"s_add_u32 s80, s3, {16 * (i >> 1) + 2 * (i & 1) + 1}\nv_readlane_b32 s30, v{d}, s80\ns_lshr_b32 s30, s30, 16\ns_add_u32 s31, s31, s30")
    A(f"""s_cmp_lt_u32 s31, 256
s_cbranch_scc1 {again}
s_branch {M.fail if M.safe else "L_next"}
L_ceok{again}:""")
    class_eval(A, d, again, cls, S_ATT)
def rings_ready(A, M, uid, t0, tag):
    A.wait_vm(tag)
    A(f"s_barrier\ns_cmp_lg_u32 {WAVE}, 0\ns_cbranch_scc1 L_rr{uid}")
    st = A.snap()
    A(f"""s_lshl_b32 s3, {S_ATT}, 6
s_add_u32 s3, s3, 60
v_mov_b32 v{t0}, s3
v_mov_b32 v{t0+1}, 1
s_mov_b64 exec, 1
global_atomic_add v{t0}, v{t0+1}, {DBG} sc1
s_mov_b64 exec, -1
L_rr{uid}:""")
    A.join(st)
def class_eval(A, d, again, cls, att, rings=True):
    if rings: A(f"s_lshl_b32 s3, {att}, 4\ns_add_u32 s3, s3, 15\nv_readlane_b32 s3, v{d}, s3\ns_cmp_lt_u32 s3, 64\ns_cbranch_scc1 {again}")
    if cls is not None:
        A(f"s_mov_b32 s30, {cls * 8192}"); return
    A(f"""s_lshl_b32 s3, {att}, 4
s_add_u32 s3, s3, 14
v_readlane_b32 s3, v{d}, s3
s_cmp_lt_u32 s3, 0x400000
s_cbranch_scc1 {again}
s_and_b32 s31, s3, 0xff
s_cmp_ge_u32 s31, 32
s_cselect_b32 s30, 8192, 0
s_bfe_u32 s31, s3, 0x80008
s_cmp_ge_u32 s31, 32
s_cselect_b32 s31, 0, 16384
s_add_u32 s30, s30, s31""")

def near(A, O, x):
    if O.get("near", 1): A(f"s_lshr_b32 s3, s{x}, 8\ns_xor_b32 s3, s3, s30\ns_and_b32 s3, s3, 8192\ns_add_u32 s{x}, s{x}, s3")

def ev(A, O, i, t):
    if O.get("hev"):
        slot = O["hev"].get((A.role, i))
        if slot is not None:
            A.force_wait("lgkmcnt(0)")
            A(f"s_memrealtime s[30:31]\nv_mov_b32 v{t}, s30\ns_and_b32 s3, {IDX}, 3\ns_add_u32 s3, s3, {WAVE}\ns_cmp_eq_u32 s3, 0\ns_cselect_b64 exec, 1, 0\ns_cbranch_execz L_hev{len(A.out)}")
            n = len(A.out)
            lbl = [x for x in A.out[-1:]][0].split()[-1]
            A(f"v_mov_b32 v{t+1}, {4 * slot}\nglobal_atomic_umax v{t+1}, v{t}, {DBG} sc1")
            A.label(lbl); A("s_mov_b64 exec, -1"); A.force_wait("vmcnt(0)")
        return
    if not O.get("ev"): return
    A.force_wait("lgkmcnt(0)")
    A(f"s_memrealtime s[30:31]\ns_lshl_b32 s3, {TEAM}, 5\ns_add_u32 s3, s3, {IDX}\ns_lshl_b32 s3, s3, 2\ns_add_u32 s3, s3, {WAVE}\ns_lshl_b32 s3, s3, 7\ns_add_u32 s3, s3, {lay.DBGOUT + 0x80000}")
    A(f"v_mov_b32 v{t}, s30\nbuffer_store_dword v{t}, off, {WS}, s3 offset:{4 * i}")
    A(f"s_memtime s[30:31]\nv_mov_b32 v{t}, s30\nbuffer_store_dword v{t}, off, {WS}, s3 offset:{4 * i + 32}")
```

```python
from common import *
import struct

IDXR, L16, LB2, XW, XR, RSA, GA, SP = range(8)
B0, B1, B2, B3, B4, B5, B6, B7 = (8 + 8 * i for i in range(8))
a0, a1, b0, b1, c0, c1, d0, d1 = B3, B3 + 4, B4, B4 + 4, B5, B5 + 4, B7, B7 + 4
STATIC0 = 72
MEM, XB, VMS, KB, VB, TILES = 0, 10240, 14336, 16384, 32768, 40960
OB = MEM + 5120
S_STEP, S_PH, S_PHM = 32, 33, 34
S_AGA, S_AG4, S_RMB, S_RM9 = 35, 36, 37, 38
S_AGW, S_AGZ, S_EXW, S_EXZ = 39, 40, 41, 42
S_RS = 43
S_GAT, S_GAT2 = 46, 47
S_KV, S_V, S_PUB, S_PUB2 = 48, 49, 50, 51
S_SLOT, S_OUTO, S_FKV, S_FR = 52, 53, 54, 55
S_CS, S_ONE, S_NEED, S_KM0 = 56, 57, 58, 59
S_AGL, S_EXO, S_EXR, S_RNG = 60, 61, 62, 63
S_SEL = 64
S_DONE = 100
S_MK, S_MK2, S_XM = 8, 9, 10
S_T = 76
ACC = {"k": (B0, B0 + 4), "q": (B1, B1 + 4), "v": (B2, B2 + 4)}
AGS, EXS = 5120, 32768

def f32bits(x): return struct.unpack("<I", struct.pack("<f", x))[0]

def p1_order():
    o = []
    for ks in range(5):
        if ks in (0, 2): o += [("k",ks,0),("q",ks,0),("q",ks,1),("v",ks,0),("v",ks,1),("k",ks,1)]
        else: o += [("k",ks,0),("k",ks,1),("q",ks,0),("q",ks,1),("v",ks,0),("v",ks,1)]
    o += [("k",5,0),("k",5,1),("k",6,0),("k",6,1),("k",7,0),("k",8,0),("k",9,0),("k",7,1),("k",8,1),("k",9,1)]
    o += [("q",ks,t) for t in range(2) for ks in range(5, 10)]
    for ks in (7, 9, 6, 5, 8): o += [("v",ks,0),("v",ks,1)]
    return o
P1 = p1_order()
import os
G2LAST = int(os.environ.get("G2LAST", "0"))
P4 = [("o", x, t) for x in ((0, 1, 2, 3, 4) if G2LAST else (4, 0, 1, 2, 3)) for t in range(2)]
WL = [P4[i] for i in (2, 3, 8, 9, 0)]
PLS = (0, 5, 12, 17, 22, 27, 32, 37, 42, 47)
PL = [P1[i] for i in PLS]
LDS_PAIRS = [WL[0][:2], WL[2][:2], ("k", 0), ("k", 2)]
LORDER = WL[:4] + PL[:4] + [WL[4]] + PL[4:]
LAND = {t: B7 for t in PL}
LAND.update({WL[0]: B1, WL[1]: B7, WL[2]: B6, WL[3]: B0, WL[4]: B0})
SRC = {}
for i, t in enumerate(LORDER): SRC[t] = ("lds", i)
_n = 0
for m in "qkvo":
    for ks in range(5 if m == "o" else 10):
        for t in range(2):
            if (m, ks, t) not in SRC:
                SRC[(m, ks, t)] = ("reg", STATIC0 + 8 * _n); _n += 1
assert STATIC0 + 8 * _n == 512, _n
def breg(tile): return ur(SRC[tile][1] if SRC[tile][0] == "reg" else LAND[tile], 8)

def prologue(A, M, O):
    u = M.sfx
    GQ, GO, TQ, TO, TA, W16, LN, T = range(8)
    arrive(A, M, "r" + u, 16)
    srd(A, 8, P_WQ); srd(A, 12, P_WK); srd(A, 16, P_WV); srd(A, 20, P_WO)
    lane(A, LN)
    A(f"""s_lshl_b32 s32, {WAVE}, 6
s_lshl_b32 s3, {IDX}, 8
s_add_u32 s3, s3, s32
s_mul_i32 s33, {TEAM}, {320 * 8192}
s_sub_u32 s34, {320 * 8192}, s33
s_lshl_b32 s35, {WAVE}, 10
v_lshrrev_b32 v{T}, 2, v{LN}
v_and_b32 v{TA}, 3, v{LN}
v_lshlrev_b32 v{GQ}, 13, v{T}
v_lshl_add_u32 v{GQ}, v{TA}, 4, v{GQ}
v_add_u32 v{GQ}, s3, v{GQ}
s_mul_i32 s3, {IDX}, 163840
s_mul_i32 s30, {TEAM}, 640
s_add_u32 s3, s3, s30
v_mul_u32_u24 v{GO}, 1280, v{T}
v_lshl_add_u32 v{GO}, v{TA}, 4, v{GO}
v_add_u32 v{GO}, s3, v{GO}
s_and_b32 s37, s32, 64
s_lshr_b32 s30, {WAVE}, 1
s_mul_i32 s30, s30, {64 * 1280}
s_add_u32 s37, s37, s30
s_add_u32 s37, s37, 512""")
    pairs = [(m, ks) for m in O.get("worder", "kqvo") for ks in range(5 if m == "o" else 10) if (m, ks) not in LDS_PAIRS]
    if O.get("wmix", 1): pairs.sort(key=lambda p: (dict(k=0, v=0, q=1, o=2)[p[0]], p[1]))
    pairs = pairs[:-3] + LDS_PAIRS + pairs[-3:]
    NA = 7
    assert len(pairs) % NA == 0
    def dma(n):
        m, ks = pairs[n]
        for i in range(4):
            if m != "o": so = f"s_add_u32 s36, s{33 if ks < 5 else 34}, {(64 * (ks % 5) + 16 * i) * 8192}"
            elif ks < 4: so = f"s_add_u32 s36, s32, {(64 * (ks & 1) + 16 * i) * 1280 + (ks >> 1) * 256}"
            else: so = f"s_add_u32 s36, s37, {16 * i * 1280}"
            A(f"s_add_u32 m0, s35, {TILES + (n % NA) * 16384 + i * 4096}\n{so}")
            A(f"buffer_load_dwordx4 v{GO if m == 'o' else GQ}, {dict(q=SA, k=SB, v=SC, o=SD)[m]}, s36 offen{O.get('wnt', '')} lds", tag=f"p{n}")
    DEP = O.get("wdep", 4)
    MT = SRC[("q", 9, 1)][1]; assert MT < 250 and pairs.index(("q", 9)) > 2 * DEP + 2
    for n in range(DEP):
        dma(n); A("s_barrier")
    A(f"""v_bfe_u32 v8, v{LN}, 5, 1
v_bfe_u32 v9, v{LN}, 4, 1
v_bfe_u32 v10, v{LN}, 3, 1
v_bfe_u32 v11, v{LN}, 2, 1
s_min_u32 s41, {WAVE}, 1
s_lshr_b32 s38, {IDX}, s41
s_lshl_b32 s3, {WAVE}, 5
s_add_u32 s38, s38, s3
s_and_b32 s42, {IDX}, s41
s_mul_i32 s30, {TEAM}, {lay.R_RSS}
s_add_u32 s30, s30, {lay.R_RS}
s_lshl_b32 s{S_GAT}, s38, 12
s_add_u32 s{S_GAT}, s{S_GAT}, s30
s_lshl_b32 s3, s42, 6
s_add_u32 s{S_GAT}, s{S_GAT}, s3
s_add_u32 s{S_GAT2}, s{S_GAT}, 32768
s_lshr_b32 s39, s38, 2
s_lshl_b32 s{S_OUTO}, s39, 9
s_and_b32 s40, s38, 3
s_lshl_b32 s3, s40, 6
s_add_u32 s{S_OUTO}, s{S_OUTO}, s3
s_lshl_b32 s3, {WAVE}, 14
s_lshl_b32 s{S_FR}, {IDX}, 7
s_add_u32 s{S_RS}, s3, s{S_FR}
s_add_u32 s{S_RS}, s{S_RS}, s30
s_add_u32 s{S_RS+1}, s{S_RS}, 65536
s_add_u32 s{S_RS+2}, s{S_RS}, 131072
s_add_u32 s{S_FKV}, s{S_FR}, {lay.FLG_KV}
s_lshl_b32 s3, {TEAM}, 2
s_add_u32 s{S_FR}, s{S_FR}, s3
s_add_u32 s{S_FR}, s{S_FR}, {lay.FLG_R}
s_lshl_b32 s{S_AGL}, {TEAM}, 15
s_add_u32 s{S_AGL}, s{S_AGL}, {lay.R_AG}
s_mul_i32 s{S_EXO}, {TEAM}, {4 * EXS}
s_sub_u32 s{S_EXR}, {lay.R_EX + 4 * EXS}, s{S_EXO}
s_add_u32 s{S_EXO}, s{S_EXO}, {lay.R_EX}
v_lshrrev_b32 v12, 4, v{LN}
v_and_b32 v13, 15, v{LN}
v_lshlrev_b32 v14, 12, v12
v_lshl_add_u32 v14, v13, 3, v14
v_mov_b32 v16, 1
v_mov_b32 v17, 1
v_mov_b32 v18, 0""")
    for j in range(3): A(f"buffer_store_dwordx2 v[16:17], v14, {WS}, s{S_RS+j} offen{M.st}")
    A(f"""s_mov_b32 s96, s{KA+2*P_MEM0}
s_mov_b32 s97, s{KA+2*P_MEM0+1}
s_mov_b32 s98, 10240
s_mov_b32 s99, 0x20000
s_mul_i32 s40, s40, 2560
s_lshl_b32 s39, s39, 6
s_add_u32 s39, s39, s40
s_mul_i32 s3, {TEAM}, 640
s_add_u32 s101, s39, s3
v_and_b32 v15, 1, v{LN}
v_bfe_u32 v20, v{LN}, 1, 1
v_lshlrev_b32 v23, 8, v20
v_lshl_add_u32 v23, v11, 5, v23
v_lshl_add_u32 v23, v15, 4, v23
s_xor_b32 s3, s41, 1
v_and_b32 v25, s3, v12
v_add_u32 v25, s42, v25
v_lshl_add_u32 v25, v25, 1, v8
v_lshl_add_u32 v23, v25, 2, v23
v_add_u32 v23, s{S_OUTO}, v23
v_mov_b32 v24, -1
v_mul_u32_u24 v19, 1280, v15
v_lshl_add_u32 v19, v20, 5, v19
v_lshl_add_u32 v19, v25, 3, v19
v_lshl_add_u32 v19, v11, 1, v19
buffer_load_ushort v{MT}, v19, s[96:99], s101 offen
buffer_load_ushort v{MT+1}, v19, s[96:99], s101 offen offset:4
v_mov_b32 v26, {OOB}
s_cmp_lt_u32 s38, 40
s_cselect_b64 vcc, -1, 0
v_cndmask_b32 v{MT+2}, v26, v23, vcc
s_cbranch_scc0 L_rinit{u}""")
    def slot(sl, r, tag=None):
        A(f"s_add_u32 s3, s{S_AGL}, {sl * AGS}\nbuffer_store_dword v{r}, v{MT+2}, {WS}, s3 offen{M.st}")
        for cl in range(4): A(f"s_add_u32 s3, s{S_EXO}, {sl * EXS + cl * 8192}\nbuffer_store_dword v{r}, v{MT+2}, {WS}, s3 offen sc1", tag=tag)
    st0 = A.snap()
    for sl in range(1, 4): slot(sl, 24)
    A.label(f"L_rinit{u}"); A.join(st0)
    A(f"""v_lshlrev_b32 v19, 13, v{LN}
v_mov_b32 v20, {OOB}
s_cmp_eq_u32 {WAVE}, 3
s_cselect_b32 s3, 4, 0
v_cmp_gt_u32 vcc, s3, v{LN}
v_cndmask_b32 v19, v20, v19, vcc""")
    A(f"buffer_store_dword v18, v19, {WS}, s{S_FR} offen sc1")
    A(f"""v_and_b32 v19, 7, v{LN}
v_lshlrev_b32 v19, 7, v19
s_lshl_b32 s3, {TEAM}, 10
s_lshl_b32 s30, {IDX}, 2
s_add_u32 s3, s3, s30
s_add_u32 s3, s3, {lay.R_MK}""")
    A(f"buffer_store_dword v18, v19, {WS}, s3 offen{M.st}")
    A(f"""v_lshlrev_b32 v{W16}, 4, v{LN}
v_add_u32 v{W16}, s35, v{W16}
v_lshlrev_b32 v{TA}, 3, v{TA}
v_add_u32 v{TA}, s35, v{TA}
v_lshl_add_u32 v{TQ}, v8, 12, v{TA}
v_lshl_add_u32 v{TQ}, v9, 9, v{TQ}
v_lshl_add_u32 v{TQ}, v11, 7, v{TQ}
v_lshl_add_u32 v{TQ}, v10, 6, v{TQ}
v_lshl_add_u32 v{TO}, v9, 12, v{TA}
v_lshl_add_u32 v{TO}, v10, 5, v{TO}
v_lshl_add_u32 v{TO}, v8, 8, v{TO}
v_lshl_add_u32 v{TO}, v11, 6, v{TO}""")
    def probe(tag):
        A(f"""s_mov_b32 m0, s35
v_lshlrev_b32 v{T}, 2, v{LN}
global_load_lds_dword v{T}, {DBG} sc1""", tag=tag)
    def kvwait(need, t):
        A(f"""v_and_b32 v{t}, 7, v{LN if need == 1 else 8}
v_lshlrev_b32 v{t}, 2, v{t}
L_rkv{need}{u}:
buffer_load_dword v{t+1}, v{t}, {WS}, s{S_FKV} offen sc1""")
        tmo(A, M.fail)
        A(f"""v_cmp_gt_u32 vcc, {need}, v{t+1}
s_cbranch_vccz L_rkvok{need}{u}
s_sleep 2
s_branch L_rkv{need}{u}
L_rkvok{need}{u}:""")
    def startup():
        A.wait_vm("pr")
        st = A.snap()
        A(f"s_branch L_rce{u}\nL_rca{u}:\ns_sleep 8")
        tmo(A, M.fail); probe(None); A.force_wait()
        A.label(f"L_rce{u}"); A.restore(st)
        A(f"v_lshlrev_b32 v{T}, 2, v{LN}\nv_add_u32 v{T}, s35, v{T}\nds_read_b32 v{T}, v{T}")
        census_eval(A, M, T, f"L_rca{u}", O.get("cls"))
        A(f"""s_add_u32 s{S_EXO}, s{S_EXO}, s30
s_add_u32 s{S_EXR}, s{S_EXR}, s30
s_add_u32 s{S_FR}, s{S_FR}, s30
s_mul_i32 s{S_KV}, {IDX}, {lay.QKV_H}
s_add_u32 s{S_KV}, s{S_KV}, {lay.QKV}
s_mul_i32 s{S_PUB}, {IDX}, {lay.KM_H}
s_add_u32 s{S_PUB}, s{S_PUB}, {lay.KMVM}""")
        near(A, O, S_KV); near(A, O, S_PUB)
        A(f"""s_lshl_b32 s30, {WAVE}, 11
s_add_u32 s{S_KV}, s{S_KV}, s30
s_add_u32 s{S_V}, s{S_KV}, 16384
s_add_u32 s{S_KM0}, s30, {KB + 8192}
s_add_u32 m0, s35, 256
v_and_b32 v{T}, 7, v{LN}
v_lshlrev_b32 v{T}, 2, v{T}""")
        A(f"buffer_load_dword v{T}, {WS}, s{S_FKV} offen sc1 lds", tag="pk")
    def firstkv():
        A.wait_vm("pk")
        A(f"v_lshlrev_b32 v{T}, 2, v{LN}\nv_add_u32 v{T}, s35, v{T}\nds_read_b32 v{T}, v{T} offset:256\nv_cmp_gt_u32 s[84:85], 2, v{T}\nv_cmp_gt_u32 vcc, 1, v{T}\ns_cbranch_vccz L_rk1{u}")
        st = A.snap()
        kvwait(1, B0)
        A.label(f"L_rk1{u}"); A.join(st)
        A(f"""s_lshl_b32 s30, {WAVE}, 11
s_add_u32 m0, s30, {KB}
v_lshlrev_b32 v{T}, 4, v{LN}
buffer_load_dwordx4 v{T}, {WS}, s{S_KV} offen sc1 lds
buffer_load_dwordx4 v{T}, {WS}, s{S_KV} offen offset:1024 sc1 lds
s_add_u32 m0, s30, {VB}
s_add_u32 s{S_KV}, s{S_KV}, {lay.QKV_S}
buffer_load_dwordx4 v{T}, {WS}, s{S_V} offen sc1 lds
buffer_load_dwordx4 v{T}, {WS}, s{S_V} offen offset:1024 sc1 lds
s_add_u32 s{S_V}, s{S_V}, {lay.QKV_S}""")
    held = {}
    for n, (m, ks) in enumerate(pairs):
        A.wait_vm(f"p{n}")
        A(f"v_add_u32 v{TA}, {TILES + (n % NA) * 16384}, v{TO if m == 'o' else TQ}")
        dst = []
        for t in range(2):
            kind, w = SRC[(m, ks, t)]
            if kind == "reg": d = w
            elif 8 <= w < 14: d = B2 + 8 * (w - 8); held[w] = d
            else: d = B0 + 8 * t
            dst.append(d)
            for qd in range(4):
                off = (qd >> 1) * 512 + (qd & 1) * 128 + 8192 * t if m == "o" else (qd >> 1) * 8192 + (qd & 1) * 256 + 32 * t
                A(f"ds_read_b64_tr_b16 {ur(d + 2 * qd, 2)}, v{TA} offset:{off}")
        A.wait_lg()
        if O.get("wbar", 1) and n + DEP < len(pairs): A("s_barrier")
        if n + DEP < len(pairs): dma(n + DEP)
        if n + DEP == len(pairs) - 6 and O.get("lpf", 0):
            A(f"""s_getpc_b64 s[30:31]
L_rpc{u}:
s_lshl_b32 s3, {WAVE}, 13
v_lshl_add_u32 v{T}, v{LN}, 7, s3
v_min_u32 v{T}, L_role_p{u}-L_rpc{u}-4, v{T}
s_add_u32 m0, s35, 512
global_load_lds_dword v{T}, s[30:31]""")
        for t in range(2):
            kind, w = SRC[(m, ks, t)]
            if kind == "lds" and w not in held:
                A(f"v_add_u32 v{T}, {TILES + w * 8192}, v{W16}")
                for hf in range(2): A(f"ds_write_b128 v{T}, {v(dst[t] + 4 * hf, 4)} offset:{4096 * hf}")
        if n == DEP:
            A(f"v_lshl_or_b32 v{MT}, v{MT+1}, 16, v{MT}\nv_min_u32 v{MT}, -2, v{MT}"); slot(0, MT, "init")
        if n == 2 * DEP + 1: rings_ready(A, M, "r" + u, MT, "init")
        k0 = len(pairs) - O.get("kvat", 2)
        if n == k0 - 2 * DEP - 2: probe("pr")
        if n == k0 - DEP - 1: startup()
        if n == k0: firstkv()
    for w, d in held.items():
        A(f"v_add_u32 v{T}, {TILES + w * 8192}, v{W16}")
        for hf in range(2): A(f"ds_write_b128 v{T}, {v(d + 4 * hf, 4)} offset:{4096 * hf}")
    A.wait_lg()
    ev(A, O, 2, 8)
    A(f"""v_mov_b32 v8, v{LN}
v_lshrrev_b32 v9, 4, v8
v_and_b32 v10, 15, v8
v_lshlrev_b32 v{L16}, 4, v8
v_add_u32 v{LB2}, 0x10000, v{L16}
v_lshrrev_b32 v11, 5, v8
v_lshlrev_b32 v11, 6, v11
v_lshlrev_b32 v12, 3, v10
v_xor_b32 v11, v11, v12
v_lshl_add_u32 v{XW}, v9, 7, v11
v_lshrrev_b32 v11, 2, v8
v_lshlrev_b32 v11, 3, v11
v_bfe_u32 v13, v8, 1, 1
v_lshlrev_b32 v14, 6, v13
v_xor_b32 v11, v11, v14
v_and_b32 v14, 3, v8
v_lshl_add_u32 v{XR}, v14, 7, v11
v_lshl_add_u32 v{RSA}, v9, 12, v12
v_lshrrev_b32 v{GA}, 2, v8
v_lshlrev_b32 v{GA}, 7, v{GA}
v_lshl_add_u32 v{GA}, v14, 4, v{GA}
v_and_b32 v15, 1, v8
v_mul_u32_u24 v{IDXR}, 0xaaaa, v13
v_add_u32 v{IDXR}, 0x4444, v{IDXR}
v_bfe_u32 v11, v8, 2, 1
v_lshlrev_b32 v{SP}, 8, v13
v_lshl_add_u32 v{SP}, v11, 5, v{SP}
v_lshl_add_u32 v{SP}, v15, 4, v{SP}
s_xor_b32 s3, s41, 1
v_and_b32 v25, s3, v9
v_add_u32 v25, s42, v25
v_lshrrev_b32 v26, 5, v8
v_lshl_add_u32 v25, v25, 1, v26
v_lshl_add_u32 v{SP}, v25, 2, v{SP}
v_add_u32 v{SP}, s{S_OUTO}, v{SP}
""")
    for j in range(4):
        mk = sum(3 << (8 * b + 2 * j) for b in range(4))
        A(f"s_mov_b32 s{S_SEL+2*j}, {mk}\ns_mov_b32 s{S_SEL+2*j+1}, {mk}")
    A(f"""s_mov_b32 s{S_CS}, {f32bits(lay.C_SCALE)}
s_mov_b32 s{S_ONE}, 0x3f80
s_mov_b32 s74, 0x3f803f80
s_mov_b32 s75, 0x3f803f80
s_mov_b32 s{S_RNG}, {120 << 23}
s_mov_b32 s{S_STEP}, 0
s_mov_b32 s{S_PH}, 0
s_mov_b32 s{S_PHM}, 0
s_mov_b32 s{S_SLOT}, 0
s_mov_b32 s{S_DONE}, 0
s_sub_u32 s{S_PUB}, s{S_PUB}, {lay.KM_S}
s_add_u32 s{S_PUB2}, s{S_PUB}, 4096
s_cmp_eq_u32 {TEAM}, 0
s_cselect_b32 s30, 0, 0x40000000
s_cselect_b32 s31, 0x40000000, 0
s_add_u32 s{S_PUB}, s{S_PUB}, s30
s_add_u32 s{S_PUB2}, s{S_PUB2}, s31
""")
    A(f"""s_lshl_b32 s3, {WAVE}, 10
s_add_u32 s{S_AGA}, s{S_AGL}, s3
s_add_u32 s{S_RMB}, s{S_EXR}, s3
s_lshr_b32 s3, s3, 2
s_add_u32 s3, s3, 4096
s_add_u32 s{S_AG4}, s{S_AGL}, s3
s_add_u32 s{S_RM9}, s{S_EXR}, s3
s_and_b32 s3, {IDX}, 7
s_lshl_b32 s3, s3, 7
s_lshl_b32 s30, {IDX}, 2
s_cmp_eq_u32 {WAVE}, 2
s_cselect_b32 s3, s30, s3
s_lshl_b32 s{S_MK}, {TEAM}, 10
s_add_u32 s{S_MK}, s{S_MK}, s3
s_add_u32 s{S_MK}, s{S_MK}, {lay.R_MK}
s_mov_b32 s{S_OUTO}, s{S_MK}
s_mov_b32 s{S_MK2}, 0x40000000
s_mov_b32 s12, {lay.QKV_S}
s_cmp_eq_u32 {WAVE}, 0
s_cselect_b32 s{S_XM}, s{S_EXO}, s{S_EXR}
s_add_u32 s{S_XM}, s{S_XM}, 5376
s_cmp_eq_u32 {IDX}, 31
s_cselect_b32 s{S_XM}, s{S_XM}, 0x40000000""")
    A(f"s_cmp_eq_u64 s[84:85], 0\ns_cbranch_scc1 L_rk2{u}")
    kvwait(2, B1)
    A.label(f"L_rk2{u}")
    ev(A, O, 3, 8)
    A.force_wait()

def lds_tile(A, W, tile, hi=False, halves=(0, 1)):
    w = SRC[tile][1]; d = LAND[tile]
    for hf in halves:
        o = TILES + w * 8192 + hf * 4096 + W * 1024
        base = L16 if o < 65536 else LB2
        assert o < 65536 or (o >> 16) == (2 if hi else 1), (tile, o, hi)
        A(f"ds_read_b128 {v(d + 4 * hf, 4)}, v{base} offset:{o & 0xffff}")
def zero(A, r, n):
    for i in range(0, n, 2): A(f"v_mov_b64 {v(r + i, 2)}, 0")
def delay(A, cyc):
    d = cyc // 4
    while d > 0: A(f"s_nop {min(d, 16) - 1}"); d -= 16

class Stamps:
    def __init__(self, names): self.names = names or []
    def __call__(self, A, name):
        if name in self.names:
            i = self.names.index(name); A.raw(f"s_memtime s[{S_T + 2 * i}:{S_T + 2 * i + 1}]")

def step(A, M, W, red, O):
    u = f"{W}{red}{M.sfx}"
    stamp = Stamps(O.get("stamp"))
    NST = 6
    side = []
    L4 = GA
    mk4 = lambda t=L4: f"v_lshrrev_b32 v{t}, 2, v{L16}"
    ld = lambda r, so, t=L4: f"buffer_load_dwordx4 {v(r, 4)}, v{L16}, {WS}, s{so} offen sc1\nbuffer_load_dword v{r + 4}, v{t}, {WS}, s{so + 1} offen sc1"
    wr = lambda r, base, t=L4: [f"ds_write_b128 v{L16}, {v(r, 4)} offset:{base + W * 1024}", f"ds_write_b32 v{t}, v{r + 4} offset:{base + 4096 + W * 256}"]
    chk = lambda r, t: [f"v_max3_u32 v{t}, v{r}, v{r+1}, v{r+2}", f"v_max3_u32 v{t}, v{t}, v{r+3}, v{r+4}", f"v_cmp_eq_u32 vcc, -1, v{t}"]
    def gather(A, regs):
        for i in range(4):
            so, off = (S_GAT, 1024 * i) if red == 1 else (S_GAT2 if i >> 1 else S_GAT, 2048 * (i & 1))
            A(f"buffer_load_dwordx4 {v(regs[i], 4)}, v{L16 if red == 1 else GA}, {WS}, s{so} offen offset:{off} sc1")
    def frag(A, j, r): A(f"ds_read_b128 {v(r, 4)}, v{L16} offset:{MEM + j * 1024}")
    def xread(A, ks):
        for hf in range(2): A(f"ds_read_b64_tr_b16 {v(B0 + 4 * ks + 2 * hf, 2)}, v{XR} offset:{XB + (4 * hf + ks) * 512}")
    KR = GA
    def kfrag(A, xt, ks, r): A(f"ds_read_b128 {v(r, 4)}, v{KR} offset:{(xt * 4 + ks) * 1024}")
    def prep(A):
        for hf in range(2): A(f"ds_read_b128 {v(B6 + 4 * hf, 4)}, v{L16} offset:{VB + (2 * W + hf) * 1024}")
        lds_tile(A, W, PL[0])
        zero(A, B0, 24)
    cv = lambda d, r: f"v_cvt_pk_bf16_f32 v{d}, v{r}, v{r + 1}"
    mf = lambda d, x, y, first: f"v_mfma_f32_16x16x32_bf16 {v(d, 4)}, {v(x, 4)}, {v(y, 4)}, {'0' if first else v(d, 4)}"
    m16 = lambda d, x, y, first: f"v_mfma_f32_16x16x16_bf16 {v(d, 4)}, {v(x, 2)}, {v(y, 2)}, {'0' if first else v(d, 4)}"
    ex = lambda r: f"v_exp_f32 v{r}, v{r}"
    Sm, S0, S1, PX, LL, O0, O1, OP = c1, c0, a0, a1, c1, b1, b0, c0
    def owrite(A, tag=None):
        A(f"""v_rcp_f32 v{LL}, v{LL}
v_rcp_f32 v{LL+1}, v{LL+1}
v_subrev_u32 v{LL+2}, {67 << 23}, v{LL}
v_mul_f32 v{O0}, v{O0}, v{LL}
v_mul_f32 v{O0+1}, v{O0+1}, v{LL+1}""")
        A(cv(OP, O0)); A(cv(OP + 1, O0))
        A(f"ds_write_b64 v{XW}, {v(OP, 2)} offset:{OB + W * 512}")
        A(f"v_pk_mul_f32 {v(O1, 2)}, {v(O1, 2)}, {v(LL, 2)}")
        A(cv(OP + 2, O1)); A(cv(OP + 3, O1))
        A(f"ds_write_b64 v{XW}, {v(OP + 2, 2)} offset:{OB + (4 + W) * 512}", tag=tag)
    def truemax(A):
        t, t2 = Sm, Sm + 1
        A(f"""v_max3_f32 v{t}, v{Sm+2}, v{Sm+3}, v{S0}
v_max3_f32 v{t}, v{t}, v{S0+1}, v{S0+2}
v_max3_f32 v{t}, v{t}, v{S0+3}, v{S1}
v_max3_f32 v{t}, v{t}, v{S1+1}, v{S1+2}
v_max_f32 v{t}, v{t}, v{S1+3}
v_mov_b32 v{t2}, v{t}
v_permlane32_swap_b32 v{t}, v{t2}
v_max_f32 v{t}, v{t}, v{t2}
v_mov_b32 v{t2}, v{t}
v_permlane16_swap_b32 v{t}, v{t2}
v_max_f32 v{t}, v{t}, v{t2}""")
        vals = [Sm + 2, Sm + 3] + [S0 + i for i in range(4)] + [S1 + i for i in range(4)]
        for r in vals: A(f"v_sub_f32 v{r}, v{r}, v{t}")
        for r in vals: A(ex(r))
        A(cv(B2 + 4, Sm + 2)); A(cv(B2 + 7, Sm + 2))
        A(cv(PX, S0)); A(cv(PX + 1, S0 + 2)); A(cv(PX + 2, S1)); A(cv(PX + 3, S1 + 2))
        A(m16(LL, B2 + 4, B2 + 2, True)); A(m16(O0, B2 + 4, B2, True)); A(m16(O1, B2 + 6, B2, True))
        A(m16(LL, PX, B2 + 2, False)); A(m16(LL, PX + 2, B2 + 2, False))
        A(mf(O0, PX, B6, False)); A(mf(O1, PX, B6 + 4, False))
    mkprep = {2: [f"v_and_b32 v{GA}, 0x70, v{L16}", f"v_lshlrev_b32 v{GA}, 3, v{GA}", f"v_mov_b32 v{SP}, s{S_STEP}"],
              0: [f"v_bfe_u32 v{GA}, v{L16}, 2, 7"]}.get(W, []) if O.get("mk", 1) else []
    SEL, RA, T1 = B2, B2 + 4, B3
    g2 = O.get("g2", [60, None])[red - 1]
    G1 = [B0, B0 + 4, B1, B1 + 4]; G2 = [B7, B7 + 4, B6, B6 + 4]
    def reduce(A, regs):
        for i, r in enumerate(regs):
            A(f"v_mfma_f32_16x16x32_bf16 {v(RA, 4)}, {v(r, 4)}, {v(SEL, 4)}, {'0' if i == 0 else v(RA, 4)}")
            A(f"v_bitop3_b32 v{T1 + min(i, 1)}, v{r}, v{r + 2}, s{S_PHM} bitop3:0x7e")
            if 0 < i < len(regs) - 1: A(f"v_or_b32 v{T1}, v{T1}, v{T1+1}")
        A(f"""v_bitop3_b32 v{T1}, v{T1}, v{T1+1}, 1 bitop3:0xa8
v_cmp_ne_u32 vcc, 0, v{T1}
s_nop 3""")
    def finish(A):
        A(f"""v_permlane32_swap_b32 v{RA}, v{RA+2}
v_permlane32_swap_b32 v{RA+1}, v{RA+3}
v_pk_add_f32 {v(RA, 2)}, {v(RA, 2)}, {v(RA + 2, 2)}""")
        if red == 2:
            A(f"""v_mov_b64 {v(RA + 2, 2)}, {v(RA, 2)}
v_permlane16_swap_b32 v{RA}, v{RA+2}
v_permlane16_swap_b32 v{RA+1}, v{RA+3}
v_pk_add_f32 {v(RA, 2)}, {v(RA, 2)}, {v(RA + 2, 2)}""")
        A(cv(RA, RA))
        A(f"v_min_u32 v{RA}, -2, v{RA}")
    gexit = []
    if red:
        keep = (list(A.out), A.snap(), A.n_nop, A.n_ins)
        for regs in (G1, G2):
            A.force_wait(); gather(A, regs); A("s_nop 7"); gexit.append(A.snap())
        A.out[:] = keep[0]; A.restore(keep[1]); A.n_nop, A.n_ins = keep[2:]
    if O.get("stamp"):
        for i in range(NST): stamp(A, O["stamp"][i])
        for i in range(88, 100): A(f"s_mov_b32 s{i}, 0")
    sets = [c0, c1, b1, b0][:O.get("ns", 4)]
    lda = lambda r: f"buffer_load_dwordx4 {v(r, 4)}, v{L16}, {WS}, s{S_AGA} offen sc1"
    ldq = f"buffer_load_dword v{b1}, v{L4}, {WS}, s{S_AG4} offen sc1"
    wrq = f"ds_write_b32 v{L4}, v{b1} offset:{MEM + 4096 + W * 256}"
    dm4 = lambda so, lds: f"s_mov_b32 m0, {lds + W * 1024}\nbuffer_load_dwordx4 v{L16}, {WS}, s{so} offen sc1 lds"
    dm1 = lambda so, lds: f"s_mov_b32 m0, {lds + 4096 + W * 256}\nbuffer_load_dword v{L4}, {WS}, s{so} offen sc1 lds"
    dA, dB = O.get("dA", 0), O.get("dB", 0)
    A(mk4())
    def acheck(A, r):
        A(f"ds_write_b128 v{L16}, {v(r, 4)} offset:{MEM + W * 1024}", tag="aw")
        A(f"v_max3_u32 v{a0}, v{r}, v{r+1}, v{r+2}\nv_max_u32 v{a0}, v{a0}, v{r+3}\nv_cmp_eq_u32 vcc, -1, v{a0}")
    aexit = []
    keep = (list(A.out), A.snap(), A.n_nop, A.n_ins)
    for r in sets:
        A.force_wait(); A(lda(r)); A(f"ds_write_b128 v{L16}, {v(a0, 4)}", tag="aw"); A("s_nop 7"); aexit.append(A.snap())
    A.out[:] = keep[0]; A.restore(keep[1]); A.n_nop, A.n_ins = keep[2:]
    if not red: prep(A)
    if W == 2: A(f"v_mov_b32 v{SP}, 0")
    A(f"s_mov_b32 s{S_EXW}, 0x40000000")
    A.skip = O.get("skip")

    def body(A):
        side.clear()
        A.raw(".p2align 6")
        for _ in range(O.get("shift", 0)): A.raw("s_nop 0")
        A.label(f"L_step{u}")
        for i, r in enumerate(sets):
            A(lda(r))
            if dA and i == 0:
                delay(A, O.get("dgap", 12)); A(dm4(S_AGA, MEM), tag="ad")
            if red and i == O.get("exat", -1):
                delay(A, 16); A(f"buffer_store_dword v{RA}, v{SP}, {WS}, s{S_EXW} offen sc1")
            if red and i == len(sets) - 2: prep(A); delay(A, O.get("gap", 68) - 64)
            elif i < len(sets) - 1: delay(A, O.get("gap", 68))
        if dA:
            r = sets[0]
            A(f"v_max3_u32 v{a0}, v{r}, v{r+1}, v{r+2}\nv_max_u32 v{a0}, v{a0}, v{r+3}\nv_cmp_eq_u32 vcc, -1, v{a0}")
            A.wait_vm("ad")
        else: acheck(A, sets[0])
        A(f"s_cbranch_vccnz L_aretry{u}"); side.append(("a", A.snap()))
        A.label(f"L_aback{u}")
        A.join(*aexit)
        if not dA: A(ldq)
        rb = O.get("rb", -1)
        if rb == -2: A(ld(c0, S_RMB))
        A.wait_lg("aw")
        stamp(A, "A"); A("s_barrier"); stamp(A, "A2")
        frag(A, 0, a0)
        if dA: A(ldq)
        if dB == 1: A(dm1(S_AG4, MEM), tag="qd")
        if rb == -1: A(ld(c0, S_AGA if O.get("fakerem") else S_RMB))
        frag(A, 1, a1)
        order = P1
        fb = {0: a0, 1: a1, 2: b0, 3: a0, 4: a1, 5: b0, 6: b1, 7: a0, 8: c0, 9: a1}
        N = {i: [] for i in range(90)}; V = {i: [] for i in range(90)}
        L = lambda t, hi=False: (lambda: lds_tile(A, W, t, hi))
        if rb >= 0: N[rb] += [ld(c0, S_RMB)]
        for i in range(1, 10): N[PLS[i - 1]] += [L(PL[i], i >= 6)]
        V[24] += [f"v_add_u32 v{LB2}, 0x10000, v{LB2}"]; V[52] += [f"v_add_u32 v{LB2}, 0x10000, v{L16}"]
        N[7] += [lambda: frag(A, 2, b0)]
        N[9] += [lambda: frag(A, 3, a0)]
        N[18] += [lambda: frag(A, 4, a1)]
        def branch(kind):
            def f():
                A(f"s_cbranch_vccnz L_{kind}retry{u}"); side.append((kind, A.snap())); A.label(f"L_{kind}back{u}")
            return f
        fp = O.get("fp", 13 if dA else 10)
        if dB: N[O.get("db", 2)] += [dm4(S_RMB, MEM + 5120)]; N[O.get("db", 2) + 1] += [lambda: A(dm1(S_RM9, MEM + 5120), tag="bd")]
        if dB == 1:
            V[fp] += [f"v_cmp_eq_u32 vcc, -1, v{b1}"]
            N[fp + 2] += [branch("f"), lambda: A.wait_vm("qd"), "s_barrier"]
        else:
            N[fp] += [lambda: A(wrq, tag="qw")]; V[fp] += [f"v_cmp_eq_u32 vcc, -1, v{b1}"]
            N[fp + 2] += [branch("f")]; N[min(fp + 5, 16)] += [lambda: A.wait_lg("qw"), "s_barrier"]
        bp = O.get("bpos", 20)
        w_, c_ = wr(c0, MEM + 5120), chk(c0, c1 + 1)
        if dB:
            bq = O.get("bq", 23)
            V[bq] += c_
            N[25] += [branch("b"), lambda: A.wait_vm("bd"), "s_barrier", lambda: frag(A, 5, b0)]
        else:
            N[bp] += [w_[0]]; V[bp] += [c_[0]]
            N[bp + 1] += [lambda: A(w_[1], tag="bw")]; V[bp + 1] += [c_[1]]; V[bp + 2] += [c_[2]]
            N[bp + 4] += [branch("b")]
            N[bp + 5] += [lambda: A.wait_lg("bw"), "s_barrier", lambda: frag(A, 5, b0)]
        N[bp + 6] += [lambda: frag(A, 6, b1)]
        N[28] += [lambda: frag(A, 7, a0)]
        N[29] += [lambda: frag(A, 8, c0)]
        N[30] += [lambda: frag(A, 9, a1)]
        N[21] += [f"s_mov_b32 m0, s{S_KM0}", f"s_xor_b32 s{S_KM0}, s{S_KM0}, 8192"]
        kv = [f"buffer_load_dwordx4 v{L16}, {WS}, s{S_KV} offen sc1 lds",
              f"buffer_load_dwordx4 v{L16}, {WS}, s{S_KV} offen offset:1024 sc1 lds\ns_mov_b32 m0, {VB + W * 2048}",
              f"buffer_load_dwordx4 v{L16}, {WS}, s{S_V} offen sc1 lds", f"buffer_load_dwordx4 v{L16}, {WS}, s{S_V} offen offset:1024 sc1 lds"]
        for x, i in zip(kv, O.get("kvs", (bp + 6, 28, 31, 33))): N[i] += [lambda x=x: A(x, tag="kv")]
        if red and O.get("cs", 38) >= 0:
            V[31] += [f"v_mov_b32 v{c1 + 2}, -1"]
            N[O.get("cs", 38)] += [f"buffer_store_dword v{c1 + 2}, v{SP}, {WS}, s{S_EXZ} offen sc1"]
        if W == 2 and O.get("fs", 11) >= 0:
            N[O.get("fs", 11)] += [f"buffer_store_dword v{SP}, off, {WS}, s{S_FR} sc1"]
        if W == 3:
            V[18] += [f"v_bfe_u32 v{SP}, v{L16}, 2, 5"]
            N[38] += [f"buffer_load_dword v{SP}, v{SP}, {WS}, s{S_FKV} offen sc1"]
        N[1] += [f"s_mul_i32 s3, s{S_SLOT}, {AGS}\ns_add_u32 s{S_AGZ}, s{S_AGL}, s3\ns_add_u32 s{S_SLOT}, s{S_SLOT}, 1"]
        N[6] += [f"s_and_b32 s{S_SLOT}, s{S_SLOT}, 3\ns_xor_b32 s30, s{S_SLOT}, 2\ns_lshl_b32 s30, s30, 15"]
        N[8] += [f"s_mul_i32 s3, s{S_SLOT}, {AGS}\ns_add_u32 s{S_AGW}, s{S_AGL}, s3\ns_lshl_b32 s31, s{S_SLOT}, 15"]
        N[14] += [f"s_add_u32 s{S_EXW}, s{S_EXO}, s31\ns_add_u32 s31, s31, s{S_EXR}\ns_add_u32 s{S_AGA}, s{S_AGW}, {W * 1024}"]
        N[19] += [f"s_add_u32 s{S_AG4}, s{S_AGW}, {4096 + W * 256}"]
        N[20] += [f"s_add_u32 s{S_NEED}, s{S_STEP}, 3\ns_min_u32 s{S_NEED}, s{S_NEED}, 64"]
        N[36] += [f"s_add_u32 s{S_RMB}, s31, {W * 1024}\ns_add_u32 s{S_RM9}, s31, {4096 + W * 256}"]
        N[34] += [f"s_cmp_eq_u32 s{S_STEP}, 62\ns_cselect_b32 s11, 0x40000000, s12"]
        N[39] += [f"s_add_u32 s{S_KV}, s{S_KV}, s11\ns_add_u32 s{S_V}, s{S_V}, s11"]
        N[43] += [f"s_add_u32 s{S_PUB}, s{S_PUB}, {lay.KM_S}\ns_add_u32 s{S_PUB2}, s{S_PUB2}, {lay.KM_S}"]
        N[9] += [f"s_add_u32 s{S_EXZ}, s{S_EXO}, s30"]; N[44] += ["s_nop 1"]; N[38] += [f"s_sub_u32 s3, s{S_KM0}, {W * 2048}"]
        N[45] += ["s_nop 1"]; N[49] += ["s_nop 1"]; N[50] += ["s_nop 0"]
        N[48] += [f"s_cmp_eq_u32 s{S_STEP}, 63"]
        k0, k1 = ACC["k"]; q0, q1 = ACC["q"]; v0_, v1_ = ACC["v"]
        ad = lambda r, i: f"v_add_f32 v{r + i}, v{r + i}, v{r + i + 2}"
        mu = lambda r, i: f"v_mul_f32 v{r + i}, s{S_CS}, v{r + i}"
        pv = [ad(k0, 0), ad(k0, 1), mu(k0, 0), mu(k0, 1), ad(k1, 0), ad(k1, 1), mu(k1, 0), mu(k1, 1), ad(q0, 0), ad(q0, 1), cv(c1 + 1, k0), cv(c1 + 3, k1)]
        for i, x in enumerate(pv): V[39 + i] += [x]
        V[49] += [cv(c1, q0)]
        N[50] += [f"ds_write_b64 v{XW}, {v(c1, 2)} offset:{XB + W * 512}"]
        V[O.get("xq", 50)] += [ad(q1, 0), ad(q1, 1), cv(c1 + 2, q1), lambda: A(f"ds_write_b64 v{XW}, {v(c1 + 2, 2)} offset:{XB + (4 + W) * 512}", tag="xw")]
        V[38] += [f"v_add_u32 v{KR}, s3, v{L16}"]
        xb = O.get("xb", 54)
        N[xb] += [lambda: [A.wait_lg("xw"), stamp(A, "X"), A("s_barrier"), stamp(A, "X2"), xread(A, 0)]]
        N[xb + 1] += [lambda: [xread(A, 1)]]
        N[xb + 2] += [lambda: [xread(A, 2)]]
        N[xb + 3] += [lambda: [xread(A, 3)]]
        for (xt, ks, r), i in zip(((0, 0, d0), (0, 1, d1), (0, 2, a0), (0, 3, a1), (1, 0, b1), (1, 1, b0)), O.get("kfs", (47, 48, 52, 58, 58, 59))):
            N[i] += [lambda xt=xt, ks=ks, r=r: kfrag(A, xt, ks, r)]
        fast = O.get("fast", 1)
        V[61] += [ad(v0_, 0), ad(v0_, 1)]
        V[62] += [ad(v1_, 0), ad(v1_, 1)]
        V[63] += [cv(B2, v0_), cv(B2 + 1, v1_)]
        N[64] += [lambda: kfrag(A, 1, 2, d0)]
        V[64] += [f"v_mov_b64 {v(B2 + 2, 2)}, s[74:75]"]
        N[65] += [lambda: kfrag(A, 1, 3, d1)]
        V[65] += [f"v_mov_b32 v{B2 + 5}, 0"]
        N[60 + W] += [f"buffer_store_dwordx4 {v(B0 + 4 * W, 4)}, v{L16}, {WS}, s{S_PUB} offen offset:{W * 1024} sc1"]
        N[65] += [f"buffer_store_dwordx2 {v(B2, 2)}, v{XW}, {WS}, s{S_PUB2} offen offset:{W * 512} sc1"]
        N[66] += [lambda: [A(f"s_cbranch_scc1 L_last{u}"), side.append(("l", A.snap()))]]
        V[69] += [f"v_mov_b32 v{B2 + 6}, 0"]
        if fast:
            V[67] += [ex(Sm + 3)]; V[66] += [ex(Sm + 2)]; V[68] += [cv(B2 + 4, Sm + 2), cv(B2 + 7, Sm + 2)]
            V[70] += [ex(S0)]; V[71] += [ex(S0 + 1)]; V[72] += [ex(S0 + 2)]; V[73] += [ex(S0 + 3)]
            N[72] += [lambda: lds_tile(A, W, WL[4], False, (0,))]; N[73] += [lambda: lds_tile(A, W, WL[4], False, (1,))]
            V[74] += [ex(S1), cv(PX, S0), cv(PX + 1, S0 + 2), ex(S1 + 1), ex(S1 + 2)]
            V[75] += [ex(S1 + 3), cv(PX + 2, S1), cv(PX + 3, S1 + 2)]
            if O.get("wpre", 0): N[76] += ["s_nop 2"]; N[77] += ["s_nop 2"]
            else: N[76] += [L(WL[0])]; N[77] += [L(WL[1])]
        seq = [f"v_smfmac_f32_16x16x64_bf16 {v(ACC[m][t], 4)}, {v(fb[ks], 4)}, {breg((m, ks, t))}, v{IDXR}" for m, ks, t in order]
        seq += [mf(Sm, B0 + 4 * ks, B0 + 4 * ks, ks == 0) for ks in range(4)]
        seq += [mf(S0, r, B0 + 4 * ks, ks == 0) for ks, r in enumerate((d0, d1, a0, a1))]
        seq += [mf(S1, r, B0 + 4 * ks, ks == 0) for ks, r in enumerate((b1, b0, d0, d1))]
        if fast:
            seq += [m16(LL, B2 + 4, B2 + 2, True), m16(O0, B2 + 4, B2, True), m16(O1, B2 + 6, B2, True), m16(LL, PX, B2 + 2, False),
                    m16(LL, PX + 2, B2 + 2, False), mf(O0, PX, B6, False), mf(O1, PX, B6 + 4, False)]
        def run(seq, N, V, pfx, tail=0):
            for i in range(len(seq) + tail):
                if i < len(seq): A(seq[i]); stamp(A, f"{pfx.upper()}{i}")
                for x in N[i]: x() if callable(x) else A(x)
                if V[i] and i + 1 < len(seq) and not (pfx == "p" and i + 1 in PLS and O.get("nohoist", 1)): A.prewait(seq[i + 1])
                for x in V[i]: x() if callable(x) else A(x)
                stamp(A, f"{pfx}{i}")
        mk = O.get("mk", 1)
        N[71] += [f"s_add_u32 s{S_STEP}, s{S_STEP}, 1"]
        for i, x in enumerate(mkprep): V[(69, 76, 77)[i] if fast else 71] += [x]
        run(seq, N, V, "p")
        if not fast:
            lds_tile(A, W, WL[4])
            truemax(A)
        owrite(A, "ow")
        if O.get("wpre", 0) or not fast: lds_tile(A, W, WL[0]); lds_tile(A, W, WL[1])
        if fast:
            A(f"""v_subrev_u32 v{LL+1}, {67 << 23}, v{LL+1}
v_max_u32 v{LL}, v{LL+2}, v{LL+1}
v_cmp_le_u32 vcc, s{S_RNG}, v{LL}""")
        zero(A, c1, 4)
        zb = O.get("zb", 1)
        if zb < 2: zero(A, b0, 4)
        if zb < 1: zero(A, b1, 4)
        if fast: branch("s")()
        if mk and W == 2: A("s_mov_b64 exec, 0xff")
        A.wait_lg("ow"); stamp(A, "O"); A("s_barrier"); stamp(A, "O2")
        if O.get("diagw"):
            A.wait_vm("kv"); stamp(A, "D1"); A.wait_vm(); stamp(A, "D2")
        if mk and W == 2: A(f"buffer_store_dword v{SP}, v{GA}, {WS}, s{S_MK} offen{M.st}\ns_mov_b64 exec, -1")
        OA = [B2, B2 + 4, B3, B3 + 4]
        oo = (0, 1, 2, 3) if W < 2 or G2LAST else (2, 3, 0, 1)
        def oread(kk):
            for hf in range(2): A(f"ds_read_b64_tr_b16 {v(OA[kk] + 2 * hf, 2)}, v{XR} offset:{OB + (4 * hf + kk) * 512}")
        npre = O.get("npre", 3)
        for kk in oo[:npre]: oread(kk)
        acc = [b0, b1, c1]
        N = {i: [] for i in range(30)}; V = {i: [] for i in range(30)}
        for i, kk in enumerate(oo[npre:]): N[i] += [lambda kk=kk: oread(kk)]
        N[2] += [L(WL[2])]; N[3] += [L(WL[3])]
        if zb == 2: V[0] += [f"v_mov_b64 {v(b0, 2)}, 0", f"v_mov_b64 {v(b0 + 2, 2)}, 0"]
        if zb >= 1: V[zb - 1] += [f"v_mov_b64 {v(b1, 2)}, 0"]; V[zb] += [f"v_mov_b64 {v(b1 + 2, 2)}, 0"]
        rs = lambda g: (lambda: A(f"buffer_store_dwordx2 {v(acc[g], 2)}, v{RSA}, {WS}, s{S_RS + g} offen{M.st}", tag=f"rs{g}"))
        tg = lambda g: f"v_and_or_b32 v{acc[g]}, v{acc[g]}, -2, s{S_PH}"
        if G2LAST:
            N[1] = []; N[3] += ["s_nop 2"]; N[4] += ["s_nop 2"]
            V[5] += [cv(b0, b0)]; V[6] += [cv(b0 + 1, b0 + 2), tg(0)]; N[7] += [rs(0), "s_nop 0"]
            N[8] += ["s_nop 1"]
            V[9] += [cv(b1, b1), cv(b1 + 1, b1 + 2), tg(1), rs(1), cv(c1, c1), cv(c1 + 1, c1 + 2), tg(2), rs(2)]
        else:
            V[3] += [cv(c1, c1)]; V[4] += [cv(c1 + 1, c1 + 2), tg(2)]; N[5] += [rs(2), "s_nop 0"]
            N[6] += ["s_nop 1"]
            V[7] += [cv(b0, b0)]; V[8] += [cv(b0 + 1, b0 + 2), tg(0)]; N[9] += [rs(0)]
            V[9] += [cv(b1, b1), cv(b1 + 1, b1 + 2), tg(1), rs(1)]
        seq = [f"v_smfmac_f32_16x16x64_bf16 {v(acc[x >> 1], 4)}, {v(OA[2 * (x & 1 if x < 4 else W >> 1) + t], 4)}, {breg((m, x, t))}, v{IDXR}" for m, x, t in P4]
        mp = lambda i: f"buffer_load_dword v{B1 + i}, v{GA}, {WS}, s{S_MK} offen sc1"
        nmk = 0
        if mk and W == 2 and O.get("pace", 0): N[O.get("pd", 6)] = [f"s_mov_b64 exec, 0xff\nbuffer_store_dword v{SP}, v{GA}, {WS}, s{S_MK2} offen{M.st}\ns_mov_b64 exec, -1"]
        if mk and W == 0:
            for i in O.get("mslots", (4, 6, 8)): N[i] = [mp(nmk)] + N[i]; nmk += 1
            N[9] += [mp(nmk)]; nmk += 1
        run(seq, N, V, "w")
        stamp(A, "T0")
        trc = 0
        A(f"s_xor_b32 s{S_PH}, s{S_PH}, 1")
        if mk and W == 0:
            NM = O.get("nm", 6)
            for i in range(nmk, NM):
                A(mp(i))
                if i < NM - 1: delay(A, 28)
            mex0, mex = [], []
            def mpass(A, ex):
                for i in range(NM):
                    A(f"v_cmp_gt_u32 vcc, s{S_STEP}, v{B1 + i}"); A(mp(i))
                    A(f"s_cbranch_vccz L_mok{u}"); ex.append(A.snap())
            mpass(A, mex0)
            def ml(A):
                mex.clear(); A.label(f"L_mk{u}")
                mpass(A, mex)
                A(f"s_add_u32 {TMO}, {TMO}, 1\ns_cmp_gt_u32 {TMO}, {TMO_MAX}\ns_cbranch_scc0 L_mk{u}")
                st = A.snap(); A("s_branch " + M.fail)
                return st
            A.loop(ml)
            A.label(f"L_mok{u}"); A.restore(merge(*(mex0 + mex)))
        if mk: A("s_barrier")
        if red:
            gd = O.get("gd", [80, 0, 20] if mk else [220, 140, 20])
            if red == 1:
                A(f"s_cmp_lt_u32 {IDX}, 16\ns_cbranch_scc1 L_glo{u}"); delay(A, gd[2]); A.label(f"L_glo{u}")
                delay(A, gd[0] - gd[2] - 20 - trc)
            else:
                A(f"v_and_b32 v{GA}, 0x3c0, v{L16}\nv_add_u32 v{GA}, v{GA}, v{L16}")
                delay(A, gd[1] - trc)
            gather(A, G1); stamp(A, "G")
            A(f"""v_and_b32 v{T1}, 16, v{L16}
v_lshlrev_b32 v{T1}, v{T1}, s{S_ONE}""")
            for j in range(4): A(f"v_cndmask_b32 v{SEL + j}, 0, v{T1}, s[{S_SEL+2*j}:{S_SEL+2*j+1}]")
            A(f"v_mov_b32 v{T1+5}, -1\nv_mov_b32 v{T1+6}, s{S_STEP}")
            if g2 is not None:
                delay(A, g2); gather(A, G2)
            reduce(A, G1)
            A(f"s_cbranch_vccnz L_gretry{u}"); side.append(("g", A.snap()))
            A.label(f"L_gback{u}")
            if gexit: A.join(*gexit)
            finish(A)
            A(f"buffer_store_dword v{RA}, v{SP}, {WS}, s{S_AGW} offen{M.st}")
            stamp(A, "T1")
            A("s_barrier")
            if O.get("exat", -1) < 0: A(f"buffer_store_dword v{RA}, v{SP}, {WS}, s{S_EXW} offen sc1")
            if O.get("cs", 38) < 0: A(f"buffer_store_dword v{T1+5}, v{SP}, {WS}, s{S_EXZ} offen sc1")
            A(f"buffer_store_dword v{T1+5}, v{SP}, {WS}, s{S_AGZ} offen{M.st}")
            A(f"s_not_b32 s{S_PHM}, s{S_PHM}")
        else:
            stamp(A, "G")
            A.wait_vm()
            stamp(A, "T1")
            if O.get("prof") and W == 1:
                A(("s_memtime" if O["prof"] == 1 else "s_memrealtime") + " s[72:73]\ns_mov_b32 m0, s%d" % S_STEP); A.wait_lg(); A(f"v_writelane_b32 v{SP}, s72, m0")
            prep(A)
            if W == 3:
                A(f"v_cmp_gt_u32 vcc, s{S_NEED}, v{SP}")
                branch("k")()
            if W == 2: A(f"v_mov_b32 v{SP}, s{S_STEP}")
            A("s_barrier")
            if W == 2 and O.get("fs", 11) < 0: A(f"buffer_store_dword v{SP}, off, {WS}, s{S_FR} sc1")
        A(mk4())
        if O.get("stamp"):
            trc = 108
            A.force_wait("lgkmcnt(0)")
            A(f"s_cmp_ge_u32 s{S_STEP}, 5\ns_cselect_b32 s72, -1, 0")
            for i in range(NST - 1): A(f"s_sub_u32 s3, s{S_T + 2*i + 2}, s{S_T + 2*i}\ns_and_b32 s3, s3, s72\ns_add_u32 s{88 + i}, s{88 + i}, s3")
            A(f"s_cmp_eq_u32 s{S_STEP}, 5\ns_cmov_b32 s93, s{S_T}\ns_cmov_b32 s73, {TMO}\ns_cmov_b32 s101, 0\ns_cmp_eq_u32 s{S_STEP}, {O.get('snap', 30)}")
            for i in range(NST): A(f"s_cmov_b32 s{94 + i}, s{S_T + 2*i}")
        delay(A, O.get("ad", [170, 162, 162])[red] - trc)
        A(f"s_branch L_step{u}")
        return A.snap()
    A.loop(body)
    A.skip = None
    def cnt(kind):
        if O.get("stamp"): A(f"s_add_u32 s101, s101, {1 << (8 * 'fabg'.index(kind))}")
    for kind, st in list(side):
        A.restore(st)
        if kind == "a":
            ex_ = []
            def al(A):
                ex_.clear()
                A.label(f"L_aretry{u}")
                for i in range(len(sets)):
                    r = sets[(i + 1) % len(sets)]
                    A(lda(sets[i])); cnt("a")
                    A(f"v_max3_u32 v{a0}, v{r}, v{r+1}, v{r+2}\nv_max_u32 v{a0}, v{a0}, v{r+3}\nv_cmp_eq_u32 vcc, -1, v{a0}")
                    A(f"s_cbranch_vccz L_aw{i}{u}"); ex_.append((i, r, A.snap()))
                A(f"s_add_u32 {TMO}, {TMO}, 1\ns_cmp_gt_u32 {TMO}, {TMO_MAX}\ns_cbranch_scc0 L_aretry{u}")
                st = A.snap(); A("s_branch " + M.fail)
                return st
            A.loop(al)
            for i, r, st in ex_:
                A.restore(st); A.label(f"L_aw{i}{u}")
                A(f"ds_write_b128 v{L16}, {v(r, 4)} offset:{MEM + W * 1024}\ns_branch L_aback{u}")
        elif kind == "f":
            A.label(f"L_fretry{u}"); A.force_wait("lgkmcnt(0)")
            A(ldq); cnt("f"); tmo(A, M.fail); A.wait_vm()
            A(wrq); A(f"v_cmp_eq_u32 vcc, -1, v{b1}")
            A.wait_all()
            A(f"s_cbranch_vccnz L_fretry{u}\ns_branch L_fback{u}")
        elif kind == "b":
            A.label(f"L_bretry{u}"); A.force_wait("lgkmcnt(0)")
            A(ld(c0, S_RMB)); cnt("b"); tmo(A, M.fail); A.wait_vm()
            for x in wr(c0, MEM + 5120) + chk(c0, c1 + 1): A(x)
            A.wait_all()
            A(f"s_cbranch_vccnz L_bretry{u}\ns_branch L_bback{u}")
        elif kind == "g":
            A.label(f"L_gretry{u}")
            if g2 is None: gather(A, G2); delay(A, 100)
            def gl(A):
                A.label(f"L_gloop{u}")
                for again, regs in ((G1, G2), (G2, G1)):
                    gather(A, again); cnt("g")
                    A(f"s_add_u32 {TMO}, {TMO}, 1")
                    reduce(A, regs)
                    A(f"s_cbranch_vccz L_gback{u}")
                A(f"s_cmp_gt_u32 {TMO}, {TMO_MAX}\ns_cbranch_scc0 L_gloop{u}")
                st = A.snap(); A("s_branch " + M.fail)
                return st
            A.loop(gl)
        elif kind == "k":
            A.label(f"L_kretry{u}"); tmo(A, M.fail)
            A(f"""v_bfe_u32 v{SP}, v{L16}, 2, 5
buffer_load_dword v{SP}, v{SP}, {WS}, s{S_FKV} offen sc1
v_cmp_gt_u32 vcc, s{S_NEED}, v{SP}
s_cbranch_vccnz L_kretry{u}
s_branch L_kback{u}""")
        elif kind == "s":
            A.label(f"L_sretry{u}"); A.force_wait("lgkmcnt(0)")
            A(f"s_sub_u32 s3, s{S_KM0}, {W * 2048}\nv_add_u32 v{KR}, s3, v{L16}")
            for ks in range(4): xread(A, ks)
            for ks in range(4): A(mf(Sm, B0 + 4 * ks, B0 + 4 * ks, ks == 0))
            for xt, d in ((0, S0), (1, S1)):
                for ks, r in enumerate((d0, d1, b0, b1)): kfrag(A, xt, ks, r)
                for ks, r in enumerate((d0, d1, b0, b1)): A(mf(d, r, B0 + 4 * ks, ks == 0))
            truemax(A)
            for t in (WL[4], WL[0], WL[1]): lds_tile(A, W, t)
            for x in mkprep: A(x)
            owrite(A)
            zero(A, B4, 8); zero(A, c1, 4)
            A.force_wait("lgkmcnt(0)")
            A(f"s_branch L_sback{u}")
        elif kind == "l":
            A.label(f"L_last{u}")
            A.wait_all(); A("s_barrier")
            if W == 2:
                A(f"v_mov_b32 v{SP}, 64\nbuffer_store_dword v{SP}, off, {WS}, s{S_FR} sc1")
            ev(A, O, 4, 8)
            if O.get("prof") and W == 1 and not red:
                A(f"s_lshl_b32 s3, {TEAM}, 5\ns_add_u32 s3, s3, {IDX}\ns_lshl_b32 s3, s3, 8\ns_add_u32 s3, s3, {lay.DBGOUT + 0x40000}\nv_lshrrev_b32 v8, 2, v{L16}\nbuffer_store_dword v{SP}, v8, {WS}, s3 offen")
            if O.get("stamp"):
                A(f"s_lshl_b32 s100, {TEAM}, 5\ns_add_u32 s100, s100, {IDX}\ns_lshl_b32 s100, s100, 10\ns_add_u32 s100, s100, {lay.DBGOUT + W * 256}")
                A.force_wait("lgkmcnt(0)")
                A(f"s_sub_u32 s93, s{S_T}, s93\ns_sub_u32 s73, {TMO}, s73")
                for i in range(12): A(f"v_mov_b32 v{8 + i}, s{88 + i}")
                A("v_mov_b32 v20, s73\nv_mov_b32 v21, s101")
                for i in range(16):
                    A(f"s_memrealtime s[30:31]\ns_memtime s[74:75]"); A.wait_lg(); A(f"v_mov_b32 v{24 + 2*i}, s30\nv_mov_b32 v{25 + 2*i}, s74\ns_nop {i % 7}")
                for i in range(12): A(f"buffer_store_dwordx4 {v(8 + 4 * i, 4)}, off, {WS}, s100 offset:{16 * i}")
            A("s_endpgm")

def role(A, M, O):
    u = M.sfx
    prologue(A, M, O)
    st = A.snap()
    A(f"""s_cmp_eq_u32 {WAVE}, 2
s_cbranch_scc1 L_rw2{u}
s_cmp_eq_u32 {WAVE}, 3
s_cbranch_scc1 L_rw3{u}
s_cmp_eq_u32 {WAVE}, 0
s_cbranch_scc1 L_rw0{u}
s_cmp_lt_u32 {IDX}, 16
s_cbranch_scc1 L_rw1{u}""")
    for lbl, W, red in ((None, 1, 0), ("L_rw0", 0, 1), ("L_rw1", 1, 2), ("L_rw2", 2, 0), ("L_rw3", 3, 0)):
        if lbl: A.label(lbl + u)
        A.restore(st)
        step(A, M, W, red, O)
```
